```python
import torch

def _softmax(x, axis=-1):
    return torch.softmax(x, dim=axis)

def _gelu(x):
    return torch.nn.functional.gelu(x, approximate='tanh')

def _silu(x):
    return torch.nn.functional.silu(x)

def _sigmoid(x):
    return torch.sigmoid(x)

def _layernorm(x, axis=-1, eps=1e-05):
    m = x.mean(dim=axis, keepdim=True)
    v = x.var(dim=axis, keepdim=True, unbiased=False)
    return (x - m) / torch.sqrt(v + eps)

def _scatter_add(tgt, idx, src, axis=0):
    return tgt.clone().index_add_(axis, idx, src)

def _segment_sum(src, seg, n):
    out = torch.zeros((n,) + src.shape[1:], dtype=src.dtype)
    return out.index_add_(0, seg, src)

def _pad(x, pw):
    flat = tuple((v for pair in reversed(pw) for v in pair))
    return torch.nn.functional.pad(x, flat)
kernel_name = 'adaLN_cond__ssm_conv_h3__dense_activation_silu__prompt'

def setup_inputs():

    _w = lambda a: (lambda t: t.to(torch.bfloat16) if t.is_floating_point() else t)(torch.as_tensor(a))

    def _A_setup():
        B, S, D = (1, 2048, 1024)
        ks = 4
        return {'q': _w((lambda *s: torch.randn(*s, dtype=torch.bfloat16) * 0.05)(B, S, D)), 'k': _w((lambda *s: torch.randn(*s, dtype=torch.bfloat16) * 0.8)(B, S, D)), 'v': _w((lambda *s: torch.randn(*s, dtype=torch.bfloat16) * 0.8)(B, S, D)), 'shift_k': _w((lambda *s: torch.randn(*s, dtype=torch.bfloat16) * 0.8)(D, ks) * 0.5), 'ssm_k': _w((lambda *s: torch.randn(*s, dtype=torch.bfloat16) * 0.8)(D, S) * (1.0 / S ** 0.5)), 'ssm_D': _w((lambda *s: torch.randn(*s, dtype=torch.bfloat16) * 0.8)(D))}
    _A_in = _A_setup()

    def _B_setup():
        B, S, D, F = (1, 2048, 1024, 3584)
        return {'x': _w((lambda *s: torch.randn(*s, dtype=torch.bfloat16) * 0.05)(B, S, D)), 'w1': _w((lambda *s: torch.randn(*s, dtype=torch.bfloat16) * 3.2)(D, F) * D ** (-0.5)), 'w2': _w((lambda *s: torch.randn(*s, dtype=torch.bfloat16) * 1.6)(F, D) * F ** (-0.5))}
    _B_in = _B_setup()
    return {'A_q': _A_in['q'], 'A_k': _A_in['k'], 'A_v': _A_in['v'], 'A_shift_k': _A_in['shift_k'], 'A_ssm_k': _A_in['ssm_k'], 'A_ssm_D': _A_in['ssm_D'], 'B_x': _B_in['x'], 'B_w1': _B_in['w1'], 'B_w2': _B_in['w2'], 'c': _w((lambda *s: torch.randn(*s, dtype=torch.bfloat16) * 0.1)(1, 1024) * 8.0), 'w_mod': _w((lambda *s: torch.randn(*s, dtype=torch.bfloat16) * 0.1)(1024, 6 * 1024) * 1024 ** (-0.5) * 8.0)}

def reference(A_q, A_k, A_v, A_shift_k, A_ssm_k, A_ssm_D, B_x, B_w1, B_w2, c, w_mod):

    def _A_ref(q, k, v, shift_k, ssm_k, ssm_D):
        B, S, D = q.shape
        ks = shift_k.shape[-1]
        k_pad = _pad(k, ((0, 0), (ks - 1, 0), (0, 0)))
        k_shift = torch.zeros_like(k)
        for t in range(ks):
            k_shift = k_shift + k_pad[:, t:t + S, :] * shift_k[:, ks - 1 - t][None, None, :]
        kv = k_shift * v
        L = 2 * S
        kv_pad = _pad(kv, ((0, 0), (0, S), (0, 0)))
        kf_pad = _pad(ssm_k, ((0, 0), (0, S)))
        kv_f = (lambda x, axes=(-2, -1): torch.fft.rfft2(x.float(), dim=axes))(kv_pad[:, None, :, :], axes=(1, 2))
        kf_f = (lambda x, axes=(-2, -1): torch.fft.rfft2(x.float(), dim=axes))(kf_pad[:, None, :], axes=(1, 2))
        kf_f = (lambda x, *d: x.permute(*d))(kf_f, 1, 2, 0)
        y_f = kv_f * kf_f[None, :, :, :]
        y = (lambda x, s, axes=(-2, -1): torch.fft.irfft2(x, s=s, dim=axes).to(torch.bfloat16))(y_f, (1, L), axes=(1, 2))[:, 0, :S, :]
        y = y + kv * ssm_D[None, None, :]
        return q * y

    def _B_ref(x, w1, w2):
        h = torch.einsum('bsd,df->bsf', x, w1)
        h = _silu(h)
        out = torch.einsum('bsf,fd->bsd', h, w2)
        return out
    x = A_q
    mod = (_silu(c) @ w_mod).reshape(c.shape[0], 6, 1, -1)
    sa, ca, ga, sb, cb, gb = (mod[:, 0].clone(), mod[:, 1].clone(), mod[:, 2].clone(), mod[:, 3].clone(), mod[:, 4].clone(), mod[:, 5].clone())
    h = _layernorm(x, axis=-1) * (1 + ca) + sa
    x = x + ga * _A_ref(h, A_k, A_v, A_shift_k, A_ssm_k, A_ssm_D)
    h = _layernorm(x, axis=-1) * (1 + cb) + sb
    x = x + gb * _B_ref(h, B_w1, B_w2)
    return x
```

```python
class Asm:
    def __init__(self):
        self.lines = []
        self.ts = False
    def __call__(self, s=""):
        for ln in s.split("\n"):
            self.lines.append(ln)
    def i(self, s):
        self.lines.append("    " + s)
    def label(self, s):
        self.lines.append(s + ":")
    def c(self, s):
        self.lines.append("    ; " + s)
    def text(self):
        return "\n".join(self.lines) + "\n"

def v(n, cnt=1):
    return f"v{n}" if cnt == 1 else f"v[{n}:{n+cnt-1}]"
def a(n, cnt=1):
    return f"a{n}" if cnt == 1 else f"a[{n}:{n+cnt-1}]"
def s(n, cnt=1):
    return f"s{n}" if cnt == 1 else f"s[{n}:{n+cnt-1}]"

def kernel_head(A, name):
    A(".text")
    A(f".globl {name}")
    A(".p2align 8")
    A(f".type {name},@function")
    A.label(name)

def kernel_desc(A, name, vgpr, sgpr=96, accum=None):
    if accum is None:
        accum = (vgpr + 3) // 4 * 4
    A('.section .rodata,"a"')
    A(".p2align 6")
    A(f".amdhsa_kernel {name}")
    A(f"  .amdhsa_next_free_vgpr {vgpr}")
    A(f"  .amdhsa_next_free_sgpr {max(96, sgpr) if A.ts else sgpr}")
    A(f"  .amdhsa_accum_offset {accum}")
    A("  .amdhsa_group_segment_fixed_size 0")
    A("  .amdhsa_kernarg_size 112")
    A("  .amdhsa_user_sgpr_count 2")
    A("  .amdhsa_user_sgpr_kernarg_segment_ptr 1")
    A("  .amdhsa_system_sgpr_workgroup_id_x 1")
    A("  .amdhsa_float_denorm_mode_32 3")
    A("  .amdhsa_float_denorm_mode_16_64 3")
    A(".end_amdhsa_kernel")

def srd(A, d, base, nbytes, off=0):
    if off:
        A.i(f"s_add_u32 s{d}, s{base}, 0x{off:x}")
        A.i(f"s_addc_u32 s{d+1}, s{base+1}, 0")
    else:
        A.i(f"s_mov_b32 s{d}, s{base}")
        A.i(f"s_mov_b32 s{d+1}, s{base+1}")
    A.i(f"s_mov_b32 s{d+2}, 0x{nbytes:x}")
    A.i(f"s_mov_b32 s{d+3}, 0x20000")

KA = dict(q=0, k=8, v=16, shift=24, ssm=32, D=40, bx=48, w1=56, w2=64, c=72, wmod=80, out=88, dbg=96, ws=104)

MB = 1 << 20
WS = dict(kvT=0, y4=4*MB, h2=8*MB, x1=12*MB, act=16*MB, mod=32*MB, ts=33*MB, flag=34*MB, gcnt=34*MB+512*1024, gpart=35*MB, xch=36*MB, w1p=44*MB)
```

```python
import sys
from asmlib import *
from g1 import gen_g1
HDR = open('adaLN_cond__ssm_conv_h3__dense_activation_silu__prompt.s.ref').read().split('; Override launch')[0]
def build(kernels, path):
    A = Asm()
    body = Asm()
    launches = []
    body('.amdgcn_target "amdgcn-amd-amdhsa--gfx950"')
    for (fn, name, kw) in kernels:
        body.ts = True if kw.get('ts', fn.__name__ in ('gen_bw',)) else False
        g, b, lds = fn(body, name=name, **kw)
        launches.append(f"; @launch kernel={name} grid=({g},1,1) block=({b},1,1) lds={lds}")
    body(".text")
    body("code_end:")
    body("    s_endpgm")
    open(path, 'w').write(HDR + "\n".join(launches) + "\n" + body.text())
if __name__ == "__main__":
    lo = dict(ts=True, mf=False, rd=False, epi=False)
    ks = [(gen_g1, "g1_kernel", dict(ts=True, ntw=False)),
          (gen_g1, "g1_ldonly_kernel", dict(lo, ntw=False)),
          (gen_g1, "g1_ldonly_nt_kernel", dict(lo)),
          (gen_g1, "g1_ldx_kernel", dict(lo, ntw=False, ldw=False)),
          (gen_g1, "g1_ldw_kernel", dict(lo, ntw=False, ldx=False)),
          (gen_g1, "g1_ldw_nt_kernel", dict(lo, ldx=False)),
          (gen_g1, "g1_nold_kernel", dict(ts=True, ld=False)),
          (gen_g1, "g1_nold_noepi_kernel", dict(ts=True, ld=False, epi=False)),
          (gen_g1, "g1_mfonly_kernel", dict(ts=True, ld=False, epi=False, rd=False)),
          (gen_g1, "g1_empty_kernel", dict(ts=True, ld=False, epi=False, rd=False, mf=False)),
          ]
    build(ks, 'mb_g1.s')
```

```python
from asmlib import *
def ts_begin(A):
    A.i("s_memrealtime s[40:41]")
    A.i("s_memtime s[48:49]")
def ts_end(A, name, wsreg=4):
    A.i("s_waitcnt vmcnt(0)")
    A.i("s_memrealtime s[42:43]")
    A.i("s_memtime s[50:51]")
    A.i("s_waitcnt lgkmcnt(0)")
    A.i("s_cmp_lg_u32 s20, 0")
    A.i(f"s_cbranch_scc1 {name}_done")
    srd(A, 44, wsreg, MB, WS['ts'])
    A.i("v_mov_b32 v16, s40"); A.i("v_mov_b32 v17, s41"); A.i("v_mov_b32 v18, s42"); A.i("v_mov_b32 v19, s43")
    A.i("s_lshl_b32 s27, s2, 5")
    A.i("v_mov_b32 v20, s27")
    A.i("buffer_store_dwordx4 v[16:19], v20, s[44:47], 0 offen")
    A.i("v_mov_b32 v24, s48"); A.i("v_mov_b32 v25, s49"); A.i("v_mov_b32 v26, s50"); A.i("v_mov_b32 v27, s51")
    A.i("buffer_store_dwordx4 v[24:27], v20, s[44:47], 0 offen offset:16")

def gen_bw(A, name, dma=True, waves=4, depth=8, iters=176, flags="", foot=1<<20, share=True, rowseg=0):
    kernel_head(A, name)
    A.i("s_cmp_ge_u32 s2, 256")
    A.i(f"s_cbranch_scc1 {name}_done")
    A.i(f"s_load_dwordx2 s[4:5], s[0:1], {KA['ws']}")
    A.i("v_lshrrev_b32 v1, 6, v0")
    A.i("v_and_b32 v2, 63, v0")
    A.i("v_readfirstlane_b32 s20, v1")
    A.i("s_waitcnt lgkmcnt(0)")
    srd(A, 8, 4, 128*MB, 64*MB)
    if rowseg == 0:
        A.i("v_lshlrev_b32 v4, 4, v2")
    else:
        lpr = rowseg // 16
        A.i(f"v_and_b32 v5, {lpr-1}, v2")
        A.i(f"v_lshrrev_b32 v6, {lpr.bit_length()-1}, v2")
        A.i("v_lshlrev_b32 v5, 4, v5")
        A.i("v_lshl_add_u32 v4, v6, 11, v5")
    A.i("s_and_b32 s21, s2, 7")
    A.i(f"s_mul_i32 s21, s21, {foot}")
    A.i("s_lshr_b32 s22, s2, 3")
    if share:
        A.i("s_and_b32 s22, s22, 3")
    A.i(f"s_mul_i32 s22, s22, {waves}")
    A.i("s_add_u32 s22, s22, s20")
    A.i(f"s_mul_i32 s22, s22, {1024 if rowseg==0 else rowseg}")
    step = (4 if share else 32) * waves * 1024
    A.i("s_lshl_b32 s33, s20, 13")
    A.i("s_barrier")
    ts_begin(A)
    A.i(f"s_mov_b32 s23, {iters//depth}")
    A.label(f"{name}_loop")
    for d in range(depth):
        A.i(f"s_add_u32 m0, s33, {(d%8)*1024}")
        A.i("s_add_u32 s25, s21, s22")
        if dma:
            A.i(f"buffer_load_dwordx4 v4, s[8:11], s25 offen {flags} lds")
        else:
            A.i(f"buffer_load_dwordx4 {v(32+4*d,4)}, v4, s[8:11], s25 offen {flags}")
        A.i(f"s_add_u32 s22, s22, {step}")
        A.i(f"s_and_b32 s22, s22, {foot-1}")
        A.i(f"s_waitcnt vmcnt({depth-1})")
    A.i("s_sub_u32 s23, s23, 1")
    A.i("s_cmp_lg_u32 s23, 0")
    A.i(f"s_cbranch_scc1 {name}_loop")
    ts_end(A, name)
    A.label(f"{name}_done")
    A.i("s_endpgm")
    kernel_desc(A, name, 128, 64)
    return (256, 64*waves, 8192*waves)
```

```python
from asmlib import *
from bw import ts_begin, ts_end

def stamp(A, idx, tmp=90):
    pass

LOG2E = 0x3fb8aa3b

def gen_g1(A, name="g1_kernel", mf=True, rd=True, ld=True, ntw=True, ntx=False, epi=True, ts=False, nslot=3, ldx=True, ldw=True, fl=''):
    SLOT = 45056
    NL = (4 if ldx else 0) + (7 if ldw else 0)
    XB, WB = 0, 16384
    kernel_head(A, name)
    A.i("s_cmp_ge_u32 s2, 256")
    A.i(f"s_cbranch_scc1 {name}_done")
    A.i(f"s_load_dwordx2 s[4:5], s[0:1], {KA['ws']}")
    A.i(f"s_load_dwordx2 s[6:7], s[0:1], {KA['w1']}")
    if ts:
        ts_begin(A)
    A.i("v_lshrrev_b32 v1, 6, v0")
    A.i("v_and_b32 v2, 63, v0               ; lane")
    A.i("v_readfirstlane_b32 s20, v1")
    A.i("s_and_b32 s21, s2, 1")
    A.i("s_lshl_b32 s21, s21, 3")
    A.i("s_bfe_u32 s27, s2, 0x30003         ; (id>>3)&7")
    A.i("s_add_u32 s21, s21, s27            ; sblk")
    A.i("s_bfe_u32 s22, s2, 0x20001         ; (id>>1)&3")
    A.i("s_lshl_b32 s22, s22, 2")
    A.i("s_lshr_b32 s27, s2, 6")
    A.i("s_add_u32 s22, s22, s27            ; fblk")
    A.i("s_waitcnt lgkmcnt(0)")
    srd(A, 8, 4, 4*MB, WS['h2'])
    srd(A, 12, 6, 1024*3584*2)
    srd(A, 16, 4, 2048*3584*2, WS['act'])
    A.i("s_cmp_ge_u32 s20, 4")
    A.i(f"s_cbranch_scc1 {name}_loader")

    ACC = 128
    FS = [16, 60]
    vXb0, vXb1, vWb0, vWb1 = 4, 5, 6, 7
    vX0, vX1, vW0, vW1 = 8, 9, 10, 11
    A.i("s_and_b32 s28, s20, 1              ; ws")
    A.i("s_lshr_b32 s29, s20, 1             ; wf")
    A.i("v_and_b32 v3, 15, v2               ; n")
    A.i("v_lshrrev_b32 v12, 4, v2           ; g")
    A.i("v_and_b32 v13, 7, v3")
    A.i("v_xor_b32 v13, v13, v12            ; g ^ (n&7)")
    A.i("v_lshlrev_b32 v13, 4, v13")
    A.i("s_lshl_b32 s27, s28, 13            ; ws*64*128")
    A.i(f"v_lshl_add_u32 {v(vXb0)}, v3, 7, v13")
    A.i(f"v_add_u32 {v(vXb0)}, s27, {v(vXb0)}")
    A.i(f"v_xor_b32 {v(vXb1)}, 64, {v(vXb0)}")
    A.i("v_lshrrev_b32 v13, 2, v3           ; r")
    A.i("v_lshl_add_u32 v13, v12, 3, v13    ; 8g+r")
    A.i("v_mul_u32_u24 v13, 448, v13")
    A.i("v_and_b32 v14, 3, v2               ; c")
    A.i("v_lshl_add_u32 v13, v14, 3, v13    ; + c*8")
    A.i("s_mul_i32 s27, s29, 224")
    A.i("v_add_u32 v13, s27, v13")
    A.i("v_and_b32 v14, 1, v12")
    A.i("v_lshlrev_b32 v14, 5, v14          ; (g&1)*32")
    A.i(f"v_add_u32 {v(vWb0)}, v13, v14")
    A.i(f"v_sub_u32 {v(vWb1)}, v13, v14")
    A.i("s_cmp_eq_u32 s29, 0")
    A.i(f"s_cbranch_scc1 {name}_noswap")
    A.i(f"v_swap_b32 {v(vWb0)}, {v(vWb1)}")
    A.label(f"{name}_noswap")
    for r in range(112):
        A.i(f"v_mov_b32 {v(ACC+r)}, 0")

    def reads(fs, kk):
        out = []
        if not rd:
            return out
        X, W = FS[fs], FS[fs] + 16
        vx = vX0 if kk == 0 else vX1
        def wr(t):
            for hb in range(2):
                out.append(f"ds_read_b64_tr_b16 {v(W+4*t+2*hb,2)}, {v(vW0 if t%2==0 else vW1)} offset:{WB + (32*kk+4*hb)*448 + 32*t}")
        wr(0)
        for st in range(4):
            out.append(f"ds_read_b128 {v(X+4*st,4)}, {v(vx)} offset:{XB + st*2048}")
        for t in range(1, 7):
            wr(t)
        return out

    def phase(fs, side):
        X, W = FS[fs], FS[fs] + 16
        side = list(side)
        n = 0
        for t in range(7):
            for st in range(4):
                if mf:
                    ac = ACC + (t*4+st)*4
                    A.i(f"v_mfma_f32_16x16x32_bf16 {v(ac,4)}, {v(W+4*t,4)}, {v(X+4*st,4)}, {v(ac,4)}")
                if side:
                    A.i(side.pop(0))
                n += 1
        for x in side:
            A.i(x)

    A.i("s_mov_b32 s26, 0")
    A.i(f"v_mov_b32 {v(vX0)}, {v(vXb0)}")
    A.i(f"v_mov_b32 {v(vX1)}, {v(vXb1)}")
    A.i(f"v_mov_b32 {v(vW0)}, {v(vWb0)}")
    A.i(f"v_mov_b32 {v(vW1)}, {v(vWb1)}")
    A.i("s_mov_b32 s23, 16")
    A.i("s_barrier                          ; B0")
    for x in reads(0, 0):
        A.i(x)
    A(".p2align 6")
    A.label(f"{name}_cloop")
    A.i("s_waitcnt lgkmcnt(0)")
    nxt = [f"s_add_u32 s26, s26, {SLOT}", f"s_cmp_eq_u32 s26, {SLOT*nslot}", "s_cselect_b32 s26, 0, s26",
           f"v_add_u32 {v(vX0)}, s26, {v(vXb0)}"]
    phase(0, reads(1, 1) + nxt + [f"v_add_u32 {v(vW0)}, s26, {v(vWb0)}", f"v_add_u32 {v(vW1)}, s26, {v(vWb1)}",
                                  f"v_add_u32 {v(vX1)}, s26, {v(vXb1)}"])
    A.i("s_waitcnt lgkmcnt(0)")
    A.i("s_barrier")
    phase(1, reads(0, 0) + ["s_sub_u32 s23, s23, 1", "s_cmp_lg_u32 s23, 0"])
    A.i(f"s_cbranch_scc1 {name}_cloop")
    A.i("s_waitcnt lgkmcnt(0)")

    if epi:
        A.i("s_lshl_b32 s27, s21, 3")
        A.i("s_lshl_b32 s30, s28, 2")
        A.i("s_add_u32 s27, s27, s30")
        A.i("s_mul_i32 s27, s27, 112")
        A.i("s_mul_i32 s30, s22, 7")
        A.i("s_add_u32 s27, s27, s30")
        A.i("s_lshl_b32 s27, s27, 10")
        A.i("v_and_b32 v13, 1, v12")
        A.i("v_lshrrev_b32 v14, 1, v12")
        A.i("v_lshl_or_b32 v13, v13, 1, v14     ; pi(g)")
        A.i("v_lshlrev_b32 v13, 8, v13")
        A.i("v_lshl_add_u32 v13, v3, 4, v13")
        A.i("v_lshlrev_b32 v14, 8, v14")
        A.i("v_lshl_add_u32 v14, v3, 4, v14")
        A.i("v_and_b32 v15, 1, v12")
        A.i("v_lshl_add_u32 v14, v15, 3, v14")
        A.i(f"s_mov_b32 s31, 0x{LOG2E ^ 0x80000000:x}")
        A.i("s_mov_b32 s32, s31")
        A.i("s_nop 7")
        def silu4(dst, ac, tmp):
            A.i(f"v_pk_mul_f32 {v(tmp,2)}, {v(ac,2)}, s[32:33] op_sel_hi:[1,0]")
            A.i(f"v_pk_mul_f32 {v(tmp+2,2)}, {v(ac+2,2)}, s[32:33] op_sel_hi:[1,0]")
            for r in range(4): A.i(f"v_exp_f32 {v(tmp+r)}, {v(tmp+r)}")
            A.i(f"v_pk_add_f32 {v(tmp,2)}, {v(tmp,2)}, 1.0 op_sel_hi:[1,0]")
            A.i(f"v_pk_add_f32 {v(tmp+2,2)}, {v(tmp+2,2)}, 1.0 op_sel_hi:[1,0]")
            for r in range(4): A.i(f"v_rcp_f32 {v(tmp+r)}, {v(tmp+r)}")
            A.i("s_nop 0")
            A.i(f"v_pk_mul_f32 {v(tmp,2)}, {v(tmp,2)}, {v(ac,2)}")
            A.i(f"v_pk_mul_f32 {v(tmp+2,2)}, {v(tmp+2,2)}, {v(ac+2,2)}")
            A.i(f"v_cvt_pk_bf16_f32 {v(dst)}, {v(tmp)}, {v(tmp+1)}")
            A.i(f"v_cvt_pk_bf16_f32 {v(dst+1)}, {v(tmp+2)}, {v(tmp+3)}")
        def body(wf):
            pairs = [(0,0),(2,1),(4,2)] if wf == 0 else [(1,4),(3,5),(5,6)]
            single = 6 if wf == 0 else 0
            cnt = 0
            for st in range(4):
                A.i(f"s_add_u32 s30, s27, {st*112*1024}")
                for (t, blk) in pairs:
                    d = 16 + (cnt % 4) * 4
                    cnt += 1
                    silu4(d, ACC + (t*4+st)*4, 40)
                    silu4(d+2, ACC + ((t+1)*4+st)*4, 44)
                    A.i("s_nop 1")
                    A.i(f"v_permlane16_swap_b32 {v(d)}, {v(d+2)}")
                    A.i(f"v_permlane16_swap_b32 {v(d+1)}, {v(d+3)}")
                    A.i(f"buffer_store_dwordx4 {v(d,4)}, v13, s[16:19], s30 offen offset:{blk*1024}" if blk < 4 else
                        f"buffer_store_dwordx4 {v(d,4)}, v15, s[16:19], s30 offen offset:{(blk-4)*1024}")
                d = 32 + (st % 2) * 2
                silu4(d, ACC + (single*4+st)*4, 40)
                A.i(f"buffer_store_dwordx2 {v(d,2)}, v14, s[16:19], s30 offen offset:{3*1024 + wf*512}")
        A.i("v_add_u32 v15, 4096, v13")
        A.i("s_cmp_eq_u32 s29, 0")
        A.i(f"s_cbranch_scc0 {name}_epi1")
        body(0)
        A.i(f"s_branch {name}_fin")
        A.label(f"{name}_epi1")
        body(1)
    A.label(f"{name}_fin")
    if ts:
        ts_end(A, name)
    A.i("s_endpgm")

    A.label(f"{name}_loader")
    A.i("s_sub_u32 s20, s20, 4              ; lw")
    A.i("v_lshrrev_b32 v3, 3, v2")
    A.i("v_and_b32 v4, 7, v2")
    A.i("v_xor_b32 v4, v4, v3")
    A.i("v_lshlrev_b32 v4, 4, v4")
    A.i("v_lshl_add_u32 v4, v3, 11, v4      ; vXoff")
    A.i("s_mul_i32 s27, s20, 448            ; lw*7*64")
    A.i("v_add_u32 v5, s27, v2              ; p for q=0")
    A.i("s_movk_i32 s30, 2341")
    A.i("s_movk_i32 s31, 7168")
    for q in range(7):
        A.i(f"v_add_u32 v6, {64*q}, v5")
        A.i("v_mul_lo_u32 v7, v6, s30")
        A.i("v_lshrrev_b32 v7, 16, v7          ; row")
        A.i("v_mul_u32_u24 v15, 28, v7")
        A.i("v_sub_u32 v6, v6, v15             ; chunk")
        A.i("v_bfe_u32 v15, v7, 3, 1")
        A.i("v_lshlrev_b32 v15, 1, v15")
        A.i("v_xor_b32 v6, v6, v15")
        A.i("v_mul_lo_u32 v7, v7, s31")
        A.i(f"v_lshl_add_u32 {v(8+q)}, v6, 4, v7")
    A.i("s_lshl_b32 s24, s21, 18            ; sblk*128*2048")
    A.i("s_lshl_b32 s27, s20, 16            ; lw*4*8*2048")
    A.i("s_add_u32 s24, s24, s27")
    A.i("s_mul_i32 s25, s22, 448")
    A.i("s_lshl_b32 s33, s20, 12")
    A.i("s_mul_i32 s34, s20, 7168")
    A.i(f"s_add_u32 s34, s34, {WB}")
    A.i("s_mov_b32 s26, 0")
    def issue():
        if ld:
            A.i("s_add_u32 s35, s26, s33")
            A.i("s_add_u32 s36, s26, s34")
            for q in range(7):
                A.i(f"s_add_u32 m0, s36, {q*1024}")
                if q < 4:
                    A.i(f"s_add_u32 s37, s24, {q*8*2048}")
                else:
                    A.i("s_nop 0")
                if ldw: A.i(f"buffer_load_dwordx4 {v(8+q)}, s[12:15], s25 offen{' nt' if ntw else ''} {fl} lds")
                if q < 4 and ldx:
                    A.i(f"s_add_u32 m0, s35, {q*1024}")
                    A.i("s_nop 0")
                    A.i(f"buffer_load_dwordx4 v4, s[8:11], s37 offen{' nt' if ntx else ''} lds")
        A.i("s_add_u32 s24, s24, 128")
        A.i(f"s_add_u32 s25, s25, {64*7168}")
        A.i(f"s_add_u32 s26, s26, {SLOT}")
        A.i(f"s_cmp_eq_u32 s26, {SLOT*nslot}")
        A.i("s_cselect_b32 s26, 0, s26")
    for _ in range(nslot):
        issue()
    A.i(f"s_waitcnt vmcnt({NL*(nslot-1)})")
    A.i("s_barrier                          ; B0")
    A.i(f"s_mov_b32 s23, {16-nslot}")
    A.label(f"{name}_lloop")
    A.i(f"s_waitcnt vmcnt({NL*(nslot-2)})")
    A.i("s_barrier")
    issue()
    A.i("s_sub_u32 s23, s23, 1")
    A.i("s_cmp_lg_u32 s23, 0")
    A.i(f"s_cbranch_scc1 {name}_lloop")
    for j in range(16-nslot, 16):
        rem = max(0, 15 - (j+1))
        A.i(f"s_waitcnt vmcnt({NL*rem})")
        A.i("s_barrier")
    A.label(f"{name}_done")
    A.i("s_endpgm")
    kernel_desc(A, name, 240, 64, 240)
    return (256, 512, SLOT*nslot)
```

```python
from asmlib import *
from bw import ts_begin, ts_end

def gen_g2(A, name="g2_kernel", mf=True, rd=True, ld=True, ntw="", ntx="", ts=False, nslot=3, stf="", rot=False):
    SLOT = 49152
    XB, WB = 0, 32768
    NST = 28
    NL = 12
    kernel_head(A, name)
    A.i("s_cmp_ge_u32 s2, 256")
    A.i(f"s_cbranch_scc1 {name}_done")
    A.i(f"s_load_dwordx2 s[4:5], s[0:1], {KA['ws']}")
    A.i(f"s_load_dwordx2 s[6:7], s[0:1], {KA['w2']}")
    A.i(f"s_load_dwordx2 s[38:39], s[0:1], {KA['out']}")
    if ts: ts_begin(A)
    A.i("v_lshrrev_b32 v1, 6, v0")
    A.i("v_and_b32 v2, 63, v0               ; lane")
    A.i("v_readfirstlane_b32 s20, v1")
    A.i("s_and_b32 s21, s2, 3")
    A.i("s_lshl_b32 s21, s21, 2")
    A.i("s_bfe_u32 s27, s2, 0x20003         ; (id>>3)&3")
    A.i("s_add_u32 s21, s21, s27            ; sblk")
    A.i("s_bfe_u32 s22, s2, 0x10002         ; (id>>2)&1")
    A.i("s_lshl_b32 s22, s22, 3")
    A.i("s_lshr_b32 s27, s2, 5")
    A.i("s_add_u32 s22, s22, s27            ; dblk")
    A.i("s_cmp_ge_u32 s20, 4")
    A.i(f"s_cbranch_scc1 {name}_loader")

    ACC = 128
    FS = [16, 48]
    vXb, vWb = 4, 5
    vX, vW = 9, 10
    X1, GB = 96, 112
    A.i("s_and_b32 s28, s20, 1              ; ws")
    A.i("s_lshr_b32 s29, s20, 1             ; wk")
    A.i("v_and_b32 v3, 15, v2               ; n")
    A.i("v_lshrrev_b32 v14, 4, v2           ; g")
    A.i("v_and_b32 v15, 1, v14")
    A.i("v_lshrrev_b32 v80, 1, v14")
    A.i("v_lshl_or_b32 v15, v15, 1, v80     ; pi(g)")
    A.i("v_lshlrev_b32 v15, 4, v15")
    A.i("v_lshl_add_u32 v81, v3, 11, v15")
    A.i("s_lshl_b32 s30, s21, 1")
    A.i("s_add_u32 s30, s30, s28")
    A.i("s_lshl_b32 s30, s30, 17")
    A.i("s_lshl_b32 s31, s22, 1")
    A.i("s_add_u32 s31, s31, s29")
    A.i("s_lshl_b32 s31, s31, 6")
    A.i("s_add_u32 s30, s30, s31")
    A.i(f"s_add_u32 s31, s31, {5*2048}")
    A.i("s_waitcnt lgkmcnt(0)")
    srd(A, 8, 4, 4*MB, WS['x1'])
    srd(A, 12, 4, 12288, WS['mod'])
    srd(A, 16, 38, 4*MB)
    for st in range(4):
        A.i(f"s_add_u32 s{32+st}, s30, {st*16*2048}")
        A.i(f"buffer_load_dwordx4 {v(X1+4*st,4)}, v81, s[8:11], s{32+st} offen")
    A.i(f"buffer_load_dwordx4 {v(GB,4)}, v15, s[12:15], s31 offen")
    A.i("s_lshl_b32 s27, s28, 14")
    A.i("s_lshl_b32 s36, s29, 11")
    A.i("s_add_u32 s27, s27, s36")
    A.i(f"v_lshlrev_b32 {v(vXb)}, 4, v2")
    A.i(f"v_add_u32 {v(vXb)}, s27, {v(vXb)}")
    A.i("v_lshrrev_b32 v80, 2, v3           ; r")
    A.i("v_lshl_add_u32 v82, v14, 3, v80    ; 8g + r")
    A.i("v_lshlrev_b32 v82, 7, v82")
    A.i("v_lshrrev_b32 v80, 1, v80          ; (r>>1)&1")
    A.i("v_and_b32 v83, 1, v14")
    A.i("v_lshl_or_b32 v80, v83, 1, v80     ; sigma")
    A.i("v_lshl_add_u32 v82, v80, 5, v82")
    A.i("v_and_b32 v83, 3, v2")
    A.i("v_lshl_add_u32 v82, v83, 3, v82")
    A.i("s_lshl_b32 s27, s29, 13")
    A.i(f"v_add_u32 {v(vWb)}, s27, v82")
    for t in range(1, 4):
        A.i(f"v_xor_b32 {v(vWb+t)}, {32*t}, {v(vWb)}")
    for r in range(64):
        A.i(f"v_mov_b32 {v(ACC+r)}, 0")

    def reads(fs, ph):
        out = []
        if not rd: return out
        X, W = FS[fs], FS[fs] + 16
        def wr(t):
            for hb in range(2):
                out.append(f"ds_read_b64_tr_b16 {v(W+4*t+2*hb,2)}, {v(vW+t)} offset:{WB + ph*4096 + hb*512}")
        wr(0)
        for st in range(4):
            out.append(f"ds_read_b128 {v(X+4*st,4)}, {v(vX)} offset:{XB + st*4096 + ph*1024}")
        for t in range(1, 4): wr(t)
        return out
    def phase(fs, side):
        X, W = FS[fs], FS[fs] + 16
        side = list(side)
        for t in range(4):
            for st in range(4):
                if mf:
                    ac = ACC + (t*4+st)*4
                    A.i(f"v_mfma_f32_16x16x32_bf16 {v(ac,4)}, {v(W+4*t,4)}, {v(X+4*st,4)}, {v(ac,4)}")
                if side: A.i(side.pop(0))
        for x in side: A.i(x)
    A.i("s_mov_b32 s26, 0")
    A.i(f"v_mov_b32 {v(vX)}, {v(vXb)}")
    for t in range(4): A.i(f"v_mov_b32 {v(vW+t)}, {v(vWb+t)}")
    A.i(f"s_mov_b32 s23, {NST}")
    A.i("s_barrier")
    for x in reads(0, 0): A.i(x)
    A(".p2align 6")
    A.label(f"{name}_cloop")
    A.i("s_waitcnt lgkmcnt(0)")
    A.i(f"s_add_u32 s26, s26, {SLOT}")
    A.i(f"s_cmp_eq_u32 s26, {SLOT*nslot}")
    A.i("s_cselect_b32 s26, 0, s26")
    phase(0, reads(1, 1) + [f"v_add_u32 {v(vX)}, s26, {v(vXb)}"] + [f"v_add_u32 {v(vW+t)}, s26, {v(vWb+t)}" for t in range(4)])
    A.i("s_waitcnt lgkmcnt(0)")
    A.i("s_barrier")
    phase(1, reads(0, 0) + ["s_sub_u32 s23, s23, 1", "s_cmp_lg_u32 s23, 0"])
    A.i(f"s_cbranch_scc1 {name}_cloop")
    A.i("s_waitcnt lgkmcnt(0)")
    A.i("s_lshl_b32 s27, s20, 13")
    A.i("s_xor_b32 s36, s20, 2")
    A.i("s_lshl_b32 s36, s36, 13")
    A.i("v_lshlrev_b32 v82, 4, v2")
    A.i("v_add_u32 v83, s36, v82")
    A.i("v_add_u32 v82, s27, v82")
    A.i("s_barrier")
    A.i("s_cmp_eq_u32 s29, 0")
    A.i(f"s_cbranch_scc0 {name}_e1")
    def fin(wk):
        send = ACC + (2*(1-wk))*16
        keep = ACC + (2*wk)*16
        for q in range(8):
            A.i(f"ds_write_b128 v82, {v(send+4*q,4)} offset:{1024*q}")
        A.i("s_mov_b32 s27, 0xffff0000")
        A.i("s_waitcnt vmcnt(0)")
        for q in range(4):
            A.i(f"v_lshlrev_b32 {v(84+2*q)}, 16, {v(GB+q)}")
            A.i(f"v_and_b32 {v(85+2*q)}, s27, {v(GB+q)}")
        A.i("s_waitcnt lgkmcnt(0)")
        A.i("s_barrier")
        for q in range(8):
            A.i(f"ds_read_b128 {v(16+4*q,4)}, v83 offset:{1024*q}")
        for st in range(4):
            p, q = keep + st*4, keep + 16 + st*4
            A.i(f"s_waitcnt lgkmcnt({3-st})")
            for h in range(2):
                A.i(f"v_pk_add_f32 {v(p+2*h,2)}, {v(p+2*h,2)}, {v(16+4*st+2*h,2)}")
                A.i(f"v_pk_add_f32 {v(q+2*h,2)}, {v(q+2*h,2)}, {v(32+4*st+2*h,2)}")
            A.i("s_nop 1")
            for r in range(4):
                A.i(f"v_permlane16_swap_b32 {v(p+r)}, {v(q+r)}")
            for h in range(4):
                src = (p if h < 2 else q) + 2*(h % 2)
                A.i(f"v_lshlrev_b32 v92, 16, {v(X1+4*st+h)}")
                A.i(f"v_and_b32 v93, s27, {v(X1+4*st+h)}")
                A.i(f"v_pk_fma_f32 v[92:93], {v(src,2)}, {v(84+2*h,2)}, v[92:93]")
                A.i(f"v_cvt_pk_bf16_f32 {v(X1+4*st+h)}, v92, v93")
            A.i(f"buffer_store_dwordx4 {v(X1+4*st,4)}, v81, s[16:19], s{32+st} offen {stf}")
    fin(0)
    A.i(f"s_branch {name}_fin")
    A.label(f"{name}_e1")
    fin(1)
    A.label(f"{name}_fin")
    if ts: ts_end(A, name)
    A.i("s_endpgm")

    A.label(f"{name}_loader")
    A.i("s_sub_u32 s20, s20, 4              ; lw")
    A.i("v_lshlrev_b32 v4, 4, v2")
    A.i("v_lshrrev_b32 v3, 3, v2")
    A.i("v_and_b32 v5, 2, v3                ; 2*((row>>1)&1)")
    A.i("v_and_b32 v6, 7, v2")
    A.i("v_xor_b32 v5, v5, v6")
    A.i("v_lshlrev_b32 v5, 4, v5")
    A.i("v_lshl_add_u32 v5, v3, 11, v5")
    A.i("v_xor_b32 v6, 64, v5")
    A.i("s_lshl_b32 s24, s21, 3")
    A.i("s_lshl_b32 s27, s20, 1")
    A.i("s_add_u32 s24, s24, s27")
    A.i(f"s_mul_i32 s24, s24, {112*1024}")
    A.i("s_lshl_b32 s25, s22, 7")
    A.i("s_lshl_b32 s27, s20, 16")
    A.i("s_add_u32 s25, s25, s27            ; W soffset")
    A.i("s_lshl_b32 s33, s20, 13")
    A.i("s_lshl_b32 s34, s20, 12")
    A.i(f"s_add_u32 s34, s34, {WB}")
    A.i("s_mov_b32 s26, 0")
    A.i("s_waitcnt lgkmcnt(0)")
    srd(A, 8, 4, 2048*3584*2, WS['act'])
    srd(A, 12, 6, 3584*1024*2)
    def issue():
        if ld:
            A.i("s_add_u32 s36, s26, s34")
            for q in range(4):
                A.i(f"s_add_u32 m0, s36, {q*1024}")
                A.i(f"s_add_u32 s37, s25, {q*8*2048}")
                A.i(f"buffer_load_dwordx4 {v(5+(q%2))}, s[12:15], s37 offen {ntw} lds")
            for b in range(2):
                if b == 0:
                    A.i("s_add_u32 m0, s26, s33")
                    A.i(f"s_add_u32 s37, s24, {112*1024}")
                else:
                    A.i("s_add_u32 m0, m0, 4096")
                    A.i("s_nop 0")
                for kb in range(4):
                    A.i(f"buffer_load_dwordx4 v4, s[8:11], {'s24' if b==0 else 's37'} offen offset:{kb*1024} {ntx} lds")
        A.i("s_add_u32 s24, s24, 4096")
        A.i(f"s_add_u32 s25, s25, {128*2048}")
        A.i(f"s_add_u32 s26, s26, {SLOT}")
        A.i(f"s_cmp_eq_u32 s26, {SLOT*nslot}")
        A.i("s_cselect_b32 s26, 0, s26")
    for _ in range(nslot): issue()
    A.i(f"s_waitcnt vmcnt({NL*(nslot-1)})")
    A.i("s_barrier")
    A.i(f"s_mov_b32 s23, {NST-nslot}")
    A.label(f"{name}_lloop")
    A.i(f"s_waitcnt vmcnt({NL*(nslot-2)})")
    A.i("s_barrier")
    issue()
    A.i("s_sub_u32 s23, s23, 1")
    A.i("s_cmp_lg_u32 s23, 0")
    A.i(f"s_cbranch_scc1 {name}_lloop")
    for j in range(NST-nslot, NST):
        rem = max(0, NST-1 - (j+1))
        A.i(f"s_waitcnt vmcnt({NL*rem})")
        A.i("s_barrier")
    A.label(f"{name}_done")
    A.i("s_endpgm")
    kernel_desc(A, name, 192, 64)
    return (256, 512, SLOT*nslot)
```

```python
from asmlib import *
from bw import ts_begin, ts_end

def gen_k0(A, name="k0_kernel", ts=False, nt="nt", stf=""):
    kernel_head(A, name)
    A.i("s_cmp_ge_u32 s2, 256")
    A.i(f"s_cbranch_scc1 {name}_done")
    A.i(f"s_load_dwordx4 s[4:7], s[0:1], {KA['k']}        ; k, v")
    A.i(f"s_load_dwordx2 s[8:9], s[0:1], {KA['shift']}")
    A.i(f"s_load_dwordx2 s[10:11], s[0:1], {KA['ws']}")
    if ts: ts_begin(A)
    A.i("s_and_b32 s21, s2, 7")
    A.i("s_lshl_b32 s21, s21, 1")
    A.i("s_bfe_u32 s22, s2, 0x10003")
    A.i("s_add_u32 s21, s21, s22           ; cb")
    A.i("s_lshr_b32 s22, s2, 4             ; rb")
    A.i("v_and_b32 v1, 15, v0              ; cc")
    A.i("v_lshrrev_b32 v2, 4, v0           ; rg")
    A.i("s_lshl_b32 s23, s22, 18")
    A.i("s_lshl_b32 s24, s21, 7")
    A.i("s_add_u32 s23, s23, s24")
    A.i(f"s_sub_u32 s23, s23, {3*2048}")
    A.i("v_lshlrev_b32 v3, 13, v2")
    A.i("v_lshl_add_u32 v3, v1, 3, v3")
    A.i("v_add_u32 v3, s23, v3")
    A.i("v_add_u32 v4, 4096, v3            ; row-1")
    A.i("v_add_u32 v5, 6144, v3            ; row")
    A.i("v_add_u32 v6, 10240, v3           ; row+2")
    A.i("s_lshl_b32 s24, s21, 9")
    A.i("v_lshlrev_b32 v7, 5, v1")
    A.i("s_waitcnt lgkmcnt(0)")
    srd(A, 12, 4, 4*MB)
    srd(A, 16, 6, 4*MB)
    K, V, W = 16, 32, 40
    addr = [(3,0),(3,2048),(4,0),(5,0),(5,2048),(6,0),(6,2048)]
    for j,(r,o) in enumerate(addr):
        A.i(f"buffer_load_dwordx2 {v(K+2*j,2)}, v{r}, s[12:15], 0 offen offset:{o} {nt}")
    for j in range(4):
        r,o = addr[3+j]
        A.i(f"buffer_load_dwordx2 {v(V+2*j,2)}, v{r}, s[16:19], 0 offen offset:{o} {nt}")
    srd(A, 28, 8, 8192)
    A.i(f"buffer_load_dwordx4 {v(W,4)}, v7, s[28:31], s24 offen")
    A.i(f"buffer_load_dwordx4 {v(W+4,4)}, v7, s[28:31], s24 offen offset:16")
    srd(A, 32, 10, 4*MB, WS['kvT'])
    A.i("v_lshrrev_b32 v8, 1, v2           ; x")
    A.i("v_and_b32 v9, 7, v1")
    A.i("v_xor_b32 v8, v8, v9")
    A.i("v_lshlrev_b32 v8, 4, v8")
    A.i("v_lshl_add_u32 v8, v1, 10, v8")
    A.i("v_and_b32 v9, 1, v2")
    A.i("v_xor_b32 v9, 1, v9")
    A.i("v_lshl_add_u32 v8, v9, 3, v8")
    A.i("v_lshrrev_b32 v10, 6, v0")
    A.i("v_xor_b32 v10, v10, v1")
    A.i("v_lshlrev_b32 v10, 4, v10")
    A.i("v_lshl_add_u32 v10, v2, 8, v10")
    A.i("v_lshlrev_b32 v11, 4, v1")
    A.i("v_lshl_add_u32 v11, v2, 12, v11")
    A.i("s_lshl_b32 s25, s21, 18           ; cb*64*4096")
    A.i("s_lshl_b32 s26, s22, 8            ; rb*256")
    A.i("s_add_u32 s25, s25, s26")
    A.i("s_add_u32 s26, s25, 0x20000       ; +32 channels")
    A.i("s_mov_b32 s27, 0xffff0000")
    A.i("s_waitcnt vmcnt(0)")
    WU = 48
    for pr in range(2):
        for e in range(2):
            ch = 2*pr + e
            for tap in range(4):
                src = W + 2*ch + tap//2
                dst = WU + (pr*4+tap)*2 + e
                if tap % 2 == 0: A.i(f"v_lshlrev_b32 {v(dst)}, 16, {v(src)}")
                else:            A.i(f"v_and_b32 {v(dst)}, s27, {v(src)}")
    KU, VU, R = 64, 80, 88
    for pr in range(2):
        for j in range(7):
            A.i(f"v_lshlrev_b32 {v(KU+2*j)}, 16, {v(K+2*j+pr)}")
            A.i(f"v_and_b32 {v(KU+2*j+1)}, s27, {v(K+2*j+pr)}")
        for j in range(4):
            A.i(f"v_lshlrev_b32 {v(VU+2*j)}, 16, {v(V+2*j+pr)}")
            A.i(f"v_and_b32 {v(VU+2*j+1)}, s27, {v(V+2*j+pr)}")
        w = lambda tap: v(WU+(pr*4+tap)*2, 2)
        for r in range(4):
            A.i(f"v_pk_mul_f32 {v(R+2*r,2)}, {v(KU+2*r,2)}, {w(3)}")
        for tap in (2,1,0):
            for r in range(4):
                A.i(f"v_pk_fma_f32 {v(R+2*r,2)}, {v(KU+2*(r+3-tap),2)}, {w(tap)}, {v(R+2*r,2)}")
        for r in range(4):
            A.i(f"v_pk_mul_f32 {v(R+2*r,2)}, {v(R+2*r,2)}, {v(VU+2*r,2)}")
        for e in range(2):
            d = 96 + (pr*2+e)*2
            A.i(f"v_cvt_pk_bf16_f32 {v(d)}, {v(R+6+e)}, {v(R+4+e)}")
            A.i(f"v_cvt_pk_bf16_f32 {v(d+1)}, {v(R+2+e)}, {v(R+e)}")
            A.i(f"ds_write_b64 v8, {v(d,2)} offset:{(2*pr+e)*256}")
    A.i("s_waitcnt lgkmcnt(0)")
    A.i("s_barrier")
    A.i("ds_read_b128 v[16:19], v10")
    A.i("ds_read_b128 v[20:23], v10 offset:8192")
    A.i("s_waitcnt lgkmcnt(1)")
    A.i(f"buffer_store_dwordx4 v[16:19], v11, s[32:35], s25 offen {stf}")
    A.i("s_waitcnt lgkmcnt(0)")
    A.i(f"buffer_store_dwordx4 v[20:23], v11, s[32:35], s26 offen {stf}")
    if ts:
        A.i("v_lshrrev_b32 v1, 6, v0")
        A.i("s_nop 0")
        A.i("v_readfirstlane_b32 s20, v1")
        ts_end(A, name, 10)
    A.label(f"{name}_done")
    A.i("s_endpgm")
    kernel_desc(A, name, 104, 64)
    return (256, 512, 16384)
```

```python
from asmlib import *
from bw import ts_begin, ts_end
LOG2E = 0x3fb8aa3b

def gen_k1(A, name="k1_kernel", ts=False, nt="nt", stf="", gemv=True):
    WB = 24320
    HC = 4160
    XO = 4*HC
    PART = 4*WB
    kernel_head(A, name)
    A.i("s_cmp_ge_u32 s2, 256")
    A.i(f"s_cbranch_scc1 {name}_done")
    A.i(f"s_load_dwordx4 s[4:7], s[0:1], {KA['ssm']}")
    A.i(f"s_load_dwordx4 s[8:11], s[0:1], {KA['c']}       ; c, w_mod")
    A.i(f"s_load_dwordx2 s[12:13], s[0:1], {KA['ws']}")
    if ts: ts_begin(A)
    A.i("v_lshrrev_b32 v1, 6, v0")
    A.i("v_and_b32 v2, 63, v0              ; lane")
    A.i("v_readfirstlane_b32 s20, v1       ; wave")
    A.i("s_and_b32 s21, s2, 7")
    A.i("s_lshl_b32 s21, s21, 5")
    A.i("s_lshr_b32 s22, s2, 3")
    A.i("s_add_u32 s21, s21, s22")
    A.i("s_cmp_ge_u32 s20, 4")
    A.i(f"s_cbranch_scc1 {name}_gemv")
    A.i("s_lshl_b32 s22, s21, 2")
    A.i("s_add_u32 s22, s22, s20           ; channel d")
    A.i(f"s_mul_i32 s23, s20, {WB}")
    A.i("s_lshl_b32 s24, s22, 12           ; d*4096")
    A.i("v_lshlrev_b32 v3, 4, v2           ; lane*16")
    A.i("s_waitcnt lgkmcnt(0)")
    srd(A, 16, 4, 4*MB)
    srd(A, 28, 12, 4*MB, WS['kvT'])
    for u in range(4):
        A.i(f"buffer_load_dwordx4 {v(16+4*u,4)}, v3, s[28:31], s24 offen offset:{1024*u}")
    A.i("s_add_u32 s32, s4, s24")
    A.i("s_addc_u32 s33, s5, 0")
    A.i("s_load_dwordx2 s[34:35], s[32:33], 0          ; h0..h3")
    A.i("s_lshr_b32 s25, s22, 1")
    A.i("s_lshl_b32 s25, s25, 2")
    A.i("s_load_dword s36, s[6:7], s25                 ; D pair")
    for c in range(4):
        A.i(f"s_add_u32 m0, s23, {c*HC+64}")
        A.i(f"s_add_u32 s25, s24, {2*(1+c)}")
        for u in range(4):
            A.i(f"buffer_load_dwordx4 v3, s[16:19], s25 offen offset:{1024*u} {nt if c==0 else ''} lds")
    A.i("v_mov_b32 v32, 0"); A.i("v_mov_b32 v33, 0"); A.i("v_mov_b32 v34, 0"); A.i("v_mov_b32 v35, 0")
    A.i("v_add_u32 v4, s23, v3")
    A.i(f"ds_write_b128 v4, v[32:35] offset:{XO}")
    A.i("v_min_u32 v5, 25, v2")
    A.i("v_lshlrev_b32 v5, 4, v5")
    A.i("v_add_u32 v5, s23, v5")
    A.i(f"ds_write_b128 v5, v[32:35] offset:{XO+1024}")
    A.i("v_lshrrev_b32 v5, 2, v2")
    A.i("v_mul_u32_u24 v5, 96, v5")
    A.i("v_and_b32 v6, 3, v2")
    A.i("v_lshl_add_u32 v5, v6, 4, v5")
    A.i("v_add_u32 v5, s23, v5")
    A.i("v_and_b32 v6, 15, v2              ; r / i")
    A.i("v_lshrrev_b32 v7, 4, v2           ; g")
    A.i("v_and_b32 v8, 3, v6")
    A.i(f"v_mul_u32_u24 v8, {HC}, v8")
    A.i("v_lshrrev_b32 v9, 2, v6")
    A.i("v_lshlrev_b32 v10, 1, v7")
    A.i("v_sub_u32 v9, v9, v10             ; (r>>2) - 2g")
    A.i("v_add_u32 v9, 6, v9               ; + 8 - 2")
    A.i("v_lshl_add_u32 v8, v9, 3, v8")
    A.i("v_add_u32 v8, s23, v8")
    A.i("v_mul_u32_u24 v9, 96, v6")
    A.i("v_lshl_add_u32 v9, v7, 4, v9")
    A.i(f"s_add_u32 s25, s23, {XO + 96*15}")
    A.i("v_add_u32 v9, s25, v9")
    A.i("s_waitcnt lgkmcnt(0)")
    A.i("v_and_b32 v10, 31, v2")
    A.i("v_lshrrev_b32 v11, 3, v10         ; copy")
    A.i("v_and_b32 v10, 7, v10             ; idx")
    A.i("v_sub_u32 v12, 3, v11")
    A.i("v_lshlrev_b32 v12, 4, v12         ; 16*(3-copy)")
    A.i("v_mov_b32 v14, s34"); A.i("v_mov_b32 v15, s35")
    A.i("v_lshlrev_b64 v[14:15], v12, v[14:15]")
    A.i("v_cmp_eq_u32 vcc, 7, v10")
    A.i(f"v_mul_u32_u24 v11, {HC}, v11")
    A.i("v_lshl_add_u32 v11, v10, 3, v11")
    A.i("v_cndmask_b32 v14, 0, v14, vcc")
    A.i("v_cndmask_b32 v15, 0, v15, vcc")
    A.i("v_add_u32 v11, s23, v11")
    A.i("ds_write_b64 v11, v[14:15]")
    A.i("s_and_b32 s25, s22, 1")
    A.i("s_lshl_b32 s25, s25, 4")
    A.i("s_lshr_b32 s36, s36, s25")
    A.i("s_and_b32 s36, s36, 0xffff        ; D bits")
    DI = 36
    A.i("v_lshlrev_b32 v10, 3, v7")
    A.i("v_add_u32 v10, 7, v10")
    A.i("v_sub_u32 v10, v10, v6")
    A.i("v_and_b32 v11, 1, v10")
    A.i("v_lshlrev_b32 v11, 4, v11")
    A.i("v_lshlrev_b32 v11, v11, s36")
    A.i("v_ashrrev_i32 v10, 1, v10")
    for rt in range(2):
        for q in range(4):
            A.i(f"v_cmp_eq_u32 vcc, {q + 8*rt}, v10")
            A.i("s_nop 1")
            A.i(f"v_cndmask_b32 {v(DI+4*rt+q)}, 0, v11, vcc")
    ACC = 48
    FS = [80, 128]
    for r in range(32):
        A.i(f"v_mov_b32 {v(ACC+r)}, 0")
    A.i("s_waitcnt vmcnt(16)")
    for u in range(4):
        A.i(f"ds_write_b128 v5, {v(16+4*u,4)} offset:{XO + 96*15 + 96*16*u}")
    A.i("s_waitcnt vmcnt(0) lgkmcnt(0)")

    def reads(fs, par):
        out = []
        F = FS[fs]
        def ar(j):
            for rt in range(2):
                for hb in range(2):
                    out.append(f"ds_read_b64 {v(F+(j*2+rt)*4+2*hb,2)}, v8 offset:{64*(par+16*j) + 32*rt + 8*hb}")
        ar(0)
        for d in range(4):
            out.append(f"ds_read_b128 {v(F+32+4*d,4)}, v9 offset:{96*(16*d + 1 - par)}")
        for j in range(1,4): ar(j)
        return out
    def body(fs, side):
        F = FS[fs]
        side = list(side)
        n = 0
        for j in range(4):
            if n == 0: A.i("s_waitcnt lgkmcnt(12)")
            else:      A.i("s_waitcnt lgkmcnt(15)")
            for d in range(4-j):
                for rt in range(2):
                    ac = ACC + ((j+d)*2+rt)*4
                    A.i(f"v_mfma_f32_16x16x32_bf16 {v(ac,4)}, {v(F+(j*2+rt)*4,4)}, {v(F+32+4*d,4)}, {v(ac,4)}")
                    if side: A.i(side.pop(0))
                    n += 1
        for x in side: A.i(x)
    A.i("v_subrev_u32 v9, 96, v9")
    for x in reads(0, 0): A.i(x)
    A.i("s_waitcnt lgkmcnt(0)")
    for d in range(4):
        for rt in range(2):
            ac = ACC + (d*2+rt)*4
            A.i(f"v_mfma_f32_16x16x32_bf16 {v(ac,4)}, {v(DI+4*rt,4)}, {v(FS[0]+32+4*d,4)}, {v(ac,4)}")
    A.i("s_mov_b32 s26, 8")
    A(".p2align 6")
    A.label(f"{name}_loop")
    body(0, reads(1, 1))
    A.i("v_add_u32 v8, 128, v8")
    A.i("v_subrev_u32 v9, 192, v9")
    body(1, reads(0, 0))
    A.i("s_sub_u32 s26, s26, 1")
    A.i("s_cmp_lg_u32 s26, 0")
    A.i(f"s_cbranch_scc1 {name}_loop")
    A.i("s_waitcnt lgkmcnt(0)")
    A.i("v_mul_u32_u24 v10, 80, v6")
    A.i("v_lshl_add_u32 v10, v7, 3, v10")
    A.i("v_add_u32 v10, s23, v10")
    A.i("s_nop 4")
    for G in range(4):
        for rt in range(2):
            ac = ACC + (G*2+rt)*4
            d = 16 + (G*2+rt)*2
            A.i(f"v_cvt_pk_bf16_f32 {v(d)}, {v(ac)}, {v(ac+1)}")
            A.i(f"v_cvt_pk_bf16_f32 {v(d+1)}, {v(ac+2)}, {v(ac+3)}")
            A.i(f"ds_write_b64 v10, {v(d,2)} offset:{80*16*G + 32*rt}")
    srd(A, 16, 12, 4*MB, WS['y4'])
    A.i("v_lshrrev_b32 v11, 4, v0")
    A.i("v_mul_u32_u24 v11, 80, v11")
    A.i("v_lshl_add_u32 v11, v6, 2, v11")
    A.i("v_lshlrev_b32 v12, 4, v0")
    A.i("s_lshl_b32 s25, s21, 14           ; cg*16384")
    A.i("s_mov_b32 s34, 0x05040100")
    A.i("s_mov_b32 s35, 0x07060302")
    A.i("s_waitcnt lgkmcnt(0)")
    A.i("s_barrier")
    for u in range(4):
        for ch in range(4):
            off = ch*WB + 80*16*u
            if off < 65536:
                A.i(f"ds_read_b32 {v(48+4*u+ch)}, v11 offset:{off}")
            else:
                if u == 0: A.i(f"v_add_u32 v13, {3*WB}, v11")
                A.i(f"ds_read_b32 {v(48+4*u+ch)}, v13 offset:{80*16*u}")
    for u in range(4):
        A.i(f"s_waitcnt lgkmcnt({12-4*u})")
        s0 = 48+4*u; d = 64+4*u
        A.i(f"v_perm_b32 {v(d)}, {v(s0+1)}, {v(s0)}, s34")
        A.i(f"v_perm_b32 {v(d+1)}, {v(s0+3)}, {v(s0+2)}, s34")
        A.i(f"v_perm_b32 {v(d+2)}, {v(s0+1)}, {v(s0)}, s35")
        A.i(f"v_perm_b32 {v(d+3)}, {v(s0+3)}, {v(s0+2)}, s35")
        A.i(f"s_add_u32 s26, s25, {4096*u}")
        A.i(f"buffer_store_dwordx4 {v(d,4)}, v12, s[16:19], s26 offen {stf}")
    if ts: ts_end(A, name, 12)
    A.i("s_endpgm")

    A.label(f"{name}_gemv")
    if not gemv:
        A.i("s_endpgm")
    A.i("s_cmp_ge_u32 s2, 96")
    A.i(f"s_cbranch_scc1 {name}_done")
    A.i("v_and_b32 v1, 0xff, v0            ; t")
    A.i("v_and_b32 v3, 7, v1               ; cc")
    A.i("v_lshrrev_b32 v4, 3, v1")
    A.i(f"s_mov_b32 s22, {32*12288}")
    A.i("v_mul_lo_u32 v5, v4, s22")
    A.i("v_lshl_add_u32 v5, v3, 4, v5")
    A.i("v_lshlrev_b32 v6, 6, v4")
    A.i("s_lshl_b32 s23, s2, 7")
    A.i("s_waitcnt lgkmcnt(0)")
    srd(A, 16, 8, 2048)
    srd(A, 28, 10, 1024*12288)
    C = 16; S = 32; Wd = 64
    for u in range(4):
        A.i(f"buffer_load_dwordx4 {v(C+4*u,4)}, v6, s[16:19], 0 offen offset:{16*u}")
    for j in range(32):
        A.i(f"buffer_load_dwordx4 {v(Wd+4*j,4)}, v5, s[28:31], s23 offen {nt}")
        A.i(f"s_add_u32 s23, s23, 12288")
    A.i("s_mov_b32 s27, 0xffff0000")
    A.i(f"s_mov_b32 s24, 0x{LOG2E ^ 0x80000000:x}")
    A.i("s_waitcnt vmcnt(32)")
    for q in range(16):
        A.i(f"v_lshlrev_b32 {v(S+2*q)}, 16, {v(C+q)}")
        A.i(f"v_and_b32 {v(S+2*q+1)}, s27, {v(C+q)}")
    for q in range(16):
        x0, x1 = S+2*q, S+2*q+1
        A.i(f"v_mul_f32 v8, s24, {v(x0)}")
        A.i(f"v_mul_f32 v9, s24, {v(x1)}")
        A.i("v_exp_f32 v8, v8"); A.i("v_exp_f32 v9, v9")
        A.i("s_nop 0")
        A.i("v_add_f32 v8, 1.0, v8"); A.i("v_add_f32 v9, 1.0, v9")
        A.i("v_rcp_f32 v8, v8"); A.i("v_rcp_f32 v9, v9")
        A.i("s_nop 0")
        A.i(f"v_mul_f32 v8, v8, {v(x0)}"); A.i(f"v_mul_f32 v9, v9, {v(x1)}")
        A.i("v_cvt_pk_bf16_f32 v8, v8, v9")
        A.i(f"v_lshlrev_b32 {v(x0)}, 16, v8")
        A.i(f"v_and_b32 {v(x1)}, s27, v8")
    AC = 16
    for r in range(8): A.i(f"v_mov_b32 {v(AC+r)}, 0")
    for j in range(32):
        if j % 4 == 0: A.i(f"s_waitcnt vmcnt({28-j})")
        sel = "op_sel_hi:[1,0,1]" if j % 2 == 0 else "op_sel:[0,1,0] op_sel_hi:[1,1,1]"
        for q in range(4):
            t = 8 + 2*(q % 2)
            A.i(f"v_lshlrev_b32 {v(t)}, 16, {v(Wd+4*j+q)}")
            A.i(f"v_and_b32 {v(t+1)}, s27, {v(Wd+4*j+q)}")
            A.i(f"v_pk_fma_f32 {v(AC+2*q,2)}, {v(t,2)}, {v(S+(j//2)*2,2)}, {v(AC+2*q,2)} {sel}")
    A.i("s_nop 1")
    for r in range(8):
        A.i(f"v_add_f32_dpp {v(AC+r)}, {v(AC+r)}, {v(AC+r)} row_ror:8 row_mask:0xf bank_mask:0xf")
    A.i("v_lshrrev_b32 v8, 4, v1")
    A.i("v_lshlrev_b32 v8, 8, v8")
    A.i("v_lshl_add_u32 v8, v3, 5, v8")
    A.i(f"v_add_u32 v8, {PART}, v8")
    A.i(f"ds_write_b128 v8, {v(AC,4)}")
    A.i(f"ds_write_b128 v8, {v(AC+4,4)} offset:16")
    srd(A, 16, 12, 12288, WS['mod'])
    A.i("s_waitcnt lgkmcnt(0)")
    A.i("s_barrier")
    A.i("s_cmp_lg_u32 s20, 4")
    A.i(f"s_cbranch_scc1 {name}_done")
    A.i("v_lshlrev_b32 v8, 2, v2")
    A.i(f"v_add_u32 v8, {PART}, v8")
    for p in range(16):
        A.i(f"ds_read_b32 {v(32+p)}, v8 offset:{256*p}")
    A.i("s_waitcnt lgkmcnt(0)")
    for st in (8,4,2,1):
        for p in range(st):
            A.i(f"v_add_f32 {v(32+p)}, {v(32+p)}, {v(32+p+st)}")
    A.i("v_cvt_pk_bf16_f32 v32, v32, v32")
    A.i("v_lshlrev_b32 v8, 1, v2")
    A.i("s_lshl_b32 s23, s2, 7")
    A.i("buffer_store_short v32, v8, s[16:19], s23 offen")
    A.label(f"{name}_done")
    A.i("s_endpgm")
    kernel_desc(A, name, 192, 64)
    return (256, 512, PART + 4096)
```

```python
from asmlib import *
from bw import ts_begin, ts_end

def wave_reduce(A, regs):
    steps = ["row_shr:1 row_mask:0xf bank_mask:0xf bound_ctrl:0",
             "row_shr:2 row_mask:0xf bank_mask:0xf bound_ctrl:0",
             "row_shr:4 row_mask:0xf bank_mask:0xf bound_ctrl:0",
             "row_shr:8 row_mask:0xf bank_mask:0xf bound_ctrl:0",
             "row_bcast:15 row_mask:0xa bank_mask:0xf",
             "row_bcast:31 row_mask:0xc bank_mask:0xf"]
    for st in steps:
        if len(regs) < 3:
            A.i("s_nop 1")
        for r in regs:
            A.i(f"v_add_f32_dpp {v(r)}, {v(r)}, {v(r)} {st}")

def gen_k2(A, name="k2_kernel", ts=False, nt="nt", stf="", pref=0):
    kernel_head(A, name)
    A.i("s_cmp_ge_u32 s2, 256")
    A.i(f"s_cbranch_scc1 {name}_done")
    A.i(f"s_load_dwordx2 s[4:5], s[0:1], {KA['q']}")
    A.i(f"s_load_dwordx2 s[6:7], s[0:1], {KA['ws']}")
    if ts: ts_begin(A)
    A.i("v_lshrrev_b32 v1, 6, v0")
    A.i("v_and_b32 v2, 63, v0")
    A.i("v_readfirstlane_b32 s20, v1")
    A.i("s_and_b32 s21, s2, 7")
    A.i("s_lshl_b32 s21, s21, 5")
    A.i("s_lshr_b32 s22, s2, 3")
    A.i("s_add_u32 s21, s21, s22")
    A.i("s_lshl_b32 s21, s21, 2")
    A.i("s_add_u32 s21, s21, s20")
    A.i("s_lshl_b32 s22, s21, 12")
    A.i("s_lshl_b32 s23, s21, 4")
    A.i("v_lshlrev_b32 v3, 4, v2           ; lane*16")
    A.i("v_lshlrev_b32 v4, 15, v2          ; lane*2*16384")
    A.i("v_add_u32 v5, 0x4000, v4")
    A.i("s_add_u32 s24, s23, 0x200000      ; +128 groups")
    A.i("s_waitcnt lgkmcnt(0)")
    srd(A, 8, 4, 4*MB)
    srd(A, 12, 6, 4*MB, WS['y4'])
    srd(A, 16, 6, 12288, WS['mod'])
    X, Y, M = 16, 32, 48
    for row in range(2):
        for hf in range(2):
            A.i(f"buffer_load_dwordx4 {v(X+(row*2+hf)*4,4)}, v3, s[8:11], s22 offen offset:{row*2048+hf*1024} {nt}")
    for hf in range(2):
        for gq in range(2):
            A.i(f"buffer_load_dwordx4 {v(Y+(hf*2+gq)*4,4)}, {v(4+gq)}, s[12:15], {'s23' if hf==0 else 's24'} offen")
    A.i("s_movk_i32 s25, 4096")
    A.i("s_movk_i32 s26, 8192")
    for vec in range(5):
        for hf in range(2):
            off = vec*2048 + hf*1024
            so = ["0", "s25", "s26"][off // 4096]
            A.i(f"buffer_load_dwordx4 {v(M+(vec*2+hf)*4,4)}, v3, s[16:19], {so} offen offset:{off % 4096}")
    srd(A, 28, 6, 4*MB, WS['x1'])
    srd(A, 32, 6, 4*MB, WS['h2'])
    A.i("s_mov_b32 s27, 0xffff0000")
    A.i("s_mov_b32 s36, 0x3a800000         ; 1/1024")
    A.i("s_mov_b32 s37, 0x3727c5ac         ; 1e-5")
    XF = 100
    MF = 132
    def unpack(dst, src):
        A.i(f"v_lshlrev_b32 {v(dst)}, 16, {v(src)}")
        A.i(f"v_and_b32 {v(dst+1)}, s27, {v(src)}")
    def stats(tag):
        for row in range(2):
            b = XF + row*16
            A.i(f"v_pk_add_f32 {v(88+2*row,2)}, {v(b,2)}, {v(b+2,2)}")
            A.i(f"v_pk_mul_f32 {v(92+2*row,2)}, {v(b,2)}, {v(b,2)}")
            A.i(f"v_pk_fma_f32 {v(92+2*row,2)}, {v(b+2,2)}, {v(b+2,2)}, {v(92+2*row,2)}")
        for q in range(2, 8):
            for row in range(2):
                b = XF + row*16 + 2*q
                A.i(f"v_pk_add_f32 {v(88+2*row,2)}, {v(88+2*row,2)}, {v(b,2)}")
                A.i(f"v_pk_fma_f32 {v(92+2*row,2)}, {v(b,2)}, {v(b,2)}, {v(92+2*row,2)}")
        for q in range(4):
            A.i(f"v_add_f32 {v(96+q)}, {v(88+2*q)}, {v(89+2*q)}")
        A.i("s_nop 1")
        wave_reduce(A, [96, 97, 98, 99])
        A.i("s_nop 1")
        for q in range(4):
            A.i(f"v_readlane_b32 s{52+q}, {v(96+q)}, 63")
        A.i("s_nop 1")
        for row in range(2):
            A.i(f"v_mov_b32 v92, s{52+row}")
            A.i(f"v_mov_b32 v93, s{54+row}")
            A.i("v_mul_f32 v92, s36, v92           ; mean")
            A.i("v_mul_f32 v93, s36, v93           ; E[x^2]")
            A.i("v_fma_f32 v93, -v92, v92, v93     ; var")
            A.i("v_max_f32 v93, 0, v93")
            A.i("v_add_f32 v93, s37, v93")
            A.i(f"v_rsq_f32 {v(88+2*row)}, v93")
            A.i("s_nop 0")
            A.i(f"v_mul_f32 {v(89+2*row)}, -v92, {v(88+2*row)}")
    A.i("s_waitcnt vmcnt(14)")
    for row in range(2):
        for q in range(8):
            unpack(XF + row*16 + 2*q, X + row*8 + q)
    stats("a")
    A.i("s_waitcnt vmcnt(4)")
    SA, CA, GA = MF, MF+16, MF+32
    for q in range(8):
        unpack(SA+2*q, M+q); unpack(CA+2*q, M+8+q); unpack(GA+2*q, M+16+q)
        A.i(f"v_pk_add_f32 {v(CA+2*q,2)}, {v(CA+2*q,2)}, 1.0 op_sel_hi:[1,0]")
    T = 180
    for row in range(2):
        for q in range(8):
            hf, gq, pr = q // 4, (q // 2) % 2, q % 2
            x = XF + row*16 + 2*q
            t = T + (q % 2) * 4
            unpack(t+2, Y + (hf*2+gq)*4 + row*2 + pr)
            A.i(f"v_pk_fma_f32 {v(t,2)}, {v(x,2)}, {v(88+2*row,2)}, {v(88+2*row,2)} op_sel:[0,0,1] op_sel_hi:[1,0,1]")
            A.i(f"v_pk_fma_f32 {v(t,2)}, {v(t,2)}, {v(CA+2*q,2)}, {v(SA+2*q,2)}")
            A.i(f"v_pk_mul_f32 {v(t,2)}, {v(t,2)}, {v(t+2,2)}")
            A.i(f"v_pk_fma_f32 {v(t,2)}, {v(t,2)}, {v(GA+2*q,2)}, {v(x,2)}")
            A.i(f"v_cvt_pk_bf16_f32 {v(X+row*8+q)}, {v(t)}, {v(t+1)}")
            unpack(x, X+row*8+q)
        for hf in range(2):
            A.i(f"buffer_store_dwordx4 {v(X+row*8+hf*4,4)}, v3, s[28:31], s22 offen offset:{row*2048+hf*1024} {stf}")
    stats("b")
    A.i("s_waitcnt vmcnt(4)")
    SB, CB = MF, MF+16
    for q in range(8):
        unpack(SB+2*q, M+24+q); unpack(CB+2*q, M+32+q)
        A.i(f"v_pk_add_f32 {v(CB+2*q,2)}, {v(CB+2*q,2)}, 1.0 op_sel_hi:[1,0]")
    H = 32
    for row in range(2):
        for q in range(8):
            x = XF + row*16 + 2*q
            t = T + (q % 2) * 4
            A.i(f"v_pk_fma_f32 {v(t,2)}, {v(x,2)}, {v(88+2*row,2)}, {v(88+2*row,2)} op_sel:[0,0,1] op_sel_hi:[1,0,1]")
            A.i(f"v_pk_fma_f32 {v(t,2)}, {v(t,2)}, {v(CB+2*q,2)}, {v(SB+2*q,2)}")
            A.i(f"v_cvt_pk_bf16_f32 {v(H+row*8+q)}, {v(t)}, {v(t+1)}")
        for hf in range(2):
            A.i(f"buffer_store_dwordx4 {v(H+row*8+hf*4,4)}, v3, s[32:35], s22 offen offset:{row*2048+hf*1024} {stf}")
    if ts: ts_end(A, name, 6)
    A.label(f"{name}_done")
    A.i("s_endpgm")
    kernel_desc(A, name, 188, 64)
    return (256, 256, 0)
```

```python
import sys
from build_mb import build
from k0 import gen_k0
from k1 import gen_k1
from k2 import gen_k2
from g1 import gen_g1
from g2 import gen_g2
from g2b import gen_g2b
from g2c import gen_g2c
def full(path, ts=False, **o):
    ks = [(gen_k0, "k0_kernel", dict(ts=ts, **o.get('k0', {}))),
          (gen_k1, "k1_kernel", dict(ts=ts, **o.get('k1', {}))),
          (gen_k2, "k2_kernel", dict(ts=ts, **o.get('k2', {}))),
          (gen_g1, "g1_kernel", dict(ts=ts, ntw=False, **o.get('g1', {}))),
          (o.get('g2fn', gen_g2c), "g2_kernel", dict(ts=ts, **o.get('g2', {})))]
    build(ks, path)
if __name__ == "__main__":
    full('adaLN_cond__ssm_conv_h3__dense_activation_silu__prompt.s')
    full('full_ts.s', ts=True)
```

```python
from asmlib import *
def gen_empty(A, name, threads=256, lds=0, vg=32, grid=256):
    kernel_head(A, name)
    A.i("s_endpgm")
    kernel_desc(A, name, vg, 32)
    return (grid, threads, lds)
if __name__ == "__main__":
    from build_mb import build
    build([(gen_empty, f"e{i}_kernel", dict()) for i in range(9)], 'mb_empty.s')
    build([(gen_empty, f"e{i}_kernel", dict(threads=512, lds=140000, vg=240)) for i in range(9)], 'mb_empty2.s')
```

```python
from build_mb import build
from build import *
from empty import gen_empty
base = [(gen_k0, "k0_kernel", {}), (gen_k1, "k1_kernel", {}), (gen_k2, "k2_kernel", {}), (gen_g1, "g1_kernel", dict(ntw=False)), (gen_g2, "g2_kernel", {})]
build([(gen_empty, f"e{i}_kernel", {}) for i in range(4)] + base, 'x_pre4.s')
build(base + [(gen_empty, f"e{i}_kernel", {}) for i in range(4)], 'x_post4.s')
build(base, 'x_base.s')
```

```python
from asmlib import *
TSIDX = {'k0':0,'k1':1,'k2':2,'g1':3,'g2':4}
def ts_begin(A):
    A.i("s_memrealtime s[40:41]")
    A.i("s_memtime s[48:49]")
    for j in range(6):
        A.i(f"s_mov_b32 s{84+2*j}, 0")
def ts_mark(A, j):
    A.i(f"s_memrealtime s[{84+2*j}:{85+2*j}]")
def ts_end(A, name, wsreg=4, wave=0):
    tso = TSIDX.get(name[:2], 0) * 16384
    A.i("s_waitcnt vmcnt(0)")
    A.i("s_memrealtime s[42:43]")
    A.i("s_memtime s[50:51]")
    A.i("s_waitcnt lgkmcnt(0)")
    A.i(f"s_cmp_lg_u32 s20, {wave}")
    A.i(f"s_cbranch_scc1 {name}_done")
    srd(A, 44, wsreg, 16384, WS['ts'] + tso)
    A.i("v_mov_b32 v16, s40"); A.i("v_mov_b32 v17, s41"); A.i("v_mov_b32 v18, s42"); A.i("v_mov_b32 v19, s43")
    A.i("s_lshl_b32 s27, s2, 6")
    A.i("v_mov_b32 v20, s27")
    A.i("buffer_store_dwordx4 v[16:19], v20, s[44:47], 0 offen")
    A.i("v_mov_b32 v24, s48"); A.i("v_mov_b32 v25, s49"); A.i("v_mov_b32 v26, s50"); A.i("v_mov_b32 v27, s51")
    A.i("buffer_store_dwordx4 v[24:27], v20, s[44:47], 0 offen offset:16")
    for j in range(6):
        A.i(f"v_mov_b32 v{28+j}, s{84+2*j}")
    A.i("buffer_store_dwordx4 v[28:31], v20, s[44:47], 0 offen offset:32")
    A.i("buffer_store_dwordx2 v[32:33], v20, s[44:47], 0 offen offset:48")

def gen_bw(A, name, dma=True, waves=4, depth=8, iters=176, flags="", foot=1<<20, share=True, rowseg=0):
    kernel_head(A, name)
    A.i("s_cmp_ge_u32 s2, 256")
    A.i(f"s_cbranch_scc1 {name}_done")
    A.i(f"s_load_dwordx2 s[4:5], s[0:1], {KA['ws']}")
    A.i("v_lshrrev_b32 v1, 6, v0")
    A.i("v_and_b32 v2, 63, v0")
    A.i("v_readfirstlane_b32 s20, v1")
    A.i("s_waitcnt lgkmcnt(0)")
    srd(A, 8, 4, 128*MB, 64*MB)
    if rowseg == 0:
        A.i("v_lshlrev_b32 v4, 4, v2")
    else:
        lpr = rowseg // 16
        A.i(f"v_and_b32 v5, {lpr-1}, v2")
        A.i(f"v_lshrrev_b32 v6, {lpr.bit_length()-1}, v2")
        A.i("v_lshlrev_b32 v5, 4, v5")
        A.i("v_lshl_add_u32 v4, v6, 11, v5")
    A.i("s_and_b32 s21, s2, 7")
    A.i(f"s_mul_i32 s21, s21, {foot}")
    A.i("s_lshr_b32 s22, s2, 3")
    if share:
        A.i("s_and_b32 s22, s22, 3")
    A.i(f"s_mul_i32 s22, s22, {waves}")
    A.i("s_add_u32 s22, s22, s20")
    A.i(f"s_mul_i32 s22, s22, {1024 if rowseg==0 else rowseg}")
    step = (4 if share else 32) * waves * 1024
    A.i("s_lshl_b32 s33, s20, 13")
    A.i("s_barrier")
    ts_begin(A)
    A.i(f"s_mov_b32 s23, {iters//depth}")
    A.label(f"{name}_loop")
    for d in range(depth):
        A.i(f"s_add_u32 m0, s33, {(d%8)*1024}")
        A.i("s_add_u32 s25, s21, s22")
        if dma:
            A.i(f"buffer_load_dwordx4 v4, s[8:11], s25 offen {flags} lds")
        else:
            A.i(f"buffer_load_dwordx4 {v(32+4*d,4)}, v4, s[8:11], s25 offen {flags}")
        A.i(f"s_add_u32 s22, s22, {step}")
        A.i(f"s_and_b32 s22, s22, {foot-1}")
        A.i(f"s_waitcnt vmcnt({depth-1})")
    A.i("s_sub_u32 s23, s23, 1")
    A.i("s_cmp_lg_u32 s23, 0")
    A.i(f"s_cbranch_scc1 {name}_loop")
    ts_end(A, name)
    A.label(f"{name}_done")
    A.i("s_endpgm")
    kernel_desc(A, name, 128, 64)
    return (256, 64*waves, 8192*waves)
```

```python
from asmlib import *
from bw import ts_begin, ts_end, ts_mark

def stamp(A, idx, tmp=90):
    pass

LOG2E = 0x3fb8aa3b

def gen_g1(A, name="g1_kernel", mf=True, rd=True, ld=True, ntw=True, ntx=False, epi=True, ts=False, nslot=3, ldx=True, ldw=True, fl='', stf=''):
    SLOT = 45056
    NL = (4 if ldx else 0) + (7 if ldw else 0)
    XB, WB = 0, 16384
    kernel_head(A, name)
    A.i("s_cmp_ge_u32 s2, 256")
    A.i(f"s_cbranch_scc1 {name}_done")
    A.i(f"s_load_dwordx2 s[4:5], s[0:1], {KA['ws']}")
    A.i(f"s_load_dwordx2 s[6:7], s[0:1], {KA['w1']}")
    if ts:
        ts_begin(A)
    A.i("v_lshrrev_b32 v1, 6, v0")
    A.i("v_and_b32 v2, 63, v0               ; lane")
    A.i("v_readfirstlane_b32 s20, v1")
    A.i("s_and_b32 s21, s2, 1")
    A.i("s_lshl_b32 s21, s21, 3")
    A.i("s_bfe_u32 s27, s2, 0x30003         ; (id>>3)&7")
    A.i("s_add_u32 s21, s21, s27            ; sblk")
    A.i("s_bfe_u32 s22, s2, 0x20001         ; (id>>1)&3")
    A.i("s_lshl_b32 s22, s22, 2")
    A.i("s_lshr_b32 s27, s2, 6")
    A.i("s_add_u32 s22, s22, s27            ; fblk")
    A.i("s_waitcnt lgkmcnt(0)")
    srd(A, 8, 4, 4*MB, WS['h2'])
    srd(A, 12, 6, 1024*3584*2)
    srd(A, 16, 4, 2048*3584*2, WS['act'])
    A.i("s_cmp_ge_u32 s20, 4")
    A.i(f"s_cbranch_scc1 {name}_loader")

    ACC = 128
    FS = [16, 60]
    vXb0, vXb1, vWb0, vWb1 = 4, 5, 6, 7
    vX0, vX1, vW0, vW1 = 8, 9, 10, 11
    A.i("s_and_b32 s28, s20, 1              ; ws")
    A.i("s_lshr_b32 s29, s20, 1             ; wf")
    A.i("v_and_b32 v3, 15, v2               ; n")
    A.i("v_lshrrev_b32 v12, 4, v2           ; g")
    A.i("v_and_b32 v13, 7, v3")
    A.i("v_xor_b32 v13, v13, v12            ; g ^ (n&7)")
    A.i("v_lshlrev_b32 v13, 4, v13")
    A.i("s_lshl_b32 s27, s28, 13            ; ws*64*128")
    A.i(f"v_lshl_add_u32 {v(vXb0)}, v3, 7, v13")
    A.i(f"v_add_u32 {v(vXb0)}, s27, {v(vXb0)}")
    A.i(f"v_xor_b32 {v(vXb1)}, 64, {v(vXb0)}")
    A.i("v_lshrrev_b32 v13, 2, v3           ; r")
    A.i("v_lshl_add_u32 v13, v12, 3, v13    ; 8g+r")
    A.i("v_mul_u32_u24 v13, 448, v13")
    A.i("v_and_b32 v14, 3, v2               ; c")
    A.i("v_lshl_add_u32 v13, v14, 3, v13    ; + c*8")
    A.i("s_mul_i32 s27, s29, 224")
    A.i("v_add_u32 v13, s27, v13")
    A.i("v_and_b32 v14, 1, v12")
    A.i("v_lshlrev_b32 v14, 5, v14          ; (g&1)*32")
    A.i(f"v_add_u32 {v(vWb0)}, v13, v14")
    A.i(f"v_sub_u32 {v(vWb1)}, v13, v14")
    A.i("s_cmp_eq_u32 s29, 0")
    A.i(f"s_cbranch_scc1 {name}_noswap")
    A.i(f"v_swap_b32 {v(vWb0)}, {v(vWb1)}")
    A.label(f"{name}_noswap")
    for r in range(112):
        A.i(f"v_mov_b32 {v(ACC+r)}, 0")

    def reads(fs, kk):
        out = []
        if not rd:
            return out
        X, W = FS[fs], FS[fs] + 16
        vx = vX0 if kk == 0 else vX1
        def wr(t):
            for hb in range(2):
                out.append(f"ds_read_b64_tr_b16 {v(W+4*t+2*hb,2)}, {v(vW0 if t%2==0 else vW1)} offset:{WB + (32*kk+4*hb)*448 + 32*t}")
        wr(0)
        for st in range(4):
            out.append(f"ds_read_b128 {v(X+4*st,4)}, {v(vx)} offset:{XB + st*2048}")
        for t in range(1, 7):
            wr(t)
        return out

    def phase(fs, side):
        X, W = FS[fs], FS[fs] + 16
        side = list(side)
        n = 0
        for t in range(7):
            for st in range(4):
                if mf:
                    ac = ACC + (t*4+st)*4
                    A.i(f"v_mfma_f32_16x16x32_bf16 {v(ac,4)}, {v(W+4*t,4)}, {v(X+4*st,4)}, {v(ac,4)}")
                if side:
                    A.i(side.pop(0))
                n += 1
        for x in side:
            A.i(x)

    A.i("s_mov_b32 s26, 0")
    A.i(f"v_mov_b32 {v(vX0)}, {v(vXb0)}")
    A.i(f"v_mov_b32 {v(vX1)}, {v(vXb1)}")
    A.i(f"v_mov_b32 {v(vW0)}, {v(vWb0)}")
    A.i(f"v_mov_b32 {v(vW1)}, {v(vWb1)}")
    A.i("s_mov_b32 s23, 16")
    if ts: ts_mark(A, 0)
    A.i("s_barrier                          ; B0")
    if ts: ts_mark(A, 1)
    for x in reads(0, 0):
        A.i(x)
    A(".p2align 6")
    A.label(f"{name}_cloop")
    A.i("s_waitcnt lgkmcnt(0)")
    nxt = [f"s_add_u32 s26, s26, {SLOT}", f"s_cmp_eq_u32 s26, {SLOT*nslot}", "s_cselect_b32 s26, 0, s26",
           f"v_add_u32 {v(vX0)}, s26, {v(vXb0)}"]
    phase(0, reads(1, 1) + nxt + [f"v_add_u32 {v(vW0)}, s26, {v(vWb0)}", f"v_add_u32 {v(vW1)}, s26, {v(vWb1)}",
                                  f"v_add_u32 {v(vX1)}, s26, {v(vXb1)}"])
    A.i("s_waitcnt lgkmcnt(0)")
    A.i("s_barrier")
    phase(1, reads(0, 0) + ["s_sub_u32 s23, s23, 1", "s_cmp_lg_u32 s23, 0"])
    A.i(f"s_cbranch_scc1 {name}_cloop")
    A.i("s_waitcnt lgkmcnt(0)")

    if ts: ts_mark(A, 2)
    if epi:
        A.i("s_lshl_b32 s27, s21, 3")
        A.i("s_lshl_b32 s30, s28, 2")
        A.i("s_add_u32 s27, s27, s30")
        A.i("s_mul_i32 s27, s27, 112")
        A.i("s_mul_i32 s30, s22, 7")
        A.i("s_add_u32 s27, s27, s30")
        A.i("s_lshl_b32 s27, s27, 10")
        A.i("v_and_b32 v13, 1, v12")
        A.i("v_lshrrev_b32 v14, 1, v12")
        A.i("v_lshl_or_b32 v13, v13, 1, v14     ; pi(g)")
        A.i("v_lshlrev_b32 v13, 8, v13")
        A.i("v_lshl_add_u32 v13, v3, 4, v13")
        A.i("v_lshlrev_b32 v14, 8, v14")
        A.i("v_lshl_add_u32 v14, v3, 4, v14")
        A.i("v_and_b32 v15, 1, v12")
        A.i("v_lshl_add_u32 v14, v15, 3, v14")
        A.i(f"s_mov_b32 s31, 0x{LOG2E ^ 0x80000000:x}")
        A.i("s_mov_b32 s32, s31")
        A.i("s_nop 7")
        def silu4(dst, ac, tmp):
            A.i(f"v_pk_mul_f32 {v(tmp,2)}, {v(ac,2)}, s[32:33] op_sel_hi:[1,0]")
            A.i(f"v_pk_mul_f32 {v(tmp+2,2)}, {v(ac+2,2)}, s[32:33] op_sel_hi:[1,0]")
            for r in range(4): A.i(f"v_exp_f32 {v(tmp+r)}, {v(tmp+r)}")
            A.i(f"v_pk_add_f32 {v(tmp,2)}, {v(tmp,2)}, 1.0 op_sel_hi:[1,0]")
            A.i(f"v_pk_add_f32 {v(tmp+2,2)}, {v(tmp+2,2)}, 1.0 op_sel_hi:[1,0]")
            for r in range(4): A.i(f"v_rcp_f32 {v(tmp+r)}, {v(tmp+r)}")
            A.i("s_nop 0")
            A.i(f"v_pk_mul_f32 {v(tmp,2)}, {v(tmp,2)}, {v(ac,2)}")
            A.i(f"v_pk_mul_f32 {v(tmp+2,2)}, {v(tmp+2,2)}, {v(ac+2,2)}")
            A.i(f"v_cvt_pk_bf16_f32 {v(dst)}, {v(tmp)}, {v(tmp+1)}")
            A.i(f"v_cvt_pk_bf16_f32 {v(dst+1)}, {v(tmp+2)}, {v(tmp+3)}")
        def body(wf):
            pairs = [(0,0),(2,1),(4,2)] if wf == 0 else [(1,4),(3,5),(5,6)]
            single = 6 if wf == 0 else 0
            cnt = 0
            for st in range(4):
                A.i(f"s_add_u32 s30, s27, {st*112*1024}")
                for (t, blk) in pairs:
                    d = 16 + (cnt % 4) * 4
                    cnt += 1
                    silu4(d, ACC + (t*4+st)*4, 40)
                    silu4(d+2, ACC + ((t+1)*4+st)*4, 44)
                    A.i("s_nop 1")
                    A.i(f"v_permlane16_swap_b32 {v(d)}, {v(d+2)}")
                    A.i(f"v_permlane16_swap_b32 {v(d+1)}, {v(d+3)}")
                    A.i(f"buffer_store_dwordx4 {v(d,4)}, v13, s[16:19], s30 offen offset:{blk*1024} {stf}" if blk < 4 else
                        f"buffer_store_dwordx4 {v(d,4)}, v15, s[16:19], s30 offen offset:{(blk-4)*1024} {stf}")
                d = 32 + (st % 2) * 2
                silu4(d, ACC + (single*4+st)*4, 40)
                A.i(f"buffer_store_dwordx2 {v(d,2)}, v14, s[16:19], s30 offen offset:{3*1024 + wf*512} {stf}")
        A.i("v_add_u32 v15, 4096, v13")
        A.i("s_cmp_eq_u32 s29, 0")
        A.i(f"s_cbranch_scc0 {name}_epi1")
        body(0)
        A.i(f"s_branch {name}_fin")
        A.label(f"{name}_epi1")
        body(1)
    A.label(f"{name}_fin")
    if ts: ts_mark(A, 3)
    if ts:
        ts_end(A, name)
    A.i("s_endpgm")

    A.label(f"{name}_loader")
    A.i("s_sub_u32 s20, s20, 4              ; lw")
    A.i("v_lshrrev_b32 v3, 3, v2")
    A.i("v_and_b32 v4, 7, v2")
    A.i("v_xor_b32 v4, v4, v3")
    A.i("v_lshlrev_b32 v4, 4, v4")
    A.i("v_lshl_add_u32 v4, v3, 11, v4      ; vXoff")
    A.i("s_mul_i32 s27, s20, 448            ; lw*7*64")
    A.i("v_add_u32 v5, s27, v2              ; p for q=0")
    A.i("s_movk_i32 s30, 2341")
    A.i("s_movk_i32 s31, 7168")
    for q in range(7):
        A.i(f"v_add_u32 v6, {64*q}, v5")
        A.i("v_mul_lo_u32 v7, v6, s30")
        A.i("v_lshrrev_b32 v7, 16, v7          ; row")
        A.i("v_mul_u32_u24 v15, 28, v7")
        A.i("v_sub_u32 v6, v6, v15             ; chunk")
        A.i("v_bfe_u32 v15, v7, 3, 1")
        A.i("v_lshlrev_b32 v15, 1, v15")
        A.i("v_xor_b32 v6, v6, v15")
        A.i("v_mul_lo_u32 v7, v7, s31")
        A.i(f"v_lshl_add_u32 {v(8+q)}, v6, 4, v7")
    A.i("s_lshl_b32 s24, s21, 18            ; sblk*128*2048")
    A.i("s_lshl_b32 s27, s20, 16            ; lw*4*8*2048")
    A.i("s_add_u32 s24, s24, s27")
    A.i("s_mul_i32 s25, s22, 448")
    A.i("s_lshl_b32 s33, s20, 12")
    A.i("s_mul_i32 s34, s20, 7168")
    A.i(f"s_add_u32 s34, s34, {WB}")
    A.i("s_mov_b32 s26, 0")
    def issue():
        if ld:
            A.i("s_add_u32 s35, s26, s33")
            A.i("s_add_u32 s36, s26, s34")
            for q in range(7):
                A.i(f"s_add_u32 m0, s36, {q*1024}")
                if q < 4:
                    A.i(f"s_add_u32 s37, s24, {q*8*2048}")
                else:
                    A.i("s_nop 0")
                if ldw: A.i(f"buffer_load_dwordx4 {v(8+q)}, s[12:15], s25 offen{' nt' if ntw else ''} {fl} lds")
                if q < 4 and ldx:
                    A.i(f"s_add_u32 m0, s35, {q*1024}")
                    A.i("s_nop 0")
                    A.i(f"buffer_load_dwordx4 v4, s[8:11], s37 offen{' nt' if ntx else ''} lds")
        A.i("s_add_u32 s24, s24, 128")
        A.i(f"s_add_u32 s25, s25, {64*7168}")
        A.i(f"s_add_u32 s26, s26, {SLOT}")
        A.i(f"s_cmp_eq_u32 s26, {SLOT*nslot}")
        A.i("s_cselect_b32 s26, 0, s26")
    for _ in range(nslot):
        issue()
    A.i(f"s_waitcnt vmcnt({NL*(nslot-1)})")
    A.i("s_barrier                          ; B0")
    A.i(f"s_mov_b32 s23, {16-nslot}")
    A.label(f"{name}_lloop")
    A.i(f"s_waitcnt vmcnt({NL*(nslot-2)})")
    A.i("s_barrier")
    issue()
    A.i("s_sub_u32 s23, s23, 1")
    A.i("s_cmp_lg_u32 s23, 0")
    A.i(f"s_cbranch_scc1 {name}_lloop")
    for j in range(16-nslot, 16):
        rem = max(0, 15 - (j+1))
        A.i(f"s_waitcnt vmcnt({NL*rem})")
        A.i("s_barrier")
    A.label(f"{name}_done")
    A.i("s_endpgm")
    kernel_desc(A, name, 240, 64, 240)
    return (256, 512, SLOT*nslot)
```

```python
from asmlib import *
from bw import ts_begin, ts_end

def gen_g2b(A, name="g2_kernel", mf=True, rd=True, ld=True, few="", fex="", fnw="", fnx="", ts=False, NN=4, NE=16, stf="", early=True):
    NST = 56
    ES = 4096
    EB = 0
    NB = NE * ES
    NS = 24576
    assert NE & (NE-1) == 0 and 4*(NE-1) <= 63
    kernel_head(A, name)
    A.i("s_cmp_ge_u32 s2, 256")
    A.i(f"s_cbranch_scc1 {name}_done")
    A.i(f"s_load_dwordx2 s[4:5], s[0:1], {KA['ws']}")
    A.i(f"s_load_dwordx2 s[6:7], s[0:1], {KA['w2']}")
    A.i(f"s_load_dwordx2 s[38:39], s[0:1], {KA['out']}")
    if ts: ts_begin(A)
    A.i("v_lshrrev_b32 v1, 6, v0")
    A.i("v_and_b32 v2, 63, v0               ; lane")
    A.i("v_readfirstlane_b32 s20, v1")
    A.i("s_and_b32 s21, s2, 3")
    A.i("s_lshl_b32 s21, s21, 2")
    A.i("s_bfe_u32 s53, s2, 0x20003         ; v = (id>>3)&3")
    A.i("s_add_u32 s21, s21, s53            ; sblk")
    A.i("s_bfe_u32 s22, s2, 0x10002")
    A.i("s_lshl_b32 s22, s22, 3")
    A.i("s_lshr_b32 s52, s2, 5              ; u = id>>5")
    A.i("s_add_u32 s22, s22, s52            ; dblk")
    A.i("s_cmp_ge_u32 s20, 4")
    A.i(f"s_cbranch_scc1 {name}_loader")

    ACC = 128
    FS = [16, 48]
    vXb, vWb, vWf = 116, 120, 121
    vX, vW = 4, 8
    X1, GB = 96, 112
    A.i("s_and_b32 s28, s20, 1              ; ws")
    A.i("s_lshr_b32 s29, s20, 1             ; wk")
    A.i("v_and_b32 v3, 15, v2               ; n")
    A.i("v_lshrrev_b32 v14, 4, v2           ; g")
    A.i("v_and_b32 v15, 1, v14")
    A.i("v_lshrrev_b32 v80, 1, v14")
    A.i("v_lshl_or_b32 v15, v15, 1, v80     ; pi(g)")
    A.i("v_lshlrev_b32 v15, 4, v15")
    A.i("v_lshl_add_u32 v81, v3, 11, v15")
    A.i("s_lshl_b32 s30, s21, 1")
    A.i("s_add_u32 s30, s30, s28")
    A.i("s_lshl_b32 s30, s30, 17")
    A.i("s_lshl_b32 s31, s22, 1")
    A.i("s_add_u32 s31, s31, s29")
    A.i("s_lshl_b32 s31, s31, 6")
    A.i("s_add_u32 s30, s30, s31")
    A.i(f"s_add_u32 s31, s31, {5*2048}")
    A.i("s_waitcnt lgkmcnt(0)")
    srd(A, 8, 4, 4*MB, WS['x1'])
    srd(A, 12, 4, 12288, WS['mod'])
    srd(A, 16, 38, 4*MB)
    for st in range(4):
        A.i(f"s_add_u32 s{32+st}, s30, {st*16*2048}")
        A.i(f"buffer_load_dwordx4 {v(X1+4*st,4)}, v81, s[8:11], s{32+st} offen")
    A.i(f"buffer_load_dwordx4 {v(GB,4)}, v15, s[12:15], s31 offen")
    A.i("s_lshl_b32 s27, s29, 10            ; wk*1024")
    A.i("v_lshlrev_b32 v82, 4, v2")
    A.i("v_add_u32 v82, s27, v82")
    for st in range(4):
        A.i("s_lshl_b32 s36, s28, 2")
        A.i(f"s_add_u32 s36, s36, {st}          ; block b")
        A.i("s_lshl_b32 s37, s36, 11")
        A.i(f"s_add_u32 s37, s37, {NB}")
        A.i("s_cmp_eq_u32 s36, s52")
        A.i(f"s_cselect_b32 s{56+st}, -1, 0")
        A.i(f"s_cselect_b32 s37, {EB}, s37")
        A.i(f"v_add_u32 {v(vXb+st)}, s37, v82")
    A.i("v_lshrrev_b32 v80, 2, v3           ; r")
    A.i("v_lshl_add_u32 v82, v14, 3, v80    ; 8g + r")
    A.i("v_lshrrev_b32 v80, 1, v80")
    A.i("v_and_b32 v83, 1, v14")
    A.i("v_lshl_or_b32 v80, v83, 1, v80     ; sigma")
    A.i("v_lshlrev_b32 v80, 5, v80")
    A.i("v_and_b32 v83, 3, v2")
    A.i("v_lshl_add_u32 v80, v83, 3, v80    ; sigma*32 + c*8")
    A.i("v_and_b32 v83, 15, v82")
    A.i("v_lshl_add_u32 v83, v83, 7, v80")
    A.i(f"v_add_u32 v83, {EB+2048}, v83")
    A.i("v_lshl_add_u32 v82, v82, 7, v80")
    A.i("s_lshl_b32 s27, s29, 12")
    A.i(f"s_add_u32 s27, s27, {NB+16384}")
    A.i("v_add_u32 v82, s27, v82")
    A.i("v_lshrrev_b32 v80, 1, v14")
    A.i("s_lshl_b32 s27, s29, 1")
    A.i("v_add_u32 v80, s27, v80            ; quarter")
    A.i("v_cmp_eq_u32 vcc, s53, v80")
    A.i("s_nop 1")
    A.i(f"v_cndmask_b32 {v(vWb)}, v82, v83, vcc")
    A.i(f"v_cndmask_b32 {v(vWf)}, 0, 1, vcc")
    for r in range(64):
        A.i(f"v_mov_b32 {v(ACC+r)}, 0")

    def addr():
        out = [f"s_add_u32 s24, s24, {ES}", f"s_and_b32 s24, s24, {NE*ES-1}",
               f"s_add_u32 s26, s26, {NS}", f"s_cmp_eq_u32 s26, {NS*NN}", "s_cselect_b32 s26, 0, s26",
               "s_sub_u32 s25, s24, s26",
               f"v_mul_i32_i24 v12, s25, {v(vWf)}",
               f"v_add3_u32 {v(vW)}, v12, s26, {v(vWb)}"]
        for t in range(1, 4):
            out.append(f"v_xor_b32 {v(vW+t)}, {32*t}, {v(vW)}")
        for st in range(4):
            out += [f"s_and_b32 s27, s25, s{56+st}", "s_add_u32 s27, s27, s26", f"v_add_u32 {v(vX+st)}, s27, {v(vXb+st)}"]
        return out
    def reads(fs):
        out = []
        if not rd: return out
        X, W = FS[fs], FS[fs] + 16
        def wr(t):
            for hb in range(2):
                out.append(f"ds_read_b64_tr_b16 {v(W+4*t+2*hb,2)}, {v(vW+t)} offset:{hb*512}")
        wr(0)
        for st in range(4):
            out.append(f"ds_read_b128 {v(X+4*st,4)}, {v(vX+st)}")
        for t in range(1, 4): wr(t)
        return out
    def phase(fs, side, per):
        X, W = FS[fs], FS[fs] + 16
        side = list(side)
        for t in range(4):
            for st in range(4):
                if mf:
                    ac = ACC + (t*4+st)*4
                    A.i(f"v_mfma_f32_16x16x32_bf16 {v(ac,4)}, {v(W+4*t,4)}, {v(X+4*st,4)}, {v(ac,4)}")
                for _ in range(per):
                    if side: A.i(side.pop(0))
        for x in side: A.i(x)
    A.i(f"s_mov_b32 s24, {(NE-1)*ES}")
    A.i(f"s_mov_b32 s26, {NS*(NN-1)}")
    for x in addr(): A.i(x)
    A.i(f"s_mov_b32 s23, {NST//2}")
    A.i("s_barrier")
    for x in reads(0): A.i(x)
    for x in addr(): A.i(x)
    A(".p2align 6")
    A.label(f"{name}_cloop")
    for h in range(2):
        A.i("s_waitcnt lgkmcnt(0)")
        A.i("s_barrier")
        tail = ["s_sub_u32 s23, s23, 1", "s_cmp_lg_u32 s23, 0"] if h == 1 else []
        phase(h, reads(1-h) + addr() + tail, 2)
    A.i(f"s_cbranch_scc1 {name}_cloop")
    A.i("s_waitcnt lgkmcnt(0)")
    A.i("s_lshl_b32 s27, s20, 13")
    A.i("s_xor_b32 s36, s20, 2")
    A.i("s_lshl_b32 s36, s36, 13")
    A.i("v_lshlrev_b32 v82, 4, v2")
    A.i("v_add_u32 v83, s36, v82")
    A.i("v_add_u32 v82, s27, v82")
    A.i("s_barrier")
    A.i("s_cmp_eq_u32 s29, 0")
    A.i(f"s_cbranch_scc0 {name}_e1")
    def fin(wk):
        send = ACC + (2*(1-wk))*16
        keep = ACC + (2*wk)*16
        for q in range(8):
            A.i(f"ds_write_b128 v82, {v(send+4*q,4)} offset:{1024*q}")
        A.i("s_mov_b32 s27, 0xffff0000")
        A.i("s_waitcnt vmcnt(0)")
        for q in range(4):
            A.i(f"v_lshlrev_b32 {v(84+2*q)}, 16, {v(GB+q)}")
            A.i(f"v_and_b32 {v(85+2*q)}, s27, {v(GB+q)}")
        A.i("s_waitcnt lgkmcnt(0)")
        A.i("s_barrier")
        for q in range(8):
            A.i(f"ds_read_b128 {v(16+4*q,4)}, v83 offset:{1024*q}")
        for st in range(4):
            p, q = keep + st*4, keep + 16 + st*4
            A.i(f"s_waitcnt lgkmcnt({3-st})")
            for h in range(2):
                A.i(f"v_pk_add_f32 {v(p+2*h,2)}, {v(p+2*h,2)}, {v(16+4*st+2*h,2)}")
                A.i(f"v_pk_add_f32 {v(q+2*h,2)}, {v(q+2*h,2)}, {v(32+4*st+2*h,2)}")
            A.i("s_nop 1")
            for r in range(4):
                A.i(f"v_permlane16_swap_b32 {v(p+r)}, {v(q+r)}")
            for h in range(4):
                src = (p if h < 2 else q) + 2*(h % 2)
                A.i(f"v_lshlrev_b32 v92, 16, {v(X1+4*st+h)}")
                A.i(f"v_and_b32 v93, s27, {v(X1+4*st+h)}")
                A.i(f"v_pk_fma_f32 v[92:93], {v(src,2)}, {v(84+2*h,2)}, v[92:93]")
                A.i(f"v_cvt_pk_bf16_f32 {v(X1+4*st+h)}, v92, v93")
            A.i(f"buffer_store_dwordx4 {v(X1+4*st,4)}, v81, s[16:19], s{32+st} offen {stf}")
    fin(0)
    A.i(f"s_branch {name}_fin")
    A.label(f"{name}_e1")
    fin(1)
    A.label(f"{name}_fin")
    if ts: ts_end(A, name)
    A.i("s_endpgm")

    A.label(f"{name}_loader")
    A.i("v_lshlrev_b32 v4, 4, v2")
    A.i("v_lshrrev_b32 v3, 3, v2")
    A.i("v_and_b32 v5, 2, v3")
    A.i("v_and_b32 v6, 7, v2")
    A.i("v_xor_b32 v5, v5, v6")
    A.i("v_lshlrev_b32 v5, 4, v5")
    A.i("v_lshl_add_u32 v5, v3, 11, v5")
    A.i("v_xor_b32 v6, 64, v5")
    A.i(f"s_mul_i32 s24, s21, {8*112*1024}")
    A.i("s_lshl_b32 s25, s22, 7")
    A.i("s_lshl_b32 s54, s53, 1             ; 2v")
    A.i("s_mov_b32 s26, 0")
    A.i("s_waitcnt lgkmcnt(0)")
    srd(A, 8, 4, 2048*3584*2, WS['act'])
    srd(A, 12, 6, 3584*1024*2)
    A.i("s_cmp_eq_u32 s20, 7")
    A.i(f"s_cbranch_scc1 {name}_l3")
    A.i("s_cmp_eq_u32 s20, 6")
    A.i(f"s_cbranch_scc1 {name}_l2")
    A.i("s_cmp_eq_u32 s20, 5")
    A.i(f"s_cbranch_scc1 {name}_l1")

    def loader(tag, xs, wsl, depth, slot, base, fx, fw, is_early):
        r = 56
        units = []
        for j in wsl:
            if is_early:
                A.i(f"s_add_u32 s27, s54, {j}")
                A.i(f"s_mov_b32 s{r+1}, {base + 2048 + 1024*j}")
                par = j % 2
            else:
                A.i(f"s_cmp_ge_u32 {j}, s54")
                A.i(f"s_cselect_b32 s27, {j+2}, {j}")
                A.i(f"s_lshl_b32 s{r+1}, s27, 10")
                A.i(f"s_add_u32 s{r+1}, s{r+1}, {base + 16384}")
                par = j % 2
            A.i("s_lshl_b32 s27, s27, 14           ; 8 rows * 2048")
            A.i(f"s_add_u32 s{r}, s25, s27")
            units.append(('w', r, par)); r += 2
        for j in xs:
            if is_early:
                A.i("s_mov_b32 s27, s52")
                A.i(f"s_mov_b32 s{r+1}, {base}")
            else:
                A.i(f"s_cmp_ge_u32 {j}, s52")
                A.i(f"s_cselect_b32 s27, {j+1}, {j}")
                A.i(f"s_lshl_b32 s{r+1}, s27, 11")
                A.i(f"s_add_u32 s{r+1}, s{r+1}, {base}")
            A.i(f"s_mul_i32 s27, s27, {112*1024}")
            A.i(f"s_add_u32 s{r}, s24, s27")
            units.append(('x', r, 0)); r += 2
        NL = len(wsl) + 2*len(xs)
        def issue():
            for kind, rr, par in units:
                A.i(f"s_add_u32 m0, s26, s{rr+1}")
                if kind == 'w':
                    A.i("s_nop 0")
                    if ld: A.i(f"buffer_load_dwordx4 {v(5+par)}, s[12:15], s{rr} offen {fw} lds")
                    A.i(f"s_add_u32 s{rr}, s{rr}, {64*2048}")
                else:
                    A.i("s_nop 0")
                    if ld:
                        A.i(f"buffer_load_dwordx4 v4, s[8:11], s{rr} offen {fx} lds")
                        A.i(f"buffer_load_dwordx4 v4, s[8:11], s{rr} offen offset:1024 {fx} lds")
                    A.i(f"s_add_u32 s{rr}, s{rr}, 2048")
            A.i(f"s_add_u32 s26, s26, {slot}")
            A.i(f"s_cmp_eq_u32 s26, {slot*depth}")
            A.i("s_cselect_b32 s26, 0, s26")
        A.i(f"s_mov_b32 s23, {depth}")
        A.label(f"{name}_{tag}_pro")
        issue()
        A.i("s_sub_u32 s23, s23, 1")
        A.i("s_cmp_lg_u32 s23, 0")
        A.i(f"s_cbranch_scc1 {name}_{tag}_pro")
        A.i(f"s_waitcnt vmcnt({NL*(depth-1)})")
        A.i("s_barrier")
        A.i(f"s_mov_b32 s23, {NST-depth}")
        A.label(f"{name}_{tag}_loop")
        A.i(f"s_waitcnt vmcnt({NL*(depth-2)})")
        A.i("s_barrier")
        issue()
        A.i("s_sub_u32 s23, s23, 1")
        A.i("s_cmp_lg_u32 s23, 0")
        A.i(f"s_cbranch_scc1 {name}_{tag}_loop")
        for j in range(NST-depth, NST):
            rem = max(0, NST-1 - (j+1))
            A.i(f"s_waitcnt vmcnt({NL*rem})")
            A.i("s_barrier")
        A.i("s_endpgm")
    loader("l0", [0,1], [0,1,2], NN, NS, NB, fnx, fnw, False)
    A.label(f"{name}_l1")
    loader("l1", [2,3], [3,4,5], NN, NS, NB, fnx, fnw, False)
    A.label(f"{name}_l2")
    loader("l2", [4,5,6], [], NN, NS, NB, fnx, fnw, False)
    A.label(f"{name}_l3")
    loader("l3", [0], [0,1], NE, ES, EB, fex, few, True)
    A.label(f"{name}_done")
    A.i("s_endpgm")
    kernel_desc(A, name, 192, 80)
    return (256, 512, NB + NS*NN)
```

```python
from asmlib import *
from bw import ts_begin, ts_end, ts_mark

def gen_g2c(A, name="g2_kernel", mf=True, rd=True, ld=True, fw="", fx="", ts=False, NS=4, stf="", xch=True):
    NST = 28
    SLOT = 32768
    WB = 16384
    NL = 8
    kernel_head(A, name)
    A.i("s_cmp_ge_u32 s2, 256")
    A.i(f"s_cbranch_scc1 {name}_done")
    A.i(f"s_load_dwordx2 s[4:5], s[0:1], {KA['ws']}")
    A.i(f"s_load_dwordx2 s[6:7], s[0:1], {KA['w2']}")
    A.i(f"s_load_dwordx2 s[38:39], s[0:1], {KA['out']}")
    if ts: ts_begin(A)
    A.i("v_lshrrev_b32 v1, 6, v0")
    A.i("v_and_b32 v2, 63, v0               ; lane")
    A.i("v_readfirstlane_b32 s20, v1")
    A.i("s_and_b32 s52, s2, 1               ; khalf")
    A.i("s_bfe_u32 s21, s2, 0x20001")
    A.i("s_lshl_b32 s21, s21, 2")
    A.i("s_bfe_u32 s27, s2, 0x20003")
    A.i("s_add_u32 s21, s21, s27            ; sblk")
    A.i("s_lshr_b32 s22, s2, 5")
    A.i("s_cmp_ge_u32 s20, 4")
    A.i(f"s_cbranch_scc1 {name}_loader")

    ACC = 128
    FS = [16, 48]
    vXb, vWb = 12, 13
    vX, vW = 4, 8
    X1, GB = 96, 112
    A.i("s_and_b32 s28, s20, 1              ; ws")
    A.i("s_lshr_b32 s29, s20, 1             ; wd")
    A.i("v_and_b32 v3, 15, v2               ; n")
    A.i("v_lshrrev_b32 v14, 4, v2           ; g")
    A.i("v_and_b32 v15, 1, v14")
    A.i("v_lshrrev_b32 v80, 1, v14")
    A.i("v_lshl_or_b32 v15, v15, 1, v80     ; pi(g)")
    A.i("v_lshlrev_b32 v15, 4, v15")
    A.i("v_lshl_add_u32 v81, v3, 11, v15")
    A.i("s_lshl_b32 s30, s21, 1")
    A.i("s_add_u32 s30, s30, s28")
    A.i("s_lshl_b32 s30, s30, 17")
    A.i("s_lshl_b32 s31, s22, 1")
    A.i("s_add_u32 s31, s31, s29")
    A.i("s_lshl_b32 s31, s31, 1")
    A.i("s_add_u32 s31, s31, s52")
    A.i("s_lshl_b32 s31, s31, 6")
    A.i("s_add_u32 s30, s30, s31")
    A.i(f"s_add_u32 s31, s31, {5*2048}")
    A.i("s_waitcnt lgkmcnt(0)")
    srd(A, 8, 4, 4*MB, WS['x1'])
    srd(A, 12, 4, 12288, WS['mod'])
    srd(A, 16, 38, 4*MB)
    for st in range(4):
        A.i(f"s_add_u32 s{32+st}, s30, {st*16*2048}")
        A.i(f"buffer_load_dwordx4 {v(X1+4*st,4)}, v81, s[8:11], s{32+st} offen")
    A.i(f"buffer_load_dwordx4 {v(GB,4)}, v15, s[12:15], s31 offen")
    srd(A, 8, 4, 8*MB, WS['xch'])
    srd(A, 12, 4, 1024*128, WS['flag'])
    A.i("s_lshl_b32 s27, s28, 13")
    A.i(f"v_lshlrev_b32 {v(vXb)}, 4, v2")
    A.i(f"v_add_u32 {v(vXb)}, s27, {v(vXb)}")
    A.i("v_lshrrev_b32 v80, 2, v3           ; r")
    A.i("v_lshl_add_u32 v82, v14, 3, v80    ; 8g + r")
    A.i("v_and_b32 v83, 1, v14")
    A.i("v_xor_b32 v83, s29, v83")
    A.i("v_lshl_or_b32 v80, v83, 2, v80")
    A.i("v_lshlrev_b32 v80, 5, v80")
    A.i("v_and_b32 v83, 3, v2")
    A.i("v_lshl_add_u32 v80, v83, 3, v80")
    A.i(f"v_lshl_add_u32 {v(vWb)}, v82, 8, v80")
    for r in range(64):
        A.i(f"v_mov_b32 {v(ACC+r)}, 0")

    def addr():
        out = [f"s_add_u32 s26, s26, {SLOT}", f"s_and_b32 s26, s26, {SLOT*NS-1}" if NS == 4 else None,
               f"v_add_u32 {v(vW)}, s26, {v(vWb)}", f"v_add_u32 {v(vX)}, s26, {v(vXb)}"]
        if NS != 4:
            out[1:2] = [f"s_cmp_eq_u32 s26, {SLOT*NS}", "s_cselect_b32 s26, 0, s26"]
        for t in range(1, 4):
            out.append(f"v_xor_b32 {v(vW+t)}, {32*t}, {v(vW)}")
        return out
    def reads(fs, kk):
        out = []
        if not rd: return out
        X, W = FS[fs], FS[fs] + 16
        def wr(t):
            for hb in range(2):
                out.append(f"ds_read_b64_tr_b16 {v(W+4*t+2*hb,2)}, {v(vW+t)} offset:{WB + kk*8192 + hb*1024}")
        wr(0)
        for st in range(4):
            out.append(f"ds_read_b128 {v(X+4*st,4)}, {v(vX)} offset:{st*2048 + kk*1024}")
        for t in range(1, 4): wr(t)
        return out
    def phase(fs, side):
        X, W = FS[fs], FS[fs] + 16
        side = list(side)
        n = 0
        for t in range(4):
            for st in range(4):
                if mf:
                    ac = ACC + (t*4+st)*4
                    A.i(f"v_mfma_f32_16x16x32_bf16 {v(ac,4)}, {v(W+4*t,4)}, {v(X+4*st,4)}, {v(ac,4)}")
                n += 1
                for _ in range(1 if n <= 12 else 2):
                    if side: A.i(side.pop(0))
        for x in side: A.i(x)
    A.i(f"s_mov_b32 s26, {SLOT*(NS-1)}")
    for x in addr(): A.i(x)
    A.i(f"s_mov_b32 s23, {NST}")
    if ts: ts_mark(A, 0)
    A.i("s_barrier")
    if ts: ts_mark(A, 1)
    for x in reads(0, 0): A.i(x)
    A(".p2align 6")
    A.label(f"{name}_cloop")
    A.i("s_waitcnt lgkmcnt(0)")
    phase(0, reads(1, 1) + addr())
    A.i("s_waitcnt lgkmcnt(0)")
    A.i("s_barrier")
    phase(1, reads(0, 0) + ["s_sub_u32 s23, s23, 1", "s_cmp_lg_u32 s23, 0"])
    A.i(f"s_cbranch_scc1 {name}_cloop")
    if ts: ts_mark(A, 2)
    A.i("s_lshl_b32 s27, s2, 2")
    A.i("s_add_u32 s27, s27, s20")
    A.i("s_xor_b32 s36, s27, 4")
    A.i("s_lshl_b32 s53, s27, 13")
    A.i("s_lshl_b32 s54, s36, 13")
    A.i("s_add_u32 s55, s53, 4096")
    A.i("s_add_u32 s56, s54, 4096")
    A.i("s_lshl_b32 s57, s27, 7")
    A.i("s_lshl_b32 s58, s36, 7")
    A.i("v_lshlrev_b32 v82, 4, v2")
    A.i("v_mov_b32 v83, 0")
    A.i("v_mov_b32 v94, 1")
    A.i("s_mov_b32 s27, 0xffff0000")
    A.i("s_waitcnt vmcnt(0) lgkmcnt(0)")
    A.i("s_cmp_eq_u32 s52, 0")
    A.i(f"s_cbranch_scc0 {name}_e1")
    def fin(h):
        send = ACC + (2*(1-h))*16
        keep = ACC + (2*h)*16
        if xch:
            for q in range(8):
                A.i(f"buffer_store_dwordx4 {v(send+4*q,4)}, v82, s[8:11], {'s53' if q < 4 else 's55'} offen offset:{1024*(q%4)} sc0 sc1")
        for q in range(4):
            A.i(f"v_lshlrev_b32 {v(84+2*q)}, 16, {v(GB+q)}")
            A.i(f"v_and_b32 {v(85+2*q)}, s27, {v(GB+q)}")
        if xch:
            A.i("s_waitcnt vmcnt(0)")
            if ts: ts_mark(A, 3)
            A.i("buffer_store_dword v94, v83, s[12:15], s57 offen sc0 sc1")
            A.i("s_mov_b32 s59, 0x100000")
            A.label(f"{name}_poll{h}")
            A.i("buffer_load_dword v95, v83, s[12:15], s58 offen sc0 sc1")
            A.i("s_sub_u32 s59, s59, 1")
            A.i("s_waitcnt vmcnt(0)")
            A.i("v_readfirstlane_b32 s60, v95")
            A.i("s_cmp_eq_u32 s59, 0")
            A.i(f"s_cbranch_scc1 {name}_got{h}")
            A.i("s_cmp_eq_u32 s60, 1")
            A.i(f"s_cbranch_scc0 {name}_poll{h}")
            A.label(f"{name}_got{h}")
            if ts: ts_mark(A, 4)
            for q in (0,4,1,5,2,6,3,7):
                A.i(f"buffer_load_dwordx4 {v(16+4*q,4)}, v82, s[8:11], {'s54' if q < 4 else 's56'} offen offset:{1024*(q%4)} sc0 sc1")
        for st in range(4):
            p, q = keep + st*4, keep + 16 + st*4
            if xch:
                A.i(f"s_waitcnt vmcnt({6-2*st+st})")
                for hh in range(2):
                    A.i(f"v_pk_add_f32 {v(p+2*hh,2)}, {v(p+2*hh,2)}, {v(16+4*st+2*hh,2)}")
                    A.i(f"v_pk_add_f32 {v(q+2*hh,2)}, {v(q+2*hh,2)}, {v(32+4*st+2*hh,2)}")
            A.i("s_nop 1")
            for r in range(4):
                A.i(f"v_permlane16_swap_b32 {v(p+r)}, {v(q+r)}")
            for hh in range(4):
                src = (p if hh < 2 else q) + 2*(hh % 2)
                A.i(f"v_lshlrev_b32 v92, 16, {v(X1+4*st+hh)}")
                A.i(f"v_and_b32 v93, s27, {v(X1+4*st+hh)}")
                A.i(f"v_pk_fma_f32 v[92:93], {v(src,2)}, {v(84+2*hh,2)}, v[92:93]")
                A.i(f"v_cvt_pk_bf16_f32 {v(X1+4*st+hh)}, v92, v93")
            A.i(f"buffer_store_dwordx4 {v(X1+4*st,4)}, v81, s[16:19], s{32+st} offen {stf}")
    fin(0)
    A.i(f"s_branch {name}_fin")
    A.label(f"{name}_e1")
    fin(1)
    A.label(f"{name}_fin")
    if ts: ts_end(A, name)
    A.i("s_endpgm")

    A.label(f"{name}_loader")
    A.i("s_sub_u32 s20, s20, 4              ; lw")
    A.i("v_lshlrev_b32 v4, 4, v2")
    A.i("v_lshrrev_b32 v3, 4, v2")
    A.i("v_lshlrev_b32 v5, 1, v3")
    A.i("v_and_b32 v6, 15, v2")
    A.i("v_xor_b32 v5, v5, v6")
    A.i("v_lshlrev_b32 v5, 4, v5")
    A.i("v_lshl_add_u32 v5, v3, 11, v5")
    A.i("v_xor_b32 v6, 128, v5")
    A.i("s_lshl_b32 s24, s21, 3")
    A.i("s_lshl_b32 s27, s20, 1")
    A.i("s_add_u32 s24, s24, s27")
    A.i(f"s_mul_i32 s24, s24, {112*1024}")
    A.i(f"s_mul_i32 s27, s52, {56*1024}")
    A.i("s_add_u32 s24, s24, s27            ; X soffset")
    A.i("s_lshl_b32 s25, s22, 8")
    A.i("s_lshl_b32 s27, s20, 15")
    A.i("s_add_u32 s25, s25, s27")
    A.i(f"s_mul_i32 s27, s52, {1792*2048}")
    A.i("s_add_u32 s25, s25, s27            ; W soffset")
    A.i("s_lshl_b32 s33, s20, 12")
    A.i(f"s_add_u32 s34, s33, {WB}")
    A.i("s_mov_b32 s26, 0")
    A.i("s_waitcnt lgkmcnt(0)")
    srd(A, 8, 4, 2048*3584*2, WS['act'])
    srd(A, 12, 6, 3584*1024*2)
    def issue():
        if ld:
            A.i("s_add_u32 s36, s26, s34")
            for q in range(4):
                A.i(f"s_add_u32 m0, s36, {q*1024}")
                A.i(f"s_add_u32 s37, s25, {q*4*2048}")
                A.i(f"buffer_load_dwordx4 {v(5+(q//2))}, s[12:15], s37 offen {fw} lds")
            for b in range(2):
                if b == 0:
                    A.i("s_add_u32 m0, s26, s33")
                    A.i(f"s_add_u32 s37, s24, {112*1024}")
                else:
                    A.i("s_add_u32 m0, m0, 2048")
                    A.i("s_nop 0")
                for kb in range(2):
                    A.i(f"buffer_load_dwordx4 v4, s[8:11], {'s24' if b==0 else 's37'} offen offset:{kb*1024} {fx} lds")
        A.i("s_add_u32 s24, s24, 2048")
        A.i(f"s_add_u32 s25, s25, {64*2048}")
        A.i(f"s_add_u32 s26, s26, {SLOT}")
        A.i(f"s_cmp_eq_u32 s26, {SLOT*NS}")
        A.i("s_cselect_b32 s26, 0, s26")
    for _ in range(NS): issue()
    A.i(f"s_waitcnt vmcnt({NL*(NS-1)})")
    A.i("s_barrier")
    A.i(f"s_mov_b32 s23, {NST-NS}")
    A.label(f"{name}_lloop")
    A.i(f"s_waitcnt vmcnt({NL*(NS-2)})")
    A.i("s_barrier")
    issue()
    A.i("s_sub_u32 s23, s23, 1")
    A.i("s_cmp_lg_u32 s23, 0")
    A.i(f"s_cbranch_scc1 {name}_lloop")
    for j in range(NST-NS, NST):
        rem = max(0, NST-1 - (j+1))
        A.i(f"s_waitcnt vmcnt({NL*rem})")
        A.i("s_barrier")
    A.label(f"{name}_done")
    A.i("s_endpgm")
    kernel_desc(A, name, 192, 80)
    return (256, 512, SLOT*NS)
```

```python
from asmlib import *
from bw import ts_begin, ts_end, ts_mark

def gen_k0(A, name="k0_kernel", ts=False, nt="nt", stf=""):
    kernel_head(A, name)
    A.i("s_cmp_ge_u32 s2, 256")
    A.i(f"s_cbranch_scc1 {name}_done")
    A.i(f"s_load_dwordx4 s[4:7], s[0:1], {KA['k']}        ; k, v")
    A.i(f"s_load_dwordx2 s[8:9], s[0:1], {KA['shift']}")
    A.i(f"s_load_dwordx2 s[10:11], s[0:1], {KA['ws']}")
    if ts: ts_begin(A)
    A.i("s_and_b32 s21, s2, 7")
    A.i("s_lshl_b32 s21, s21, 1")
    A.i("s_bfe_u32 s22, s2, 0x10003")
    A.i("s_add_u32 s21, s21, s22           ; cb")
    A.i("s_lshr_b32 s22, s2, 4             ; rb")
    A.i("v_and_b32 v1, 15, v0              ; cc")
    A.i("v_lshrrev_b32 v2, 4, v0           ; rg")
    A.i("s_lshl_b32 s23, s22, 18")
    A.i("s_lshl_b32 s24, s21, 7")
    A.i("s_add_u32 s23, s23, s24")
    A.i(f"s_sub_u32 s23, s23, {3*2048}")
    A.i("v_lshlrev_b32 v3, 13, v2")
    A.i("v_lshl_add_u32 v3, v1, 3, v3")
    A.i("v_add_u32 v3, s23, v3")
    A.i("v_add_u32 v4, 4096, v3            ; row-1")
    A.i("v_add_u32 v5, 6144, v3            ; row")
    A.i("v_add_u32 v6, 10240, v3           ; row+2")
    A.i("s_lshl_b32 s24, s21, 9")
    A.i("v_lshlrev_b32 v7, 5, v1")
    A.i("s_waitcnt lgkmcnt(0)")
    srd(A, 12, 4, 4*MB)
    srd(A, 16, 6, 4*MB)
    K, V, W = 16, 32, 40
    addr = [(3,0),(3,2048),(4,0),(5,0),(5,2048),(6,0),(6,2048)]
    for j,(r,o) in enumerate(addr):
        A.i(f"buffer_load_dwordx2 {v(K+2*j,2)}, v{r}, s[12:15], 0 offen offset:{o} {nt}")
    for j in range(4):
        r,o = addr[3+j]
        A.i(f"buffer_load_dwordx2 {v(V+2*j,2)}, v{r}, s[16:19], 0 offen offset:{o} {nt}")
    srd(A, 28, 8, 8192)
    A.i(f"buffer_load_dwordx4 {v(W,4)}, v7, s[28:31], s24 offen")
    A.i(f"buffer_load_dwordx4 {v(W+4,4)}, v7, s[28:31], s24 offen offset:16")
    srd(A, 36, 10, 1024*128 , WS['flag'])
    srd(A, 52, 10, 96*128, WS['gcnt'])
    A.i("v_lshlrev_b32 v12, 7, v0")
    A.i("v_mov_b32 v13, 0")
    A.i("s_lshl_b32 s26, s2, 9")
    A.i("s_lshl_b32 s27, s2, 7")
    A.i("v_cmp_gt_u32 vcc, 4, v0")
    A.i("s_and_saveexec_b64 s[56:57], vcc")
    A.i(f"s_cbranch_execz {name}_nz")
    A.i("buffer_store_dword v13, v12, s[36:39], s26 offen")
    A.i("buffer_store_dword v13, v13, s[52:55], s27 offen")
    A.label(f"{name}_nz")
    A.i("s_mov_b64 exec, s[56:57]")
    srd(A, 32, 10, 4*MB, WS['kvT'])
    A.i("v_lshrrev_b32 v8, 1, v2           ; x")
    A.i("v_and_b32 v9, 7, v1")
    A.i("v_xor_b32 v8, v8, v9")
    A.i("v_lshlrev_b32 v8, 4, v8")
    A.i("v_lshl_add_u32 v8, v1, 10, v8")
    A.i("v_and_b32 v9, 1, v2")
    A.i("v_xor_b32 v9, 1, v9")
    A.i("v_lshl_add_u32 v8, v9, 3, v8")
    A.i("v_lshrrev_b32 v10, 6, v0")
    A.i("v_xor_b32 v10, v10, v1")
    A.i("v_lshlrev_b32 v10, 4, v10")
    A.i("v_lshl_add_u32 v10, v2, 8, v10")
    A.i("v_lshlrev_b32 v11, 4, v1")
    A.i("v_lshl_add_u32 v11, v2, 12, v11")
    A.i("s_lshl_b32 s25, s21, 18           ; cb*64*4096")
    A.i("s_lshl_b32 s26, s22, 8            ; rb*256")
    A.i("s_add_u32 s25, s25, s26")
    A.i("s_add_u32 s26, s25, 0x20000       ; +32 channels")
    A.i("s_mov_b32 s27, 0xffff0000")
    if ts: ts_mark(A, 0)
    A.i("s_waitcnt vmcnt(0)")
    if ts: ts_mark(A, 1)
    WU = 48
    for pr in range(2):
        for e in range(2):
            ch = 2*pr + e
            for tap in range(4):
                src = W + 2*ch + tap//2
                dst = WU + (pr*4+tap)*2 + e
                if tap % 2 == 0: A.i(f"v_lshlrev_b32 {v(dst)}, 16, {v(src)}")
                else:            A.i(f"v_and_b32 {v(dst)}, s27, {v(src)}")
    KU, VU, R = 64, 80, 88
    for pr in range(2):
        for j in range(7):
            A.i(f"v_lshlrev_b32 {v(KU+2*j)}, 16, {v(K+2*j+pr)}")
            A.i(f"v_and_b32 {v(KU+2*j+1)}, s27, {v(K+2*j+pr)}")
        for j in range(4):
            A.i(f"v_lshlrev_b32 {v(VU+2*j)}, 16, {v(V+2*j+pr)}")
            A.i(f"v_and_b32 {v(VU+2*j+1)}, s27, {v(V+2*j+pr)}")
        w = lambda tap: v(WU+(pr*4+tap)*2, 2)
        for r in range(4):
            A.i(f"v_pk_mul_f32 {v(R+2*r,2)}, {v(KU+2*r,2)}, {w(3)}")
        for tap in (2,1,0):
            for r in range(4):
                A.i(f"v_pk_fma_f32 {v(R+2*r,2)}, {v(KU+2*(r+3-tap),2)}, {w(tap)}, {v(R+2*r,2)}")
        for r in range(4):
            A.i(f"v_pk_mul_f32 {v(R+2*r,2)}, {v(R+2*r,2)}, {v(VU+2*r,2)}")
        for e in range(2):
            d = 96 + (pr*2+e)*2
            A.i(f"v_cvt_pk_bf16_f32 {v(d)}, {v(R+6+e)}, {v(R+4+e)}")
            A.i(f"v_cvt_pk_bf16_f32 {v(d+1)}, {v(R+2+e)}, {v(R+e)}")
            A.i(f"ds_write_b64 v8, {v(d,2)} offset:{(2*pr+e)*256}")
    A.i("s_waitcnt lgkmcnt(0)")
    if ts: ts_mark(A, 2)
    A.i("s_barrier")
    if ts: ts_mark(A, 3)
    A.i("ds_read_b128 v[16:19], v10")
    A.i("ds_read_b128 v[20:23], v10 offset:8192")
    A.i("s_waitcnt lgkmcnt(1)")
    A.i(f"buffer_store_dwordx4 v[16:19], v11, s[32:35], s25 offen {stf}")
    A.i("s_waitcnt lgkmcnt(0)")
    A.i(f"buffer_store_dwordx4 v[20:23], v11, s[32:35], s26 offen {stf}")
    if ts:
        A.i("v_lshrrev_b32 v1, 6, v0")
        A.i("s_nop 0")
        A.i("v_readfirstlane_b32 s20, v1")
        ts_end(A, name, 10)
    A.label(f"{name}_done")
    A.i("s_endpgm")
    kernel_desc(A, name, 104, 64)
    return (256, 512, 16384)
```

```python
from asmlib import *
from bw import ts_begin, ts_end, ts_mark
LOG2E = 0x3fb8aa3b

def gen_k1(A, name="k1_kernel", ts=False, nt="nt", stf="", gemv=True, pw1=False, pw2=False, opsel=False):
    WB = 24320
    HC = 4160
    XO = 4*HC
    kernel_head(A, name)
    A.i("s_cmp_ge_u32 s2, 256")
    A.i(f"s_cbranch_scc1 {name}_done")
    A.i(f"s_load_dwordx4 s[4:7], s[0:1], {KA['ssm']}")
    A.i(f"s_load_dwordx4 s[8:11], s[0:1], {KA['c']}       ; c, w_mod")
    A.i(f"s_load_dwordx2 s[12:13], s[0:1], {KA['ws']}")
    if pw1 or pw2:
        A.i(f"s_load_dwordx4 s[56:59], s[0:1], {KA['w1']}")
    if ts: ts_begin(A)
    A.i("v_lshrrev_b32 v1, 6, v0")
    A.i("v_and_b32 v2, 63, v0              ; lane")
    A.i("v_readfirstlane_b32 s20, v1       ; wave")
    A.i("s_and_b32 s21, s2, 7")
    A.i("s_lshl_b32 s21, s21, 5")
    A.i("s_lshr_b32 s22, s2, 3")
    A.i("s_add_u32 s21, s21, s22")
    A.i("v_lshlrev_b32 v3, 4, v2           ; lane*16")
    A.i("s_cmp_ge_u32 s20, 4")
    A.i(f"s_cbranch_scc1 {name}_gemv")
    A.i("s_lshl_b32 s22, s21, 2")
    A.i("s_add_u32 s22, s22, s20           ; channel d")
    A.i(f"s_mul_i32 s23, s20, {WB}")
    A.i("s_lshl_b32 s24, s22, 12           ; d*4096")
    A.i("s_lshr_b32 s25, s22, 1")
    A.i("s_lshl_b32 s25, s25, 2")
    A.i("s_waitcnt lgkmcnt(0)")
    srd(A, 16, 4, 4*MB)
    H, XR = 80, 16
    for u in range(4):
        A.i(f"buffer_load_dwordx4 {v(H+4*u,4)}, v3, s[16:19], s24 offen offset:{1024*u} {nt}")
    srd(A, 28, 12, 4*MB, WS['kvT'])
    for u in range(4):
        A.i(f"buffer_load_dwordx4 {v(XR+4*u,4)}, v3, s[28:31], s24 offen offset:{1024*u}")
    A.i("s_load_dword s36, s[6:7], s25                 ; D pair")
    A.i("v_mov_b32 v32, 0"); A.i("v_mov_b32 v33, 0"); A.i("v_mov_b32 v34, 0"); A.i("v_mov_b32 v35, 0")
    A.i("v_add_u32 v4, s23, v3")
    A.i(f"ds_write_b128 v4, v[32:35] offset:{XO}")
    A.i("v_min_u32 v5, 25, v2")
    A.i("v_lshlrev_b32 v5, 4, v5")
    A.i("v_add_u32 v5, s23, v5")
    A.i(f"ds_write_b128 v5, v[32:35] offset:{XO+1024}")
    A.i("v_and_b32 v6, 15, v2              ; r / i")
    A.i("v_lshrrev_b32 v7, 4, v2           ; g")
    A.i("v_and_b32 v8, 3, v6")
    A.i(f"v_mul_u32_u24 v8, {HC}, v8        ; (r&3)*HC")
    A.i("v_lshl_add_u32 v5, v7, 4, v8")
    A.i("v_add_u32 v5, s23, v5")
    A.i("ds_write_b128 v5, v[32:35]")
    A.i("v_lshrrev_b32 v5, 2, v2")
    A.i("v_mul_u32_u24 v5, 96, v5")
    A.i("v_and_b32 v9, 3, v2")
    A.i("v_lshl_add_u32 v5, v9, 4, v5")
    A.i("v_add_u32 v5, s23, v5")
    A.i("v_lshrrev_b32 v9, 2, v6")
    A.i("v_lshlrev_b32 v10, 1, v7")
    A.i("v_sub_u32 v9, v9, v10             ; (r>>2) - 2g")
    A.i("v_add_u32 v9, 7, v9               ; + 9 - 2")
    A.i("v_lshl_add_u32 v8, v9, 3, v8")
    A.i("v_add_u32 v8, s23, v8")
    A.i("v_mul_u32_u24 v9, 96, v6")
    A.i("v_lshl_add_u32 v9, v7, 4, v9")
    A.i(f"s_add_u32 s25, s23, {XO + 96*14}")
    A.i("v_add_u32 v9, s25, v9             ; vB - 96")
    ACC = 48
    FS = [80, 128]
    for r in range(32):
        A.i(f"v_mov_b32 {v(ACC+r)}, 0")
    DI = 36
    A.i("v_lshlrev_b32 v10, 3, v7")
    A.i("v_add_u32 v10, 7, v10")
    A.i("v_sub_u32 v10, v10, v6")
    A.i("v_and_b32 v11, 1, v10")
    A.i("v_lshlrev_b32 v11, 4, v11")
    A.i("v_ashrrev_i32 v10, 1, v10")
    A.i("s_and_b32 s25, s22, 1")
    A.i("s_lshl_b32 s25, s25, 4")
    A.i("s_waitcnt lgkmcnt(0)")
    A.i("s_lshr_b32 s36, s36, s25")
    A.i("s_and_b32 s36, s36, 0xffff        ; D bits")
    A.i("v_lshlrev_b32 v11, v11, s36")
    for rt in range(2):
        for q in range(4):
            A.i(f"v_cmp_eq_u32 s[{60+2*q}:{61+2*q}], {q + 8*rt}, v10")
        for q in range(4):
            A.i(f"v_cndmask_b32 {v(DI+4*rt+q)}, 0, v11, s[{60+2*q}:{61+2*q}]")
    if ts: ts_mark(A, 0)
    P, T = 96, 100
    for u in range(4):
        R = H + 4*u
        p = P + 2*(u % 2)
        t = T + 12*(u % 2)
        A.i(f"s_waitcnt vmcnt({7-u})")
        if u == 0:
            A.i(f"v_mov_b32 {v(p)}, 0"); A.i(f"v_mov_b32 {v(p+1)}, 0")
        else:
            A.i(f"v_mov_b32_dpp {v(p)}, {v(R-2)} wave_ror:1 row_mask:0xf bank_mask:0xf")
            A.i(f"v_mov_b32_dpp {v(p+1)}, {v(R-1)} wave_ror:1 row_mask:0xf bank_mask:0xf")
        A.i(f"ds_write_b128 v4, {v(R,4)} offset:{3*HC + 64 + 1024*u}")
        A.i(f"v_mov_b32_dpp {v(p)}, {v(R+2)} wave_shr:1 row_mask:0xf bank_mask:0xf")
        A.i(f"v_mov_b32_dpp {v(p+1)}, {v(R+3)} wave_shr:1 row_mask:0xf bank_mask:0xf")
        A.i(f"v_alignbit_b32 {v(t+5)}, {v(R+1)}, {v(R)}, 16")
        A.i(f"v_alignbit_b32 {v(t+6)}, {v(R+2)}, {v(R+1)}, 16")
        A.i(f"v_alignbit_b32 {v(t+7)}, {v(R+3)}, {v(R+2)}, 16")
        A.i(f"v_alignbit_b32 {v(t+4)}, {v(R)}, {v(p+1)}, 16")
        A.i(f"ds_write_b128 v4, {v(t+4,4)} offset:{2*HC + 64 + 1024*u}")
        A.i(f"v_mov_b32 {v(t)}, {v(p+1)}")
        for e in range(3): A.i(f"v_mov_b32 {v(t+1+e)}, {v(R+e)}")
        A.i(f"ds_write_b128 v4, {v(t,4)} offset:{1*HC + 64 + 1024*u}")
        A.i(f"v_alignbit_b32 {v(t+8)}, {v(p+1)}, {v(p)}, 16")
        for e in range(3): A.i(f"v_mov_b32 {v(t+9+e)}, {v(t+4+e)}")
        A.i(f"ds_write_b128 v4, {v(t+8,4)} offset:{64 + 1024*u}")
    if ts: ts_mark(A, 1)
    for u in range(4):
        A.i(f"s_waitcnt vmcnt({3-u})")
        A.i(f"ds_write_b128 v5, {v(XR+4*u,4)} offset:{XO + 96*15 + 96*16*u}")
    if pw1 or pw2:
        srd(A, 60, 56, 1024*7168)
        srd(A, 64, 58, 1024*7168)
        A.i("s_lshl_b32 s25, s2, 2")
        A.i("s_add_u32 s25, s25, s20")
        A.i(f"s_mul_i32 s25, s25, {56*128}")
        A.i("v_min_u32 v10, 55, v2")
        A.i("v_lshlrev_b32 v10, 7, v10")
        if pw1: A.i("buffer_load_dword v44, v10, s[60:63], s25 offen")
        if pw2: A.i("buffer_load_dword v45, v10, s[64:67], s25 offen")
    A.i("s_waitcnt lgkmcnt(0)")
    if ts: ts_mark(A, 2)

    def reads(fs, par):
        out = []
        F = FS[fs]
        def ar(j):
            for rt in range(2):
                for hb in range(2):
                    out.append(f"ds_read_b64 {v(F+(j*2+rt)*4+2*hb,2)}, v8 offset:{64*(par+16*j) + 32*rt + 8*hb}")
        ar(0)
        for d in range(4):
            out.append(f"ds_read_b128 {v(F+32+4*d,4)}, v9 offset:{96*(16*d + 1 - par)}")
        for j in range(1,4): ar(j)
        return out
    def body(fs, side):
        F = FS[fs]
        side = list(side)
        n = 0
        for j in range(4):
            if n == 0: A.i("s_waitcnt lgkmcnt(12)")
            else:      A.i("s_waitcnt lgkmcnt(15)")
            for d in range(4-j):
                for rt in range(2):
                    ac = ACC + ((j+d)*2+rt)*4
                    A.i(f"v_mfma_f32_16x16x32_bf16 {v(ac,4)}, {v(F+(j*2+rt)*4,4)}, {v(F+32+4*d,4)}, {v(ac,4)}")
                    if side: A.i(side.pop(0))
                    n += 1
        for x in side: A.i(x)
    for x in reads(0, 0): A.i(x)
    A.i("s_waitcnt lgkmcnt(12)")
    for d in range(4):
        for rt in range(2):
            ac = ACC + (d*2+rt)*4
            A.i(f"v_mfma_f32_16x16x32_bf16 {v(ac,4)}, {v(DI+4*rt,4)}, {v(FS[0]+32+4*d,4)}, {v(ac,4)}")
    A.i("s_mov_b32 s26, 8")
    A(".p2align 6")
    A.label(f"{name}_loop")
    body(0, reads(1, 1))
    A.i("v_add_u32 v8, 128, v8")
    A.i("v_subrev_u32 v9, 192, v9")
    body(1, reads(0, 0))
    A.i("s_sub_u32 s26, s26, 1")
    A.i("s_cmp_lg_u32 s26, 0")
    A.i(f"s_cbranch_scc1 {name}_loop")
    if ts: ts_mark(A, 3)
    A.i("v_mul_u32_u24 v10, 80, v6")
    A.i("v_lshl_add_u32 v10, v7, 3, v10")
    A.i("v_add_u32 v10, s23, v10")
    srd(A, 16, 12, 4*MB, WS['y4'])
    A.i("s_waitcnt lgkmcnt(0)")
    for G in range(4):
        for rt in range(2):
            ac = ACC + (G*2+rt)*4
            d = 16 + (G*2+rt)*2
            A.i(f"v_cvt_pk_bf16_f32 {v(d)}, {v(ac)}, {v(ac+1)}")
            A.i(f"v_cvt_pk_bf16_f32 {v(d+1)}, {v(ac+2)}, {v(ac+3)}")
            A.i(f"ds_write_b64 v10, {v(d,2)} offset:{80*16*G + 32*rt}")
    A.i("v_lshrrev_b32 v11, 4, v0")
    A.i("v_mul_u32_u24 v11, 80, v11")
    A.i("v_lshl_add_u32 v11, v6, 2, v11")
    A.i(f"v_add_u32 v13, {3*WB}, v11")
    A.i("v_lshlrev_b32 v12, 4, v0")
    A.i("s_lshl_b32 s25, s21, 14           ; cg*16384")
    A.i("s_mov_b32 s34, 0x05040100")
    A.i("s_mov_b32 s35, 0x07060302")
    A.i("s_waitcnt lgkmcnt(0)")
    if ts: ts_mark(A, 4)
    A.i("s_barrier")
    if ts: ts_mark(A, 5)
    for u in range(4):
        for ch in range(4):
            if ch < 3: A.i(f"ds_read_b32 {v(48+4*u+ch)}, v11 offset:{ch*WB + 80*16*u}")
            else:      A.i(f"ds_read_b32 {v(48+4*u+ch)}, v13 offset:{80*16*u}")
    for u in range(4):
        A.i(f"s_waitcnt lgkmcnt({12-4*u})")
        s0 = 48+4*u; d = 64+4*u
        A.i(f"v_perm_b32 {v(d)}, {v(s0+1)}, {v(s0)}, s34")
        A.i(f"v_perm_b32 {v(d+1)}, {v(s0+3)}, {v(s0+2)}, s34")
        A.i(f"v_perm_b32 {v(d+2)}, {v(s0+1)}, {v(s0)}, s35")
        A.i(f"v_perm_b32 {v(d+3)}, {v(s0+3)}, {v(s0+2)}, s35")
        A.i(f"s_add_u32 s26, s25, {4096*u}")
        A.i(f"buffer_store_dwordx4 {v(d,4)}, v12, s[16:19], s26 offen {stf}")
    if ts: ts_end(A, name, 12)
    A.i("s_endpgm")

    A.label(f"{name}_gemv")
    if not gemv:
        A.i("s_endpgm")
    A.i("s_cmp_eq_u32 s20, 7")
    A.i(f"s_cbranch_scc1 {name}_done")
    A.i("s_mul_i32 s22, s2, 3")
    A.i("s_add_u32 s22, s22, s20")
    A.i("s_sub_u32 s22, s22, 4             ; unit 0..767")
    A.i("s_lshr_b32 s23, s22, 3")
    A.i("s_and_b32 s24, s22, 7             ; k part")
    A.i("v_and_b32 v4, 7, v2               ; cc")
    A.i("v_lshrrev_b32 v5, 3, v2")
    A.i(f"s_mov_b32 s25, {16*12288}")
    A.i("v_mul_lo_u32 v6, v5, s25")
    A.i("v_lshl_add_u32 v6, v4, 4, v6")
    A.i("v_lshlrev_b32 v7, 5, v5")
    A.i(f"s_mul_i32 s25, s24, {128*12288}")
    A.i("s_lshl_b32 s26, s23, 7")
    A.i("s_add_u32 s25, s25, s26")
    A.i("s_lshl_b32 s34, s24, 8            ; c soffset")
    A.i("s_waitcnt lgkmcnt(0)")
    srd(A, 16, 8, 2048)
    srd(A, 28, 10, 1024*12288)
    C = 16; S = 32; Wd = 64
    for u in range(2):
        A.i(f"buffer_load_dwordx4 {v(C+4*u,4)}, v7, s[16:19], s34 offen offset:{16*u}")
    for j in range(16):
        A.i(f"buffer_load_dwordx4 {v(Wd+4*j,4)}, v6, s[28:31], s25 offen {nt}")
        A.i(f"s_add_u32 s25, s25, 12288")
    A.i("s_mov_b32 s27, 0xffff0000")
    A.i(f"s_mov_b32 s35, 0x{LOG2E ^ 0x80000000:x}")
    srd(A, 16, 12, 768*256, WS['gpart'])
    srd(A, 28, 12, 96*128, WS['gcnt'])
    A.i("s_waitcnt vmcnt(16)")
    sreg = (lambda j: S + j) if opsel else (lambda j: S + 2*j)
    for q in range(8):
        A.i(f"v_lshlrev_b32 {v(sreg(2*q))}, 16, {v(C+q)}")
        A.i(f"v_and_b32 {v(sreg(2*q+1))}, s27, {v(C+q)}")
    for q in range(8):
        x0, x1 = sreg(2*q), sreg(2*q+1)
        A.i(f"v_mul_f32 v8, s35, {v(x0)}")
        A.i(f"v_mul_f32 v9, s35, {v(x1)}")
        A.i("v_exp_f32 v8, v8"); A.i("v_exp_f32 v9, v9")
        A.i("s_nop 0")
        A.i("v_add_f32 v8, 1.0, v8"); A.i("v_add_f32 v9, 1.0, v9")
        A.i("v_rcp_f32 v8, v8"); A.i("v_rcp_f32 v9, v9")
        A.i("s_nop 0")
        A.i(f"v_mul_f32 v8, v8, {v(x0)}"); A.i(f"v_mul_f32 v9, v9, {v(x1)}")
        A.i("v_cvt_pk_bf16_f32 v8, v8, v9")
        A.i(f"v_lshlrev_b32 {v(x0)}, 16, v8")
        A.i(f"v_and_b32 {v(x1)}, s27, v8")
    AC = 16
    for r in range(8): A.i(f"v_mov_b32 {v(AC+r)}, 0")
    for j in range(16):
        if j % 2 == 0: A.i(f"s_waitcnt vmcnt({14-j})")
        sel = "op_sel_hi:[1,0,1]" if (j % 2 == 0 or not opsel) else "op_sel:[0,1,0] op_sel_hi:[1,1,1]"
        for q in range(4):
            t = 8 + 2*(q % 2)
            A.i(f"v_lshlrev_b32 {v(t)}, 16, {v(Wd+4*j+q)}")
            A.i(f"v_and_b32 {v(t+1)}, s27, {v(Wd+4*j+q)}")
            A.i(f"v_pk_fma_f32 {v(AC+2*q,2)}, {v(t,2)}, {v(sreg(j)//2*2,2)}, {v(AC+2*q,2)} {sel}")
    A.i("s_nop 1")
    for r in range(8):
        A.i(f"v_add_f32_dpp {v(AC+r)}, {v(AC+r)}, {v(AC+r)} row_ror:8 row_mask:0xf bank_mask:0xf")
    for sw in ("v_permlane16_swap_b32", "v_permlane32_swap_b32"):
        for r in range(8): A.i(f"v_mov_b32 {v(24+r)}, {v(AC+r)}")
        for r in range(8): A.i(f"{sw} {v(AC+r)}, {v(24+r)}")
        for r in range(8): A.i(f"v_add_f32 {v(AC+r)}, {v(AC+r)}, {v(24+r)}")
    A.i("v_lshlrev_b32 v8, 5, v4")
    A.i("s_lshl_b32 s25, s22, 8")
    A.i("s_mov_b64 exec, 0xff")
    A.i(f"buffer_store_dwordx4 {v(AC,4)}, v8, s[16:19], s25 offen sc0 sc1")
    A.i(f"buffer_store_dwordx4 {v(AC+4,4)}, v8, s[16:19], s25 offen offset:16 sc0 sc1")
    A.i("s_mov_b64 exec, 1")
    A.i("v_mov_b32 v9, 1")
    A.i("v_mov_b32 v10, 0")
    A.i("s_waitcnt vmcnt(0)")
    A.i("buffer_atomic_add v9, v10, s[28:31], s26 offen sc0")
    A.i("s_waitcnt vmcnt(0)")
    A.i("v_readfirstlane_b32 s25, v9")
    A.i("s_mov_b64 exec, -1")
    A.i("s_cmp_lg_u32 s25, 7")
    A.i(f"s_cbranch_scc1 {name}_done")
    A.i("v_lshlrev_b32 v8, 2, v2")
    A.i("s_lshl_b32 s25, s23, 11")
    for p in range(8):
        A.i(f"buffer_load_dword {v(32+p)}, v8, s[16:19], s25 offen offset:{256*p} sc0 sc1")
    srd(A, 28, 12, 12288, WS['mod'])
    A.i("v_lshlrev_b32 v8, 1, v2")
    A.i("s_waitcnt vmcnt(0)")
    for st in (4,2,1):
        for p in range(st):
            A.i(f"v_add_f32 {v(32+p)}, {v(32+p)}, {v(32+p+st)}")
    A.i("v_cvt_pk_bf16_f32 v32, v32, v32")
    A.i("buffer_store_short v32, v8, s[28:31], s26 offen")
    A.label(f"{name}_done")
    A.i("s_endpgm")
    kernel_desc(A, name, 176, 72)
    return (256, 512, 4*WB)
```

```python
from asmlib import *
from bw import ts_begin, ts_end, ts_mark

def wave_reduce(A, regs):
    steps = ["row_shr:1 row_mask:0xf bank_mask:0xf bound_ctrl:0",
             "row_shr:2 row_mask:0xf bank_mask:0xf bound_ctrl:0",
             "row_shr:4 row_mask:0xf bank_mask:0xf bound_ctrl:0",
             "row_shr:8 row_mask:0xf bank_mask:0xf bound_ctrl:0",
             "row_bcast:15 row_mask:0xa bank_mask:0xf",
             "row_bcast:31 row_mask:0xc bank_mask:0xf"]
    for st in steps:
        if len(regs) < 3:
            A.i(f"s_nop {2-len(regs)}")
        for r in regs:
            A.i(f"v_add_f32_dpp {v(r)}, {v(r)}, {v(r)} {st}")

def gen_k2(A, name="k2_kernel", ts=False, nt="nt", stf=""):
    MO = 16384
    kernel_head(A, name)
    A.i("s_cmp_ge_u32 s2, 256")
    A.i(f"s_cbranch_scc1 {name}_done")
    A.i(f"s_load_dwordx2 s[4:5], s[0:1], {KA['q']}")
    A.i(f"s_load_dwordx2 s[6:7], s[0:1], {KA['ws']}")
    if ts: ts_begin(A)
    A.i("v_lshrrev_b32 v1, 6, v0")
    A.i("v_and_b32 v2, 63, v0")
    A.i("v_readfirstlane_b32 s20, v1")
    A.i("s_and_b32 s21, s2, 7")
    A.i("s_lshl_b32 s21, s21, 5")
    A.i("s_lshr_b32 s22, s2, 3")
    A.i("s_add_u32 s21, s21, s22")
    A.i("s_lshl_b32 s22, s21, 3")
    A.i("s_add_u32 s22, s22, s20")
    A.i("s_lshl_b32 s22, s22, 11")
    A.i("v_lshlrev_b32 v3, 4, v2           ; lane*16")
    A.i("v_lshrrev_b32 v4, 4, v2")
    A.i("v_xor_b32 v4, v4, v2")
    A.i("v_and_b32 v4, 3, v4")
    A.i("v_lshlrev_b32 v4, 4, v4")
    A.i("v_lshrrev_b32 v5, 2, v2")
    A.i("v_lshl_add_u32 v4, v5, 14, v4")
    A.i("s_lshl_b32 s23, s20, 19           ; 32 groups * 16384")
    A.i("s_lshl_b32 s24, s21, 6")
    A.i("s_add_u32 s23, s23, s24")
    A.i("s_add_u32 s24, s23, 0x40000")
    A.i("s_lshl_b32 s25, s20, 11")
    A.i("s_lshl_b32 s26, s20, 10")
    A.i("s_waitcnt lgkmcnt(0)")
    srd(A, 8, 4, 4*MB)
    X = 16
    for hf in range(2):
        A.i(f"buffer_load_dwordx4 {v(X+hf*4,4)}, v3, s[8:11], s22 offen offset:{hf*1024} {nt}")
    srd(A, 12, 6, 4*MB, WS['y4'])
    A.i("s_mov_b32 m0, s25")
    srd(A, 16, 6, 10240, WS['mod'])
    A.i("buffer_load_dwordx4 v4, s[12:15], s23 offen lds")
    A.i("s_add_u32 m0, s25, 1024")
    A.i("s_add_u32 s27, s26, 8192")
    A.i("buffer_load_dwordx4 v4, s[12:15], s24 offen lds")
    A.i(f"s_add_u32 m0, s26, {MO}")
    A.i("s_nop 0")
    A.i("buffer_load_dwordx4 v3, s[16:19], s26 offen lds")
    A.i(f"s_add_u32 m0, s27, {MO}")
    A.i("s_nop 0")
    A.i("buffer_load_dwordx4 v3, s[16:19], s27 offen lds")
    srd(A, 28, 6, 4*MB, WS['x1'])
    srd(A, 32, 6, 4*MB, WS['h2'])
    A.i("s_mov_b32 s27, 0xffff0000")
    A.i("s_mov_b32 s36, 0x3a800000         ; 1/1024")
    A.i("s_mov_b32 s37, 0x3727c5ac         ; 1e-5")
    A.i("s_lshr_b32 s25, s20, 1")
    A.i("v_lshrrev_b32 v5, 1, v2")
    A.i("v_xor_b32 v5, s25, v5")
    A.i("v_and_b32 v5, 3, v5")
    A.i("v_lshlrev_b32 v5, 4, v5")
    A.i("v_lshl_add_u32 v5, v2, 7, v5")
    A.i("s_and_b32 s25, s20, 1")
    A.i("s_lshl_b32 s25, s25, 3")
    A.i("v_add_u32 v5, s25, v5")
    Y, M, XF, MF, T = 24, 32, 72, 88, 56+80
    ST = 8
    def unpack(dst, src):
        A.i(f"v_lshlrev_b32 {v(dst)}, 16, {v(src)}")
        A.i(f"v_and_b32 {v(dst+1)}, s27, {v(src)}")
    def stats(side=()):
        side = list(side)
        A.i(f"v_pk_add_f32 v[8:9], {v(XF,2)}, {v(XF+2,2)}")
        A.i(f"v_pk_mul_f32 v[10:11], {v(XF,2)}, {v(XF,2)}")
        A.i(f"v_pk_fma_f32 v[10:11], {v(XF+2,2)}, {v(XF+2,2)}, v[10:11]")
        for q in range(2, 8):
            b = XF + 2*q
            A.i(f"v_pk_add_f32 v[8:9], v[8:9], {v(b,2)}")
            A.i(f"v_pk_fma_f32 v[10:11], {v(b,2)}, {v(b,2)}, v[10:11]")
        A.i("v_add_f32 v12, v8, v9")
        A.i("v_add_f32 v13, v10, v11")
        wave_reduce(A, [12, 13])
        A.i("s_nop 0")
        A.i("v_readlane_b32 s52, v12, 63")
        A.i("v_readlane_b32 s53, v13, 63")
        A.i("s_nop 1")
        A.i("v_mov_b32 v10, s52")
        A.i("v_mov_b32 v11, s53")
        A.i("v_mul_f32 v10, s36, v10           ; mean")
        A.i("v_mul_f32 v11, s36, v11           ; E[x^2]")
        A.i("v_fma_f32 v11, -v10, v10, v11     ; var")
        A.i("v_max_f32 v11, 0, v11")
        A.i("v_add_f32 v11, s37, v11")
        A.i("v_rsq_f32 v8, v11")
        A.i("s_nop 0")
        A.i("v_mul_f32 v10, -v10, v8")
    if ts: ts_mark(A, 0)
    A.i("s_waitcnt vmcnt(4)")
    if ts: ts_mark(A, 1)
    for q in range(8):
        unpack(XF + 2*q, X + q)
    stats()
    if ts: ts_mark(A, 2)
    A.i("s_waitcnt vmcnt(0)")
    A.i("s_barrier")
    if ts: ts_mark(A, 3)
    for vec in (1, 0):
        for hf in range(2):
            A.i(f"ds_read_b128 {v(M+(vec*2+hf)*4,4)}, v3 offset:{MO + vec*2048 + hf*1024}")
    for hf in range(2):
        for e in range(2):
            A.i(f"ds_read_b64 {v(Y+(hf*2+e)*2,2)}, v5 offset:{hf*8192 + e*64}")
    for vec in (2, 4, 3):
        for hf in range(2):
            A.i(f"ds_read_b128 {v(M+(vec*2+hf)*4,4)}, v3 offset:{MO + vec*2048 + hf*1024}")
    SA, CA, GA = MF, MF+16, MF+32
    A.i("s_waitcnt lgkmcnt(10)")
    H = 144
    for q in range(8):
        unpack(CA+2*q, M+8+q); unpack(SA+2*q, M+q)
        A.i(f"v_pk_add_f32 {v(CA+2*q,2)}, {v(CA+2*q,2)}, 1.0 op_sel_hi:[1,0]")
        A.i(f"v_pk_fma_f32 {v(H+2*q,2)}, {v(XF+2*q,2)}, v[8:9], v[10:11] op_sel_hi:[1,0,0]")
        A.i(f"v_pk_fma_f32 {v(H+2*q,2)}, {v(H+2*q,2)}, {v(CA+2*q,2)}, {v(SA+2*q,2)}")
    A.i("s_waitcnt lgkmcnt(4)")
    for q in range(8):
        t = T + (q % 2) * 2
        unpack(t, Y + q); unpack(GA+2*q, M+16+q)
        A.i(f"v_pk_mul_f32 {v(H+2*q,2)}, {v(H+2*q,2)}, {v(t,2)}")
        A.i(f"v_pk_fma_f32 {v(H+2*q,2)}, {v(H+2*q,2)}, {v(GA+2*q,2)}, {v(XF+2*q,2)}")
        A.i(f"v_cvt_pk_bf16_f32 {v(X+q)}, {v(H+2*q)}, {v(H+2*q+1)}")
        unpack(XF+2*q, X+q)
    for hf in range(2):
        A.i(f"buffer_store_dwordx4 {v(X+hf*4,4)}, v3, s[28:31], s22 offen offset:{hf*1024} {stf}")
    if ts: ts_mark(A, 4)
    stats()
    A.i("s_waitcnt lgkmcnt(0)")
    SB, CB = MF, MF+16
    for q in range(8):
        unpack(CB+2*q, M+32+q); unpack(SB+2*q, M+24+q)
        A.i(f"v_pk_add_f32 {v(CB+2*q,2)}, {v(CB+2*q,2)}, 1.0 op_sel_hi:[1,0]")
        A.i(f"v_pk_fma_f32 {v(H+2*q,2)}, {v(XF+2*q,2)}, v[8:9], v[10:11] op_sel_hi:[1,0,0]")
        A.i(f"v_pk_fma_f32 {v(H+2*q,2)}, {v(H+2*q,2)}, {v(CB+2*q,2)}, {v(SB+2*q,2)}")
        A.i(f"v_cvt_pk_bf16_f32 {v(Y+q)}, {v(H+2*q)}, {v(H+2*q+1)}")
    for hf in range(2):
        A.i(f"buffer_store_dwordx4 {v(Y+hf*4,4)}, v3, s[32:35], s22 offen offset:{hf*1024} {stf}")
    if ts: ts_mark(A, 5)
    if ts: ts_end(A, name, 6)
    A.label(f"{name}_done")
    A.i("s_endpgm")
    kernel_desc(A, name, 160, 64)
    return (256, 512, 32768)
```

```python
from build import *
base = dict(g1=dict(stf="sc0 sc1"))
full('z1.s', k1=dict(pw1=True, pw2=True), **base)
full('z2.s', k1=dict(pw1=True, pw2=True), k0=dict(stf="sc0 sc1"), **base)
full('z3.s', k1=dict(pw1=True), **base)
full('z4.s', k1=dict(pw1=True, pw2=True, nt=""), k0=dict(nt=""), k2=dict(nt=""), **base)
```

```python
from asmlib import *
TSIDX = {'k0':0,'k1':1,'k2':2,'g1':3,'g2':4}
def ts_begin(A):
    A.i("s_memrealtime s[40:41]")
    A.i("s_memtime s[48:49]")
    for j in range(6):
        A.i(f"s_mov_b32 s{84+2*j}, 0")
def ts_mark(A, j):
    A.i(f"s_memrealtime s[{84+2*j}:{85+2*j}]")
DBG = False
def dbg_end(A, name, wave):
    k = TSIDX.get(name[:2], 0)
    A.i("s_waitcnt vmcnt(0)")
    A.i("s_memrealtime s[42:43]")
    A.i(f"s_load_dwordx2 s[44:45], s[0:1], {KA['dbg']}")
    A.i("s_waitcnt lgkmcnt(0)")
    A.i(f"s_cmp_lg_u32 s20, {wave}")
    A.i(f"s_cbranch_scc1 {name}_done")
    A.i(f"s_cmp_lg_u32 s2, {DBG_WG}")
    A.i(f"s_cbranch_scc1 {name}_done")
    A.i(f"s_sub_u32 s44, s44, {512*k}")
    A.i("s_subb_u32 s45, s45, 0")
    A.i("s_mov_b32 s46, 256")
    A.i("s_mov_b32 s47, 0x20000")
    A.i("v_mov_b32 v16, s40"); A.i("v_mov_b32 v17, s42"); A.i(f"v_mov_b32 v18, s{84+2*DBG_MARK.get(name[:2],0)}")
    A.i("v_mov_b32 v20, 0")
    A.i(f"buffer_store_dwordx3 v[16:18], v20, s[44:47], 0 offen offset:{12*k}")
DBG_WG = 0
DBG_MARK = {'k0':1,'k1':2,'k2':3,'g1':1,'g2':1}
def ts_end(A, name, wsreg=4, wave=0):
    if DBG: return dbg_end(A, name, wave)
    tso = TSIDX.get(name[:2], 0) * 16384
    A.i("s_waitcnt vmcnt(0)")
    A.i("s_memrealtime s[42:43]")
    A.i("s_memtime s[50:51]")
    A.i("s_waitcnt lgkmcnt(0)")
    A.i(f"s_cmp_lg_u32 s20, {wave}")
    A.i(f"s_cbranch_scc1 {name}_done")
    srd(A, 44, wsreg, 16384, WS['ts'] + tso)
    A.i("v_mov_b32 v16, s40"); A.i("v_mov_b32 v17, s41"); A.i("v_mov_b32 v18, s42"); A.i("v_mov_b32 v19, s43")
    A.i("s_lshl_b32 s27, s2, 6")
    A.i("v_mov_b32 v20, s27")
    A.i("buffer_store_dwordx4 v[16:19], v20, s[44:47], 0 offen")
    A.i("v_mov_b32 v24, s48"); A.i("v_mov_b32 v25, s49"); A.i("v_mov_b32 v26, s50"); A.i("v_mov_b32 v27, s51")
    A.i("buffer_store_dwordx4 v[24:27], v20, s[44:47], 0 offen offset:16")
    for j in range(6):
        A.i(f"v_mov_b32 v{28+j}, s{84+2*j}")
    A.i("buffer_store_dwordx4 v[28:31], v20, s[44:47], 0 offen offset:32")
    A.i("buffer_store_dwordx2 v[32:33], v20, s[44:47], 0 offen offset:48")

def gen_bw(A, name, dma=True, waves=4, depth=8, iters=176, flags="", foot=1<<20, share=True, rowseg=0):
    kernel_head(A, name)
    A.i("s_cmp_ge_u32 s2, 256")
    A.i(f"s_cbranch_scc1 {name}_done")
    A.i(f"s_load_dwordx2 s[4:5], s[0:1], {KA['ws']}")
    A.i("v_lshrrev_b32 v1, 6, v0")
    A.i("v_and_b32 v2, 63, v0")
    A.i("v_readfirstlane_b32 s20, v1")
    A.i("s_waitcnt lgkmcnt(0)")
    srd(A, 8, 4, 128*MB, 64*MB)
    if rowseg == 0:
        A.i("v_lshlrev_b32 v4, 4, v2")
    else:
        lpr = rowseg // 16
        A.i(f"v_and_b32 v5, {lpr-1}, v2")
        A.i(f"v_lshrrev_b32 v6, {lpr.bit_length()-1}, v2")
        A.i("v_lshlrev_b32 v5, 4, v5")
        A.i("v_lshl_add_u32 v4, v6, 11, v5")
    A.i("s_and_b32 s21, s2, 7")
    A.i(f"s_mul_i32 s21, s21, {foot}")
    A.i("s_lshr_b32 s22, s2, 3")
    if share:
        A.i("s_and_b32 s22, s22, 3")
    A.i(f"s_mul_i32 s22, s22, {waves}")
    A.i("s_add_u32 s22, s22, s20")
    A.i(f"s_mul_i32 s22, s22, {1024 if rowseg==0 else rowseg}")
    step = (4 if share else 32) * waves * 1024
    A.i("s_lshl_b32 s33, s20, 13")
    A.i("s_barrier")
    ts_begin(A)
    A.i(f"s_mov_b32 s23, {iters//depth}")
    A.label(f"{name}_loop")
    for d in range(depth):
        A.i(f"s_add_u32 m0, s33, {(d%8)*1024}")
        A.i("s_add_u32 s25, s21, s22")
        if dma:
            A.i(f"buffer_load_dwordx4 v4, s[8:11], s25 offen {flags} lds")
        else:
            A.i(f"buffer_load_dwordx4 {v(32+4*d,4)}, v4, s[8:11], s25 offen {flags}")
        A.i(f"s_add_u32 s22, s22, {step}")
        A.i(f"s_and_b32 s22, s22, {foot-1}")
        A.i(f"s_waitcnt vmcnt({depth-1})")
    A.i("s_sub_u32 s23, s23, 1")
    A.i("s_cmp_lg_u32 s23, 0")
    A.i(f"s_cbranch_scc1 {name}_loop")
    ts_end(A, name)
    A.label(f"{name}_done")
    A.i("s_endpgm")
    kernel_desc(A, name, 128, 64)
    return (256, 64*waves, 8192*waves)
```

```python
from build import *
import bw
bw.DBG = True
base = dict(g1=dict(stf="sc0 sc1"))
full('z1.s', ts=True, k1=dict(pw1=True, pw2=True), **base)
bw.DBG_WG = 77
bw.DBG_MARK = {'k0':0,'k1':3,'k2':0,'g1':2,'g2':2}
full('z2.s', ts=True, k1=dict(pw1=True, pw2=True), **base)
```

```python
from asmlib import *
TSIDX = {'k0':0,'k1':1,'k2':2,'g1':3,'g2':4}
def ts_begin(A):
    A.i("s_memrealtime s[40:41]")
    A.i("s_memtime s[48:49]")
    for j in range(6):
        A.i(f"s_mov_b32 s{84+2*j}, 0")
def ts_mark(A, j):
    A.i(f"s_memrealtime s[{84+2*j}:{85+2*j}]")
DBG = False
def dbg_end(A, name, wave, wsreg=4):
    k = TSIDX.get(name[:2], 0)
    A.i("s_waitcnt vmcnt(0)")
    A.i("s_memrealtime s[42:43]")
    A.i(f"s_load_dwordx2 s[44:45], s[0:1], {KA['dbg']}")
    A.i("s_waitcnt lgkmcnt(0)")
    A.i(f"s_cmp_lg_u32 s20, {wave}")
    A.i(f"s_cbranch_scc1 {name}_done")
    A.i(f"s_cmp_lg_u32 s2, {DBG_WG}")
    A.i(f"s_cbranch_scc1 {name}_done")
    A.i("s_mov_b32 s46, 256")
    A.i("s_mov_b32 s47, 0x20000")
    srd(A, 76, wsreg, 256, WS['ts'])
    A.i("v_mov_b32 v16, s40"); A.i("v_mov_b32 v17, s42"); A.i(f"v_mov_b32 v18, s{84+2*DBG_MARK.get(name[:2],0)}")
    A.i("v_mov_b32 v20, 0")
    A.i(f"buffer_store_dwordx3 v[16:18], v20, s[76:79], 0 offen offset:{12*k} sc0 sc1")
    A.i(f"v_mov_b32 v21, {0x1111*(k+1)}")
    A.i("buffer_store_dword v21, v20, s[44:47], 0 offen offset:60")
    if name[:2] == DBG_LAST:
        A.i("s_waitcnt vmcnt(0)")
        A.i("v_mbcnt_lo_u32_b32 v22, -1, 0")
        A.i("v_min_u32 v22, 14, v22")
        A.i("v_lshlrev_b32 v22, 2, v22")
        A.i("buffer_load_dword v23, v22, s[76:79], 0 offen sc0 sc1")
        A.i("s_waitcnt vmcnt(0)")
        A.i("buffer_store_dword v23, v22, s[44:47], 0 offen")
DBG_LAST = 'g2'
DBG_WG = 0
DBG_MARK = {'k0':1,'k1':2,'k2':3,'g1':1,'g2':1}
def ts_end(A, name, wsreg=4, wave=0):
    if DBG: return dbg_end(A, name, wave, wsreg)
    tso = TSIDX.get(name[:2], 0) * 16384
    A.i("s_waitcnt vmcnt(0)")
    A.i("s_memrealtime s[42:43]")
    A.i("s_memtime s[50:51]")
    A.i("s_waitcnt lgkmcnt(0)")
    A.i(f"s_cmp_lg_u32 s20, {wave}")
    A.i(f"s_cbranch_scc1 {name}_done")
    srd(A, 44, wsreg, 16384, WS['ts'] + tso)
    A.i("v_mov_b32 v16, s40"); A.i("v_mov_b32 v17, s41"); A.i("v_mov_b32 v18, s42"); A.i("v_mov_b32 v19, s43")
    A.i("s_lshl_b32 s27, s2, 6")
    A.i("v_mov_b32 v20, s27")
    A.i("buffer_store_dwordx4 v[16:19], v20, s[44:47], 0 offen")
    A.i("v_mov_b32 v24, s48"); A.i("v_mov_b32 v25, s49"); A.i("v_mov_b32 v26, s50"); A.i("v_mov_b32 v27, s51")
    A.i("buffer_store_dwordx4 v[24:27], v20, s[44:47], 0 offen offset:16")
    for j in range(6):
        A.i(f"v_mov_b32 v{28+j}, s{84+2*j}")
    A.i("buffer_store_dwordx4 v[28:31], v20, s[44:47], 0 offen offset:32")
    A.i("buffer_store_dwordx2 v[32:33], v20, s[44:47], 0 offen offset:48")

def gen_bw(A, name, dma=True, waves=4, depth=8, iters=176, flags="", foot=1<<20, share=True, rowseg=0):
    kernel_head(A, name)
    A.i("s_cmp_ge_u32 s2, 256")
    A.i(f"s_cbranch_scc1 {name}_done")
    A.i(f"s_load_dwordx2 s[4:5], s[0:1], {KA['ws']}")
    A.i("v_lshrrev_b32 v1, 6, v0")
    A.i("v_and_b32 v2, 63, v0")
    A.i("v_readfirstlane_b32 s20, v1")
    A.i("s_waitcnt lgkmcnt(0)")
    srd(A, 8, 4, 128*MB, 64*MB)
    if rowseg == 0:
        A.i("v_lshlrev_b32 v4, 4, v2")
    else:
        lpr = rowseg // 16
        A.i(f"v_and_b32 v5, {lpr-1}, v2")
        A.i(f"v_lshrrev_b32 v6, {lpr.bit_length()-1}, v2")
        A.i("v_lshlrev_b32 v5, 4, v5")
        A.i("v_lshl_add_u32 v4, v6, 11, v5")
    A.i("s_and_b32 s21, s2, 7")
    A.i(f"s_mul_i32 s21, s21, {foot}")
    A.i("s_lshr_b32 s22, s2, 3")
    if share:
        A.i("s_and_b32 s22, s22, 3")
    A.i(f"s_mul_i32 s22, s22, {waves}")
    A.i("s_add_u32 s22, s22, s20")
    A.i(f"s_mul_i32 s22, s22, {1024 if rowseg==0 else rowseg}")
    step = (4 if share else 32) * waves * 1024
    A.i("s_lshl_b32 s33, s20, 13")
    A.i("s_barrier")
    ts_begin(A)
    A.i(f"s_mov_b32 s23, {iters//depth}")
    A.label(f"{name}_loop")
    for d in range(depth):
        A.i(f"s_add_u32 m0, s33, {(d%8)*1024}")
        A.i("s_add_u32 s25, s21, s22")
        if dma:
            A.i(f"buffer_load_dwordx4 v4, s[8:11], s25 offen {flags} lds")
        else:
            A.i(f"buffer_load_dwordx4 {v(32+4*d,4)}, v4, s[8:11], s25 offen {flags}")
        A.i(f"s_add_u32 s22, s22, {step}")
        A.i(f"s_and_b32 s22, s22, {foot-1}")
        A.i(f"s_waitcnt vmcnt({depth-1})")
    A.i("s_sub_u32 s23, s23, 1")
    A.i("s_cmp_lg_u32 s23, 0")
    A.i(f"s_cbranch_scc1 {name}_loop")
    ts_end(A, name)
    A.label(f"{name}_done")
    A.i("s_endpgm")
    kernel_desc(A, name, 128, 64)
    return (256, 64*waves, 8192*waves)
```

```python
from asmlib import *
from bw import ts_begin, ts_end, ts_mark

def gen_k0(A, name="k0_kernel", ts=False, nt="nt", stf="", code=None):
    kernel_head(A, name)
    A.i("s_cmp_ge_u32 s2, 256")
    A.i(f"s_cbranch_scc1 {name}_done")
    A.i(f"s_load_dwordx4 s[4:7], s[0:1], {KA['k']}        ; k, v")
    A.i(f"s_load_dwordx2 s[8:9], s[0:1], {KA['shift']}")
    A.i(f"s_load_dwordx2 s[10:11], s[0:1], {KA['ws']}")
    if ts: ts_begin(A)
    A.i("s_and_b32 s21, s2, 7")
    A.i("s_lshl_b32 s21, s21, 1")
    A.i("s_bfe_u32 s22, s2, 0x10003")
    A.i("s_add_u32 s21, s21, s22           ; cb")
    A.i("s_lshr_b32 s22, s2, 4             ; rb")
    A.i("v_and_b32 v1, 15, v0              ; cc")
    A.i("v_lshrrev_b32 v2, 4, v0           ; rg")
    A.i("s_lshl_b32 s23, s22, 18")
    A.i("s_lshl_b32 s24, s21, 7")
    A.i("s_add_u32 s23, s23, s24")
    A.i(f"s_sub_u32 s23, s23, {3*2048}")
    A.i("v_lshlrev_b32 v3, 13, v2")
    A.i("v_lshl_add_u32 v3, v1, 3, v3")
    A.i("v_add_u32 v3, s23, v3")
    A.i("v_add_u32 v4, 4096, v3            ; row-1")
    A.i("v_add_u32 v5, 6144, v3            ; row")
    A.i("v_add_u32 v6, 10240, v3           ; row+2")
    A.i("s_lshl_b32 s24, s21, 9")
    A.i("v_lshlrev_b32 v7, 5, v1")
    A.i("s_waitcnt lgkmcnt(0)")
    srd(A, 12, 4, 4*MB)
    srd(A, 16, 6, 4*MB)
    K, V, W = 16, 32, 40
    addr = [(3,0),(3,2048),(4,0),(5,0),(5,2048),(6,0),(6,2048)]
    for j,(r,o) in enumerate(addr):
        A.i(f"buffer_load_dwordx2 {v(K+2*j,2)}, v{r}, s[12:15], 0 offen offset:{o} {nt}")
    for j in range(4):
        r,o = addr[3+j]
        A.i(f"buffer_load_dwordx2 {v(V+2*j,2)}, v{r}, s[16:19], 0 offen offset:{o} {nt}")
    srd(A, 28, 8, 8192)
    A.i(f"buffer_load_dwordx4 {v(W,4)}, v7, s[28:31], s24 offen")
    A.i(f"buffer_load_dwordx4 {v(W+4,4)}, v7, s[28:31], s24 offen offset:16")
    if code:
        A.i("s_cmp_ge_u32 s2, 8")
        A.i(f"s_cbranch_scc1 {name}_nc")
        A.i("s_getpc_b64 s[60:61]")
        A.label(f"{name}_pc")
        A.i(f"s_add_u32 s60, s60, {code[0]}-{name}_pc")
        A.i("s_addc_u32 s61, s61, 0")
        A.i(f"s_mov_b32 s62, {code[1]}-{code[0]}")
        A.i("s_mov_b32 s63, 0x20000")
        A.i("v_lshlrev_b32 v14, 6, v0")
        A.i("buffer_load_dword v15, v14, s[60:63], 0 offen")
        A.label(f"{name}_nc")
    srd(A, 36, 10, 1024*128 , WS['flag'])
    srd(A, 52, 10, 96*128, WS['gcnt'])
    A.i("v_lshlrev_b32 v12, 7, v0")
    A.i("v_mov_b32 v13, 0")
    A.i("s_lshl_b32 s26, s2, 9")
    A.i("s_lshl_b32 s27, s2, 7")
    A.i("v_cmp_gt_u32 vcc, 4, v0")
    A.i("s_and_saveexec_b64 s[56:57], vcc")
    A.i(f"s_cbranch_execz {name}_nz")
    A.i("buffer_store_dword v13, v12, s[36:39], s26 offen")
    A.i("buffer_store_dword v13, v13, s[52:55], s27 offen")
    A.label(f"{name}_nz")
    A.i("s_mov_b64 exec, s[56:57]")
    srd(A, 32, 10, 4*MB, WS['kvT'])
    A.i("v_lshrrev_b32 v8, 1, v2           ; x")
    A.i("v_and_b32 v9, 7, v1")
    A.i("v_xor_b32 v8, v8, v9")
    A.i("v_lshlrev_b32 v8, 4, v8")
    A.i("v_lshl_add_u32 v8, v1, 10, v8")
    A.i("v_and_b32 v9, 1, v2")
    A.i("v_xor_b32 v9, 1, v9")
    A.i("v_lshl_add_u32 v8, v9, 3, v8")
    A.i("v_lshrrev_b32 v10, 6, v0")
    A.i("v_xor_b32 v10, v10, v1")
    A.i("v_lshlrev_b32 v10, 4, v10")
    A.i("v_lshl_add_u32 v10, v2, 8, v10")
    A.i("v_lshlrev_b32 v11, 4, v1")
    A.i("v_lshl_add_u32 v11, v2, 12, v11")
    A.i("s_lshl_b32 s25, s21, 18           ; cb*64*4096")
    A.i("s_lshl_b32 s26, s22, 8            ; rb*256")
    A.i("s_add_u32 s25, s25, s26")
    A.i("s_add_u32 s26, s25, 0x20000       ; +32 channels")
    A.i("s_mov_b32 s27, 0xffff0000")
    if ts: ts_mark(A, 0)
    A.i("s_waitcnt vmcnt(0)")
    if ts: ts_mark(A, 1)
    WU = 48
    for pr in range(2):
        for e in range(2):
            ch = 2*pr + e
            for tap in range(4):
                src = W + 2*ch + tap//2
                dst = WU + (pr*4+tap)*2 + e
                if tap % 2 == 0: A.i(f"v_lshlrev_b32 {v(dst)}, 16, {v(src)}")
                else:            A.i(f"v_and_b32 {v(dst)}, s27, {v(src)}")
    KU, VU, R = 64, 80, 88
    for pr in range(2):
        for j in range(7):
            A.i(f"v_lshlrev_b32 {v(KU+2*j)}, 16, {v(K+2*j+pr)}")
            A.i(f"v_and_b32 {v(KU+2*j+1)}, s27, {v(K+2*j+pr)}")
        for j in range(4):
            A.i(f"v_lshlrev_b32 {v(VU+2*j)}, 16, {v(V+2*j+pr)}")
            A.i(f"v_and_b32 {v(VU+2*j+1)}, s27, {v(V+2*j+pr)}")
        w = lambda tap: v(WU+(pr*4+tap)*2, 2)
        for r in range(4):
            A.i(f"v_pk_mul_f32 {v(R+2*r,2)}, {v(KU+2*r,2)}, {w(3)}")
        for tap in (2,1,0):
            for r in range(4):
                A.i(f"v_pk_fma_f32 {v(R+2*r,2)}, {v(KU+2*(r+3-tap),2)}, {w(tap)}, {v(R+2*r,2)}")
        for r in range(4):
            A.i(f"v_pk_mul_f32 {v(R+2*r,2)}, {v(R+2*r,2)}, {v(VU+2*r,2)}")
        for e in range(2):
            d = 96 + (pr*2+e)*2
            A.i(f"v_cvt_pk_bf16_f32 {v(d)}, {v(R+6+e)}, {v(R+4+e)}")
            A.i(f"v_cvt_pk_bf16_f32 {v(d+1)}, {v(R+2+e)}, {v(R+e)}")
            A.i(f"ds_write_b64 v8, {v(d,2)} offset:{(2*pr+e)*256}")
    A.i("s_waitcnt lgkmcnt(0)")
    if ts: ts_mark(A, 2)
    A.i("s_barrier")
    if ts: ts_mark(A, 3)
    A.i("ds_read_b128 v[16:19], v10")
    A.i("ds_read_b128 v[20:23], v10 offset:8192")
    A.i("s_waitcnt lgkmcnt(1)")
    A.i(f"buffer_store_dwordx4 v[16:19], v11, s[32:35], s25 offen {stf}")
    A.i("s_waitcnt lgkmcnt(0)")
    A.i(f"buffer_store_dwordx4 v[20:23], v11, s[32:35], s26 offen {stf}")
    if ts:
        A.i("v_lshrrev_b32 v1, 6, v0")
        A.i("s_nop 0")
        A.i("v_readfirstlane_b32 s20, v1")
        ts_end(A, name, 10)
    A.label(f"{name}_done")
    A.i("s_endpgm")
    kernel_desc(A, name, 104, 72)
    return (256, 512, 16384)
```

```python
from build import *
base = dict(g1=dict(stf="sc0 sc1"))
full('a_ts.s', ts=True, k1=dict(pw1=True, pw2=True), **base)
full('b_ts.s', ts=True, k0=dict(code=("k1_kernel","code_end")), k1=dict(pw1=True, pw2=True), **base)
full('z1.s', k1=dict(pw1=True, pw2=True), **base)
full('z2.s', k0=dict(code=("k1_kernel","code_end")), k1=dict(pw1=True, pw2=True), **base)
```

```python
from asmlib import *
TSIDX = {'f1':1,'k0':0,'k1':1,'k2':2,'g1':3,'g2':4}
def ts_begin(A):
    A.i("s_memrealtime s[40:41]")
    A.i("s_memtime s[48:49]")
    for j in range(6):
        A.i(f"s_mov_b32 s{84+2*j}, 0")
CYC = False
def ts_mark(A, j):
    A.i(f"{'s_memtime' if (CYC and j % 2) else 's_memrealtime'} s[{84+2*j}:{85+2*j}]")
DBG = False
def dbg_end(A, name, wave, wsreg=4):
    k = TSIDX.get(name[:2], 0)
    A.i("s_waitcnt vmcnt(0)")
    A.i("s_memrealtime s[42:43]")
    A.i(f"s_load_dwordx2 s[44:45], s[0:1], {KA['dbg']}")
    A.i("s_waitcnt lgkmcnt(0)")
    A.i(f"s_cmp_lg_u32 s20, {wave}")
    A.i(f"s_cbranch_scc1 {name}_done")
    A.i(f"s_cmp_lg_u32 s2, {DBG_WG}")
    A.i(f"s_cbranch_scc1 {name}_done")
    A.i("s_mov_b32 s46, 256")
    A.i("s_mov_b32 s47, 0x20000")
    srd(A, 76, wsreg, 256, WS['ts'])
    A.i("v_mov_b32 v16, s40"); A.i("v_mov_b32 v17, s42"); A.i(f"v_mov_b32 v18, s{84+2*DBG_MARK.get(name[:2],0)}")
    A.i("v_mov_b32 v20, 0")
    A.i(f"buffer_store_dwordx3 v[16:18], v20, s[76:79], 0 offen offset:{12*k} sc0 sc1")
    A.i(f"v_mov_b32 v21, {0x1111*(k+1)}")
    A.i("buffer_store_dword v21, v20, s[44:47], 0 offen offset:60")
    if name[:2] == DBG_LAST:
        A.i("s_waitcnt vmcnt(0)")
        A.i("v_mbcnt_lo_u32_b32 v22, -1, 0")
        A.i("v_min_u32 v22, 14, v22")
        A.i("v_lshlrev_b32 v22, 2, v22")
        A.i("buffer_load_dword v23, v22, s[76:79], 0 offen sc0 sc1")
        A.i("s_waitcnt vmcnt(0)")
        A.i("buffer_store_dword v23, v22, s[44:47], 0 offen")
        if SPIN is not None:
            a, b = SPIN
            A.i(f"v_readlane_b32 s46, v23, {a}")
            A.i(f"v_readlane_b32 s47, v23, {b}")
            A.i("s_nop 3")
            A.i("s_sub_u32 s46, s46, s47")
            A.i("s_min_u32 s46, s46, 10000")
            A.i("s_mul_i32 s46, s46, 4")
            A.i("s_add_u32 s46, s46, 1500")
            A.i("s_add_u32 s46, s46, s42")
            A.label(f"{name}_spin")
            A.i("s_memrealtime s[44:45]")
            A.i("s_waitcnt lgkmcnt(0)")
            A.i("s_sub_u32 s45, s46, s44")
            A.i("s_cmp_gt_i32 s45, 0")
            A.i(f"s_cbranch_scc1 {name}_spin")
DBG_LAST = 'g2'
SPIN = None
DBG_WG = 0
DBG_MARK = {'k0':1,'k1':2,'k2':3,'g1':1,'g2':1}
def ts_end(A, name, wsreg=4, wave=0):
    if DBG: return dbg_end(A, name, wave, wsreg)
    tso = TSIDX.get(name[:2], 0) * 16384
    A.i("s_waitcnt vmcnt(0)")
    A.i("s_memrealtime s[42:43]")
    A.i("s_memtime s[50:51]")
    A.i("s_waitcnt lgkmcnt(0)")
    A.i(f"s_cmp_lg_u32 s20, {wave}")
    A.i(f"s_cbranch_scc1 {name}_done")
    srd(A, 44, wsreg, 16384, WS['ts'] + tso)
    A.i("v_mov_b32 v16, s40"); A.i("v_mov_b32 v17, s41"); A.i("v_mov_b32 v18, s42"); A.i("v_mov_b32 v19, s43")
    A.i("s_lshl_b32 s27, s2, 6")
    A.i("v_mov_b32 v20, s27")
    A.i("buffer_store_dwordx4 v[16:19], v20, s[44:47], 0 offen")
    A.i("v_mov_b32 v24, s48"); A.i("v_mov_b32 v25, s49"); A.i("v_mov_b32 v26, s50"); A.i("v_mov_b32 v27, s51")
    A.i("buffer_store_dwordx4 v[24:27], v20, s[44:47], 0 offen offset:16")
    for j in range(6):
        A.i(f"v_mov_b32 v{28+j}, s{84+2*j}")
    A.i("buffer_store_dwordx4 v[28:31], v20, s[44:47], 0 offen offset:32")
    A.i("buffer_store_dwordx2 v[32:33], v20, s[44:47], 0 offen offset:48")

def gen_bw(A, name, dma=True, waves=4, depth=8, iters=176, flags="", foot=1<<20, share=True, rowseg=0):
    kernel_head(A, name)
    A.i("s_cmp_ge_u32 s2, 256")
    A.i(f"s_cbranch_scc1 {name}_done")
    A.i(f"s_load_dwordx2 s[4:5], s[0:1], {KA['ws']}")
    A.i("v_lshrrev_b32 v1, 6, v0")
    A.i("v_and_b32 v2, 63, v0")
    A.i("v_readfirstlane_b32 s20, v1")
    A.i("s_waitcnt lgkmcnt(0)")
    srd(A, 8, 4, 128*MB, 64*MB)
    if rowseg == 0:
        A.i("v_lshlrev_b32 v4, 4, v2")
    else:
        lpr = rowseg // 16
        A.i(f"v_and_b32 v5, {lpr-1}, v2")
        A.i(f"v_lshrrev_b32 v6, {lpr.bit_length()-1}, v2")
        A.i("v_lshlrev_b32 v5, 4, v5")
        A.i("v_lshl_add_u32 v4, v6, 11, v5")
    A.i("s_and_b32 s21, s2, 7")
    A.i(f"s_mul_i32 s21, s21, {foot}")
    A.i("s_lshr_b32 s22, s2, 3")
    if share:
        A.i("s_and_b32 s22, s22, 3")
    A.i(f"s_mul_i32 s22, s22, {waves}")
    A.i("s_add_u32 s22, s22, s20")
    A.i(f"s_mul_i32 s22, s22, {1024 if rowseg==0 else rowseg}")
    step = (4 if share else 32) * waves * 1024
    A.i("s_lshl_b32 s33, s20, 13")
    A.i("s_barrier")
    ts_begin(A)
    A.i(f"s_mov_b32 s23, {iters//depth}")
    A.label(f"{name}_loop")
    for d in range(depth):
        A.i(f"s_add_u32 m0, s33, {(d%8)*1024}")
        A.i("s_add_u32 s25, s21, s22")
        if dma:
            A.i(f"buffer_load_dwordx4 v4, s[8:11], s25 offen {flags} lds")
        else:
            A.i(f"buffer_load_dwordx4 {v(32+4*d,4)}, v4, s[8:11], s25 offen {flags}")
        A.i(f"s_add_u32 s22, s22, {step}")
        A.i(f"s_and_b32 s22, s22, {foot-1}")
        A.i(f"s_waitcnt vmcnt({depth-1})")
    A.i("s_sub_u32 s23, s23, 1")
    A.i("s_cmp_lg_u32 s23, 0")
    A.i(f"s_cbranch_scc1 {name}_loop")
    ts_end(A, name)
    A.label(f"{name}_done")
    A.i("s_endpgm")
    kernel_desc(A, name, 128, 64)
    return (256, 64*waves, 8192*waves)
```

```python
from asmlib import *
from bw import ts_begin, ts_end, ts_mark
from k2 import wave_reduce
LOG2E = 0x3fb8aa3b
WT = "sc0 sc1"

P_WS, P_Q = 4, 6
P_SSM, P_D, P_W1, P_W2, P_C, P_WM, P_OUT = 64, 66, 70, 72, 74, 76, 78
FL = 56
F_X, F_H2, F_ACT, F_KV = 0, 512, 640, 768
F_BAR = 256*1024
F_NONCE = 300*1024 + 52
SV = 83
P_K, P_V, P_SH = 96, 98, 100

def poll(A, tag, vaddr, vt=15, cnt=60, wide=False):
    val = f"s{SV}"
    A.i(f"s_mov_b32 s{cnt}, 0x40000")
    A.label(tag)
    if wide: A.i(f"buffer_load_dwordx4 {v(vt,4)}, {v(vaddr)}, s[{FL}:{FL+3}], 0 offen {WT}")
    else:    A.i(f"buffer_load_dword {v(vt)}, {v(vaddr)}, s[{FL}:{FL+3}], 0 offen {WT}")
    A.i(f"s_sub_u32 s{cnt}, s{cnt}, 1")
    A.i(f"s_cmp_eq_u32 s{cnt}, 0")
    A.i(f"s_cbranch_scc1 {tag}_out")
    A.i("s_waitcnt vmcnt(0)")
    if wide:
        for r in range(4): A.i(f"v_xor_b32 {v(vt+r)}, {val}, {v(vt+r)}")
        A.i(f"v_or3_b32 {v(vt)}, {v(vt)}, {v(vt+1)}, {v(vt+2)}")
        A.i(f"v_or_b32 {v(vt)}, {v(vt)}, {v(vt+3)}")
        val = "0"
    A.i(f"v_cmp_ne_u32 vcc, {val}, {v(vt)}")
    A.i("s_nop 1")
    A.i(f"s_cbranch_vccnz {tag}")
    A.label(f"{tag}_out")

def gen_f(A, name="f1_kernel", ts=False, nt="nt", outf="", pw1=True, pw2=True, marks=(0,1,2,3,4,5), tsw=0, prio=0):
    N = name
    def mark(j):
        if ts and j in marks: ts_mark(A, marks.index(j))
    WB, HC = 24320, 4160
    XO = 4*HC
    GP = 4*WB
    CNT = GP + 1024
    G1W, G1X = 0, 86016
    LNP, LNY, LNT = 86016, 135168, 151552
    G2W, G2X = 0, 65536
    XROW = 176
    HH = 192
    P0B = 135168

    kernel_head(A, N)
    A.i("s_cmp_ge_u32 s2, 256")
    A.i(f"s_cbranch_scc1 {N}_done")
    A.i(f"s_load_dwordx4 s[{P_K}:{P_K+3}], s[0:1], {KA['k']}")
    A.i(f"s_load_dwordx2 s[{P_SH}:{P_SH+1}], s[0:1], {KA['shift']}")
    A.i(f"s_load_dwordx16 s[64:79], s[0:1], {KA['ssm']}")
    A.i(f"s_load_dwordx2 s[4:5], s[0:1], {KA['ws']}")
    A.i(f"s_load_dwordx2 s[6:7], s[0:1], {KA['q']}")
    if ts: ts_begin(A)
    A.i(f"v_mov_b32 v14, {CNT}")
    A.i("v_mov_b32 v4, 0")
    A.i("v_mov_b32 v5, 0")
    A.i("ds_write_b64 v14, v[4:5]")
    A.i("v_lshrrev_b32 v1, 6, v0")
    A.i("v_and_b32 v2, 63, v0              ; lane")
    A.i("v_readfirstlane_b32 s20, v1       ; wave")
    A.i("s_and_b32 s21, s2, 7")
    A.i("s_lshl_b32 s21, s21, 1")
    A.i("s_bfe_u32 s22, s2, 0x10003")
    A.i("s_add_u32 s21, s21, s22           ; cb")
    A.i("s_lshr_b32 s22, s2, 4             ; rb")
    A.i("v_and_b32 v1, 15, v0              ; cc")
    A.i("v_lshrrev_b32 v9, 4, v0           ; rg")
    A.i("s_lshl_b32 s23, s22, 18")
    A.i("s_lshl_b32 s24, s21, 7")
    A.i("s_add_u32 s23, s23, s24")
    A.i(f"s_sub_u32 s23, s23, {3*2048}")
    A.i("v_lshlrev_b32 v3, 13, v9")
    A.i("v_lshl_add_u32 v3, v1, 3, v3")
    A.i("v_add_u32 v3, s23, v3")
    A.i("v_add_u32 v4, 4096, v3")
    A.i("v_add_u32 v5, 6144, v3")
    A.i("v_add_u32 v6, 10240, v3")
    A.i("s_lshl_b32 s24, s21, 9")
    A.i("v_lshlrev_b32 v7, 5, v1")
    A.i("s_waitcnt lgkmcnt(0)")
    srd(A, 12, P_K, 4*MB)
    srd(A, 16, P_V, 4*MB)
    K, V, W = 16, 32, 40
    addr = [(3,0),(3,2048),(4,0),(5,0),(5,2048),(6,0),(6,2048)]
    for j,(r,o) in enumerate(addr):
        A.i(f"buffer_load_dwordx2 {v(K+2*j,2)}, v{r}, s[12:15], 0 offen offset:{o} {nt}")
    for j in range(4):
        r,o = addr[3+j]
        A.i(f"buffer_load_dwordx2 {v(V+2*j,2)}, v{r}, s[16:19], 0 offen offset:{o} {nt}")
    srd(A, 28, P_SH, 8192)
    A.i(f"buffer_load_dwordx4 {v(W,4)}, v7, s[28:31], s24 offen")
    A.i(f"buffer_load_dwordx4 {v(W+4,4)}, v7, s[28:31], s24 offen offset:16")
    srd(A, FL, P_WS, 512*1024, WS['flag'])
    A.i(f"s_load_dword s{SV}, s[{FL}:{FL+1}], {F_NONCE}")
    A.i("v_lshlrev_b32 v3, 4, v2           ; lane*16")
    A.i("s_and_b32 s62, s2, 7")
    A.i("s_lshl_b32 s62, s62, 5")
    A.i("s_lshr_b32 s63, s2, 3")
    A.i("s_add_u32 s62, s62, s63")
    A.i("s_cmp_ge_u32 s20, 4")
    A.i(f"s_cbranch_scc1 {N}_noh")
    A.i("s_lshl_b32 s63, s62, 2")
    A.i("s_add_u32 s63, s63, s20           ; channel d")
    A.i("s_lshl_b32 s60, s63, 12")
    srd(A, 8, P_SSM, 4*MB)
    for u in range(4):
        A.i(f"buffer_load_dwordx4 {v(HH+4*u,4)}, v3, s[8:11], s60 offen offset:{1024*u} {nt}")
    A.i("s_lshr_b32 s60, s63, 1")
    A.i("s_lshl_b32 s60, s60, 2")
    A.i(f"s_load_dword s82, s[{P_D}:{P_D+1}], s60                 ; D pair")
    A.i(f"s_branch {N}_h1")
    A.label(f"{N}_noh")
    A.i("s_getpc_b64 s[8:9]")
    A.label(f"{N}_pc")
    A.i(f"s_add_u32 s8, s8, {N}_p0end-{N}_pc")
    A.i("s_addc_u32 s9, s9, 0")
    A.i("s_cmp_lt_u32 s2, 8")
    A.i(f"s_cselect_b32 s10, code_end-{N}_p0end, 0")
    A.i("s_mov_b32 s11, 0x20000")
    A.i("v_and_b32 v10, 0xff, v0")
    A.i("v_lshlrev_b32 v10, 7, v10")
    for u in range(4):
        A.i(f"buffer_load_dword {v(HH+u)}, v10, s[8:11], 0 offen" if u == 0 else "s_nop 0")
        if u: A.lines.pop()
    for u in range(3):
        A.i(f"buffer_load_dword {v(HH+1+u)}, v10, s[8:11], 0 offen offset:4")
    A.label(f"{N}_h1")
    srd(A, 32, P_WS, 4*MB, WS['kvT'])
    A.i("v_lshrrev_b32 v8, 1, v9")
    A.i("v_and_b32 v10, 7, v1")
    A.i("v_xor_b32 v8, v8, v10")
    A.i("v_lshlrev_b32 v8, 4, v8")
    A.i("v_lshl_add_u32 v8, v1, 10, v8")
    A.i("v_and_b32 v10, 1, v9")
    A.i("v_xor_b32 v10, 1, v10")
    A.i("v_lshl_add_u32 v8, v10, 3, v8")
    A.i(f"v_add_u32 v8, {P0B}, v8")
    A.i("v_lshrrev_b32 v10, 6, v0")
    A.i("v_xor_b32 v10, v10, v1")
    A.i("v_lshlrev_b32 v10, 4, v10")
    A.i("v_lshl_add_u32 v10, v9, 8, v10")
    A.i(f"v_add_u32 v10, {P0B}, v10")
    A.i("v_lshlrev_b32 v11, 4, v1")
    A.i("v_lshl_add_u32 v11, v9, 12, v11")
    A.i("s_lshl_b32 s25, s21, 18")
    A.i("s_lshl_b32 s26, s22, 8")
    A.i("s_add_u32 s25, s25, s26")
    A.i("s_add_u32 s26, s25, 0x20000")
    A.i("s_mov_b32 s27, 0xffff0000")
    A.i("s_lshl_b32 s23, s21, 4")
    A.i("s_add_u32 s23, s23, s22")
    A.i("s_lshl_b32 s23, s23, 10")
    A.i("s_lshl_b32 s24, s20, 2")
    A.i("s_add_u32 s23, s23, s24")
    A.i("s_waitcnt vmcnt(4)")
    WU = 48
    for pr in range(2):
        for e in range(2):
            ch = 2*pr + e
            for tap in range(4):
                src = W + 2*ch + tap//2
                dst = WU + (pr*4+tap)*2 + e
                if tap % 2 == 0: A.i(f"v_lshlrev_b32 {v(dst)}, 16, {v(src)}")
                else:            A.i(f"v_and_b32 {v(dst)}, s27, {v(src)}")
    KU, VU, R = 64, 80, 88
    for pr in range(2):
        for j in range(7):
            A.i(f"v_lshlrev_b32 {v(KU+2*j)}, 16, {v(K+2*j+pr)}")
            A.i(f"v_and_b32 {v(KU+2*j+1)}, s27, {v(K+2*j+pr)}")
        for j in range(4):
            A.i(f"v_lshlrev_b32 {v(VU+2*j)}, 16, {v(V+2*j+pr)}")
            A.i(f"v_and_b32 {v(VU+2*j+1)}, s27, {v(V+2*j+pr)}")
        w = lambda tap: v(WU+(pr*4+tap)*2, 2)
        for r in range(4):
            A.i(f"v_pk_mul_f32 {v(R+2*r,2)}, {v(KU+2*r,2)}, {w(3)}")
        for tap in (2,1,0):
            for r in range(4):
                A.i(f"v_pk_fma_f32 {v(R+2*r,2)}, {v(KU+2*(r+3-tap),2)}, {w(tap)}, {v(R+2*r,2)}")
        for r in range(4):
            A.i(f"v_pk_mul_f32 {v(R+2*r,2)}, {v(R+2*r,2)}, {v(VU+2*r,2)}")
        for e in range(2):
            d = 96 + (pr*2+e)*2
            A.i(f"v_cvt_pk_bf16_f32 {v(d)}, {v(R+6+e)}, {v(R+4+e)}")
            A.i(f"v_cvt_pk_bf16_f32 {v(d+1)}, {v(R+2+e)}, {v(R+e)}")
            A.i(f"ds_write_b64 v8, {v(d,2)} offset:{(2*pr+e)*256}")
    A.i("s_waitcnt lgkmcnt(0)")
    A.i("s_barrier                         ; b0")
    A.i("ds_read_b128 v[16:19], v10")
    A.i("ds_read_b128 v[20:23], v10 offset:8192")
    A.i(f"s_mul_i32 s{SV}, s{SV}, 0x9e3779b1")
    A.i(f"s_add_u32 s{SV}, s{SV}, 0x7f4a7c15")
    A.i("s_mov_b32 s21, s62")
    A.i("s_lshl_b32 s61, s21, 3")
    A.i("s_add_u32 s61, s61, s20")
    A.i("s_lshl_b32 s61, s61, 11")
    A.i("s_waitcnt lgkmcnt(1)")
    A.i(f"buffer_store_dwordx4 v[16:19], v11, s[32:35], s25 offen {WT}")
    A.i("s_waitcnt lgkmcnt(0)")
    A.i(f"buffer_store_dwordx4 v[20:23], v11, s[32:35], s26 offen {WT}")
    A.i("v_mov_b32 v12, 0")
    A.i(f"v_mov_b32 v13, s{SV}")
    A.label(f"{N}_p0end")
    mark(20)
    A.i("s_cmp_ge_u32 s20, 4")
    A.i(f"s_cbranch_scc1 {N}_L")

    def xrow_load():
        srd(A, 8, P_Q, 4*MB)
        for hf in range(2):
            A.i(f"buffer_load_dwordx4 {v(XROW+hf*4,4)}, v3, s[8:11], s61 offen offset:{hf*1024} {nt}")

    NP = 1 if pw1 else 0
    def w1_pref():
        if pw1:
            srd(A, 12, P_W1, 1024*7168)
            A.i("s_lshl_b32 s30, s2, 2")
            A.i("s_add_u32 s30, s30, s63")
            A.i(f"s_mul_i32 s30, s30, {56*128}")
            A.i("v_min_u32 v11, 55, v2")
            A.i("v_lshlrev_b32 v11, 7, v11")
            A.i("buffer_load_dword v12, v11, s[12:15], s30 offen")

    X, Y, M, XF, MF, T, H = 16, 24, 32, 72, 88, 136, 144
    def unpack(dst, src):
        A.i(f"v_lshlrev_b32 {v(dst)}, 16, {v(src)}")
        A.i(f"v_and_b32 {v(dst+1)}, s27, {v(src)}")
    def stats():
        A.i(f"v_pk_add_f32 v[8:9], {v(XF,2)}, {v(XF+2,2)}")
        A.i(f"v_pk_mul_f32 v[10:11], {v(XF,2)}, {v(XF,2)}")
        A.i(f"v_pk_fma_f32 v[10:11], {v(XF+2,2)}, {v(XF+2,2)}, v[10:11]")
        for q in range(2, 8):
            b = XF + 2*q
            A.i(f"v_pk_add_f32 v[8:9], v[8:9], {v(b,2)}")
            A.i(f"v_pk_fma_f32 v[10:11], {v(b,2)}, {v(b,2)}, v[10:11]")
        A.i("v_add_f32 v12, v8, v9")
        A.i("v_add_f32 v13, v10, v11")
        wave_reduce(A, [12, 13])
        A.i("s_nop 0")
        A.i("v_readlane_b32 s52, v12, 63")
        A.i("v_readlane_b32 s53, v13, 63")
        A.i("s_nop 1")
        A.i("v_mov_b32 v10, s52")
        A.i("v_mov_b32 v11, s53")
        A.i("v_mul_f32 v10, s36, v10           ; mean")
        A.i("v_mul_f32 v11, s36, v11           ; E[x^2]")
        A.i("v_fma_f32 v11, -v10, v10, v11     ; var")
        A.i("v_max_f32 v11, 0, v11")
        A.i("v_add_f32 v11, s37, v11")
        A.i("v_rsq_f32 v8, v11")
        A.i("s_nop 0")
        A.i("v_mul_f32 v10, -v10, v8")
    def ln_pre():
        A.i("s_mov_b32 s27, 0xffff0000")
        A.i("s_mov_b32 s36, 0x3a800000         ; 1/1024")
        A.i("s_mov_b32 s37, 0x3727c5ac         ; 1e-5")
        A.i("v_lshrrev_b32 v4, 4, v2")
        A.i("v_xor_b32 v4, v4, v2")
        A.i("v_and_b32 v4, 3, v4")
        A.i("v_lshlrev_b32 v4, 4, v4")
        A.i("v_lshrrev_b32 v5, 2, v2")
        A.i("v_lshl_add_u32 v4, v5, 14, v4")
        A.i("s_lshl_b32 s23, s20, 20")
        A.i("s_lshl_b32 s24, s21, 6")
        A.i("s_add_u32 s23, s23, s24")
        A.i("s_lshr_b32 s25, s20, 1")
        A.i("v_lshrrev_b32 v5, 1, v2")
        A.i("v_xor_b32 v5, s25, v5")
        A.i("v_and_b32 v5, 3, v5")
        A.i("v_lshlrev_b32 v5, 4, v5")
        A.i("v_lshl_add_u32 v5, v2, 7, v5")
        A.i("s_and_b32 s25, s20, 1")
        A.i("s_lshl_b32 s25, s25, 3")
        A.i(f"s_add_u32 s25, s25, {LNY}")
        A.i("v_add_u32 v5, s25, v5")
        A.i(f"v_add_u32 v6, {LNT}, v3")
        A.i("v_lshlrev_b32 v7, 4, v0")
        A.i(f"v_add_u32 v7, {LNP}, v7")
        A.i("v_lshlrev_b32 v14, 3, v0")
        A.i(f"v_add_u32 v14, {LNT}, v14")
        srd(A, 12, P_WS, 4*MB, WS['y4'])
        srd(A, 16, P_WS, 2*24576, WS['mod'])
        srd(A, 28, P_WS, 4*MB, WS['x1'])
        srd(A, 32, P_WS, 4*MB, WS['h2'])
        A.i("s_lshl_b32 s25, s20, 12")
        A.i(f"s_add_u32 s25, s25, {LNY}")
        A.i("s_lshl_b32 s26, s20, 10")
        for q in range(8):
            unpack(XF + 2*q, XROW + q)
        stats()
    def ln_main(hi):
        if not hi:
            for e in range(4):
                A.i(f"s_add_u32 m0, s25, {1024*e}")
                A.i(f"s_add_u32 s22, s23, {0x40000*e}")
                A.i(f"buffer_load_dwordx4 v4, s[12:15], s22 offen {WT} lds")
            for r in range(10):
                A.i(f"s_add_u32 m0, s26, {LNP + r*4096}")
                A.i(f"s_add_u32 s22, s26, {r*4096 + (4096 if r >= 5 else 0)}")
                A.i(f"buffer_load_dwordx4 v3, s[16:19], s22 offen {WT} lds")
            A.i("s_waitcnt vmcnt(0)")
        if not hi: mark(16)
        A.i("s_barrier                         ; b4")
        if not hi: mark(17)
        rounds = [0, 1] if hi else [0, 1, 2]
        for r in rounds:
            A.i(f"ds_read_b128 {v(32+8*r,4)}, v7 offset:{8192*r}")
            A.i(f"ds_read_b128 {v(36+8*r,4)}, v7 offset:{8192*r + 20480}")
        for r in rounds:
            b = 32 + 8*r
            A.i(f"s_waitcnt lgkmcnt({2*(len(rounds)-1-r)})")
            A.i(f"v_pk_add_f32 {v(b,2)}, {v(b,2)}, {v(b+4,2)}")
            A.i(f"v_pk_add_f32 {v(b+2,2)}, {v(b+2,2)}, {v(b+6,2)}")
            A.i(f"v_cvt_pk_bf16_f32 {v(b+4)}, {v(b)}, {v(b+1)}")
            A.i(f"v_cvt_pk_bf16_f32 {v(b+5)}, {v(b+2)}, {v(b+3)}")
            if (r == 0 and hi) or r == 2:
                unpack(b, b+4); unpack(b+2, b+5)
                A.i(f"v_pk_add_f32 {v(b,2)}, {v(b,2)}, 1.0 op_sel_hi:[1,0]")
                A.i(f"v_pk_add_f32 {v(b+2,2)}, {v(b+2,2)}, 1.0 op_sel_hi:[1,0]")
                A.i(f"v_cvt_pk_bf16_f32 {v(b+4)}, {v(b)}, {v(b+1)}")
                A.i(f"v_cvt_pk_bf16_f32 {v(b+5)}, {v(b+2)}, {v(b+3)}")
            A.i(f"ds_write_b64 v14, {v(b+4,2)} offset:{4096*r}")
        for hf in range(2):
            for e in range(2):
                A.i(f"ds_read_b64 {v(Y+(hf*2+e)*2,2)}, v5 offset:{hf*8192 + e*64}")
        A.i("s_waitcnt lgkmcnt(0)")
        A.i("s_barrier                         ; b5")
        if not hi: mark(18)
        for vec in (1, 0, 2, 4, 3):
            for hf in range(2):
                A.i(f"ds_read_b128 {v(M+(vec*2+hf)*4,4)}, v6 offset:{vec*2048 + hf*1024}")
        SA, CA, GA = MF, MF+16, MF+32
        for q in range(8):
            A.i(f"v_pk_fma_f32 {v(H+2*q,2)}, {v(XF+2*q,2)}, v[8:9], v[10:11] op_sel_hi:[1,0,0]")
        A.i("s_waitcnt lgkmcnt(6)")
        for q in range(8):
            unpack(CA+2*q, M+8+q); unpack(SA+2*q, M+q)
            A.i(f"v_pk_fma_f32 {v(H+2*q,2)}, {v(H+2*q,2)}, {v(CA+2*q,2)}, {v(SA+2*q,2)}")
        A.i("s_waitcnt lgkmcnt(4)")
        for q in range(8):
            t = T + (q % 2) * 2
            unpack(t, Y + q); unpack(GA+2*q, M+16+q)
            A.i(f"v_pk_mul_f32 {v(H+2*q,2)}, {v(H+2*q,2)}, {v(t,2)}")
            A.i(f"v_pk_fma_f32 {v(H+2*q,2)}, {v(H+2*q,2)}, {v(GA+2*q,2)}, {v(XF+2*q,2)}")
            A.i(f"v_cvt_pk_bf16_f32 {v(X+q)}, {v(H+2*q)}, {v(H+2*q+1)}")
            unpack(XF+2*q, X+q)
        for hf in range(2):
            A.i(f"buffer_store_dwordx4 {v(X+hf*4,4)}, v3, s[28:31], s61 offen offset:{hf*1024} {WT}")
        stats()
        A.i("s_waitcnt lgkmcnt(0)")
        SB, CB = MF, MF+16
        for q in range(8):
            unpack(CB+2*q, M+32+q); unpack(SB+2*q, M+24+q)
            A.i(f"v_pk_fma_f32 {v(H+2*q,2)}, {v(XF+2*q,2)}, v[8:9], v[10:11] op_sel_hi:[1,0,0]")
            A.i(f"v_pk_fma_f32 {v(H+2*q,2)}, {v(H+2*q,2)}, {v(CB+2*q,2)}, {v(SB+2*q,2)}")
            A.i(f"v_cvt_pk_bf16_f32 {v(Y+q)}, {v(H+2*q)}, {v(H+2*q+1)}")
        for hf in range(2):
            A.i(f"buffer_store_dwordx4 {v(Y+hf*4,4)}, v3, s[32:35], s61 offen offset:{hf*1024} {WT}")
        A.i("s_lshl_b32 s22, s21, 10")
        A.i("s_lshl_b32 s23, s20, 2")
        A.i("s_add_u32 s22, s22, s23")
        A.i("v_mov_b32 v8, 0")
        A.i(f"v_mov_b32 v9, s{SV}")
    def ln_signal():
        A.i("s_waitcnt vmcnt(0)")
        A.i(f"buffer_store_dword v9, v8, s[{FL}:{FL+3}], s22 offen offset:{F_H2} {WT}")

    def g1_ids():
        A.i("s_and_b32 s21, s2, 1")
        A.i("s_lshl_b32 s21, s21, 3")
        A.i("s_bfe_u32 s27, s2, 0x30003")
        A.i("s_add_u32 s21, s21, s27            ; sblk")
        A.i("s_bfe_u32 s22, s2, 0x20001")
        A.i("s_lshl_b32 s22, s22, 2")
        A.i("s_lshr_b32 s27, s2, 6")
        A.i("s_add_u32 s22, s22, s27            ; fblk")
    def g2_ids():
        A.i("s_and_b32 s52, s2, 1               ; khalf")
        A.i("s_bfe_u32 s21, s2, 0x20001")
        A.i("s_lshl_b32 s21, s21, 2")
        A.i("s_bfe_u32 s27, s2, 0x20003")
        A.i("s_add_u32 s21, s21, s27            ; sblk")
        A.i("s_lshr_b32 s22, s2, 5")

    A.i("s_mov_b32 s22, s63                ; channel d")
    A.i(f"s_mul_i32 s62, s20, {WB}")
    A.i("s_lshl_b32 s24, s22, 12           ; d*4096")
    Hh, XR = HH, 16
    A.i("v_mov_b32 v32, 0"); A.i("v_mov_b32 v33, 0"); A.i("v_mov_b32 v34, 0"); A.i("v_mov_b32 v35, 0")

    A.i("v_add_u32 v4, s62, v3")
    A.i(f"ds_write_b128 v4, v[32:35] offset:{XO}")
    A.i("v_min_u32 v5, 25, v2")
    A.i("v_lshlrev_b32 v5, 4, v5")
    A.i("v_add_u32 v5, s62, v5")
    A.i(f"ds_write_b128 v5, v[32:35] offset:{XO+1024}")
    A.i("v_and_b32 v6, 15, v2              ; r / i")
    A.i("v_lshrrev_b32 v7, 4, v2           ; g")
    A.i("v_and_b32 v8, 3, v6")
    A.i(f"v_mul_u32_u24 v8, {HC}, v8")
    A.i("v_lshl_add_u32 v5, v7, 4, v8")
    A.i("v_add_u32 v5, s62, v5")
    A.i("ds_write_b128 v5, v[32:35]")
    A.i("v_lshrrev_b32 v5, 2, v2")
    A.i("v_mul_u32_u24 v5, 96, v5")
    A.i("v_and_b32 v9, 3, v2")
    A.i("v_lshl_add_u32 v5, v9, 4, v5")
    A.i("v_add_u32 v5, s62, v5")
    A.i("v_lshrrev_b32 v9, 2, v6")
    A.i("v_lshlrev_b32 v10, 1, v7")
    A.i("v_sub_u32 v9, v9, v10")
    A.i("v_add_u32 v9, 7, v9")
    A.i("v_lshl_add_u32 v8, v9, 3, v8")
    A.i("v_add_u32 v8, s62, v8             ; vA")
    A.i("v_mul_u32_u24 v9, 96, v6")
    A.i("v_lshl_add_u32 v9, v7, 4, v9")
    A.i(f"s_add_u32 s25, s62, {XO + 96*14}")
    A.i("v_add_u32 v9, s25, v9             ; vB - 96")
    ACC = 48
    FS = [80, 128]
    for r in range(32):
        A.i(f"v_mov_b32 {v(ACC+r)}, 0")
    DI = 36
    A.i("v_lshlrev_b32 v10, 3, v7")
    A.i("v_add_u32 v10, 7, v10")
    A.i("v_sub_u32 v10, v10, v6")
    A.i("v_and_b32 v11, 1, v10")
    A.i("v_lshlrev_b32 v11, 4, v11")
    A.i("v_ashrrev_i32 v10, 1, v10")
    A.i("s_and_b32 s25, s22, 1")
    A.i("s_lshl_b32 s25, s25, 4")
    A.i("s_lshr_b32 s82, s82, s25")
    A.i("s_and_b32 s82, s82, 0xffff")
    A.i("v_lshlrev_b32 v11, v11, s82")
    for rt in range(2):
        for q in range(4):
            A.i(f"v_cmp_eq_u32 s[{8+2*q}:{9+2*q}], {q + 8*rt}, v10")
        for q in range(4):
            A.i(f"v_cndmask_b32 {v(DI+4*rt+q)}, 0, v11, s[{8+2*q}:{9+2*q}]")
    A.i("s_waitcnt vmcnt(0)")
    A.i(f"buffer_store_dword v13, v12, s[{FL}:{FL+3}], s23 offen offset:{F_KV} {WT}")
    mark(21)
    P, TT = 96, 100
    for u in range(4):
        R = Hh + 4*u
        p = P + 2*(u % 2)
        t = TT + 12*(u % 2)
        if u == 0:
            A.i(f"v_mov_b32 {v(p)}, 0"); A.i(f"v_mov_b32 {v(p+1)}, 0")
        else:
            A.i(f"v_mov_b32_dpp {v(p)}, {v(R-2)} wave_ror:1 row_mask:0xf bank_mask:0xf")
            A.i(f"v_mov_b32_dpp {v(p+1)}, {v(R-1)} wave_ror:1 row_mask:0xf bank_mask:0xf")
        A.i(f"ds_write_b128 v4, {v(R,4)} offset:{3*HC + 64 + 1024*u}")
        A.i(f"v_mov_b32_dpp {v(p)}, {v(R+2)} wave_shr:1 row_mask:0xf bank_mask:0xf")
        A.i(f"v_mov_b32_dpp {v(p+1)}, {v(R+3)} wave_shr:1 row_mask:0xf bank_mask:0xf")
        A.i(f"v_alignbit_b32 {v(t+5)}, {v(R+1)}, {v(R)}, 16")
        A.i(f"v_alignbit_b32 {v(t+6)}, {v(R+2)}, {v(R+1)}, 16")
        A.i(f"v_alignbit_b32 {v(t+7)}, {v(R+3)}, {v(R+2)}, 16")
        A.i(f"v_alignbit_b32 {v(t+4)}, {v(R)}, {v(p+1)}, 16")
        A.i(f"ds_write_b128 v4, {v(t+4,4)} offset:{2*HC + 64 + 1024*u}")
        A.i(f"v_mov_b32 {v(t)}, {v(p+1)}")
        for e in range(3): A.i(f"v_mov_b32 {v(t+1+e)}, {v(R+e)}")
        A.i(f"ds_write_b128 v4, {v(t,4)} offset:{1*HC + 64 + 1024*u}")
        A.i(f"v_alignbit_b32 {v(t+8)}, {v(p+1)}, {v(p)}, 16")
        for e in range(3): A.i(f"v_mov_b32 {v(t+9+e)}, {v(t+4+e)}")
        A.i(f"ds_write_b128 v4, {v(t+8,4)} offset:{64 + 1024*u}")
    A.i("s_lshr_b32 s25, s21, 4")
    A.i("s_lshl_b32 s25, s25, 14")
    A.i("s_and_b32 s26, s21, 7")
    A.i("s_lshl_b32 s26, s26, 2")
    A.i("s_add_u32 s25, s25, s26")
    A.i(f"s_add_u32 s25, s25, {F_KV}")
    A.i("v_lshlrev_b32 v10, 10, v6")
    A.i("v_add_u32 v10, s25, v10")
    srd(A, 28, P_WS, 4*MB, WS['kvT'])
    poll(A, f"{N}_pk", 10)
    mark(22)
    for u in range(4):
        A.i(f"buffer_load_dwordx4 {v(XR+4*u,4)}, v3, s[28:31], s24 offen offset:{1024*u} {WT}")
    for u in range(4):
        A.i(f"s_waitcnt vmcnt({3-u})")
        A.i(f"ds_write_b128 v5, {v(XR+4*u,4)} offset:{XO + 96*15 + 96*16*u}")
    xrow_load()
    A.i("s_waitcnt lgkmcnt(0)")
    mark(0)
    def creads(fs, par):
        out = []
        F = FS[fs]
        def ar(j):
            for rt in range(2):
                for hb in range(2):
                    out.append(f"ds_read_b64 {v(F+(j*2+rt)*4+2*hb,2)}, v8 offset:{64*(par+16*j) + 32*rt + 8*hb}")
        ar(0)
        for d in range(4):
            out.append(f"ds_read_b128 {v(F+32+4*d,4)}, v9 offset:{96*(16*d + 1 - par)}")
        for j in range(1,4): ar(j)
        return out
    def cbody(fs, side):
        F = FS[fs]
        side = list(side)
        n = 0
        for j in range(4):
            A.i("s_waitcnt lgkmcnt(12)" if n == 0 else "s_waitcnt lgkmcnt(15)")
            for d in range(4-j):
                for rt in range(2):
                    ac = ACC + ((j+d)*2+rt)*4
                    A.i(f"v_mfma_f32_16x16x32_bf16 {v(ac,4)}, {v(F+(j*2+rt)*4,4)}, {v(F+32+4*d,4)}, {v(ac,4)}")
                    if side: A.i(side.pop(0))
                    n += 1
        for x in side: A.i(x)
    for x in creads(0, 0): A.i(x)
    A.i("s_waitcnt lgkmcnt(12)")
    for d in range(4):
        for rt in range(2):
            ac = ACC + (d*2+rt)*4
            A.i(f"v_mfma_f32_16x16x32_bf16 {v(ac,4)}, {v(DI+4*rt,4)}, {v(FS[0]+32+4*d,4)}, {v(ac,4)}")
    A.i("s_mov_b32 s26, 8")
    A(".p2align 6")
    A.label(f"{N}_cv")
    cbody(0, creads(1, 1))
    A.i("v_add_u32 v8, 128, v8")
    A.i("v_subrev_u32 v9, 192, v9")
    cbody(1, creads(0, 0))
    A.i("s_sub_u32 s26, s26, 1")
    A.i("s_cmp_lg_u32 s26, 0")
    A.i(f"s_cbranch_scc1 {N}_cv")
    A.i("v_mul_u32_u24 v10, 80, v6")
    A.i("v_lshl_add_u32 v10, v7, 3, v10")
    A.i("v_add_u32 v10, s62, v10")
    srd(A, 16, P_WS, 4*MB, WS['y4'])
    A.i("s_waitcnt lgkmcnt(0)")
    for G in range(4):
        for rt in range(2):
            ac = ACC + (G*2+rt)*4
            d = 16 + (G*2+rt)*2
            A.i(f"v_cvt_pk_bf16_f32 {v(d)}, {v(ac)}, {v(ac+1)}")
            A.i(f"v_cvt_pk_bf16_f32 {v(d+1)}, {v(ac+2)}, {v(ac+3)}")
            A.i(f"ds_write_b64 v10, {v(d,2)} offset:{80*16*G + 32*rt}")
    A.i("v_lshrrev_b32 v11, 4, v0")
    A.i("v_mul_u32_u24 v11, 80, v11")
    A.i("v_lshl_add_u32 v11, v6, 2, v11")
    A.i(f"v_add_u32 v13, {3*WB}, v11")
    A.i("v_lshlrev_b32 v12, 4, v0")
    A.i("s_lshl_b32 s25, s21, 14")
    A.i("s_mov_b32 s34, 0x05040100")
    A.i("s_mov_b32 s35, 0x07060302")
    A.i("s_waitcnt lgkmcnt(0)")
    mark(1)
    A.i("v_mov_b32 v15, 1")
    A.i("ds_add_u32 v14, v15")
    A.label(f"{N}_ys")
    A.i("ds_read_b32 v15, v14")
    A.i("s_waitcnt lgkmcnt(0)")
    A.i("v_cmp_ne_u32 vcc, 256, v15")
    A.i("s_nop 1")
    A.i(f"s_cbranch_vccnz {N}_ys")
    mark(12)
    for u in range(4):
        for ch in range(4):
            if ch < 3: A.i(f"ds_read_b32 {v(48+4*u+ch)}, v11 offset:{ch*WB + 80*16*u}")
            else:      A.i(f"ds_read_b32 {v(48+4*u+ch)}, v13 offset:{80*16*u}")
    for u in range(4):
        A.i(f"s_waitcnt lgkmcnt({12-4*u})")
        s0 = 48+4*u; d = 64+4*u
        A.i(f"v_perm_b32 {v(d)}, {v(s0+1)}, {v(s0)}, s34")
        A.i(f"v_perm_b32 {v(d+1)}, {v(s0+3)}, {v(s0+2)}, s34")
        A.i(f"v_perm_b32 {v(d+2)}, {v(s0+1)}, {v(s0)}, s35")
        A.i(f"v_perm_b32 {v(d+3)}, {v(s0+3)}, {v(s0+2)}, s35")
        A.i(f"s_add_u32 s26, s25, {4096*u}")
        A.i(f"buffer_store_dwordx4 {v(d,4)}, v12, s[16:19], s26 offen {WT}")
    A.i("s_waitcnt vmcnt(4)")
    mark(13)
    ln_pre()
    mark(14)
    A.i("s_waitcnt vmcnt(0)")
    mark(15)
    A.i("s_barrier                         ; b2")
    mark(2)
    A.i("s_cmp_lg_u32 s20, 0")
    A.i(f"s_cbranch_scc1 {N}_gb")
    A.i("s_lshr_b32 s22, s2, 4")
    A.i("s_lshl_b32 s22, s22, 7")
    A.i("s_and_b32 s60, s2, 15")
    A.i("s_lshl_b32 s60, s60, 2")
    A.i("s_add_u32 s22, s22, s60")
    A.i(f"v_mov_b32 v12, {F_BAR}")
    A.i(f"v_mov_b32 v13, s{SV}")
    A.i(f"buffer_store_dword v13, v12, s[{FL}:{FL+3}], s22 offen {WT}")
    A.i("v_lshrrev_b32 v12, 2, v2")
    A.i("v_lshlrev_b32 v12, 7, v12")
    A.i("v_and_b32 v16, 3, v2")
    A.i("v_lshl_add_u32 v12, v16, 4, v12")
    A.i(f"v_add_u32 v12, {F_BAR}, v12")
    poll(A, f"{N}_pg", 12, vt=16, wide=True)
    A.i("s_cmp_lg_u32 s2, 0")
    A.i(f"s_cbranch_scc1 {N}_gb")
    A.i(f"v_mov_b32 v12, {F_NONCE}")
    A.i(f"buffer_store_dword v13, v12, s[{FL}:{FL+3}], 0 offen {WT}")
    A.label(f"{N}_gb")
    A.i("s_barrier                         ; b3")
    mark(3)
    ln_main(False)
    ACC = 128
    FS = [16, 60]
    vXb0, vXb1, vWb0, vWb1 = 4, 5, 6, 7
    vX0, vX1, vW0, vW1 = 104, 105, 106, 107
    A.i("s_and_b32 s28, s20, 1              ; ws")
    A.i("s_lshr_b32 s29, s20, 1             ; wf")
    A.i("v_and_b32 v110, 15, v2             ; n")
    A.i("v_lshrrev_b32 v12, 4, v2           ; g")
    A.i("v_and_b32 v13, 7, v110")
    A.i("v_xor_b32 v13, v13, v12")
    A.i("v_lshlrev_b32 v13, 4, v13")
    A.i("s_lshl_b32 s27, s28, 13")
    A.i(f"s_add_u32 s27, s27, {G1X}")
    A.i(f"v_lshl_add_u32 {v(vXb0)}, v110, 7, v13")
    A.i(f"v_add_u32 {v(vXb0)}, s27, {v(vXb0)}")
    A.i(f"v_xor_b32 {v(vXb1)}, 64, {v(vXb0)}")
    A.i("v_lshrrev_b32 v13, 2, v110")
    A.i("v_lshl_add_u32 v13, v12, 3, v13")
    A.i("v_mul_u32_u24 v13, 448, v13")
    A.i("v_and_b32 v14, 3, v2")
    A.i("v_lshl_add_u32 v13, v14, 3, v13")
    A.i("s_mul_i32 s27, s29, 224")
    A.i("v_add_u32 v13, s27, v13")
    A.i("v_and_b32 v14, 1, v12")
    A.i("v_lshlrev_b32 v14, 5, v14")
    A.i(f"v_add_u32 {v(vWb0)}, v13, v14")
    A.i(f"v_sub_u32 {v(vWb1)}, v13, v14")
    A.i("s_cmp_eq_u32 s29, 0")
    A.i(f"s_cbranch_scc1 {N}_noswap")
    A.i(f"v_swap_b32 {v(vWb0)}, {v(vWb1)}")
    A.label(f"{N}_noswap")
    for r in range(48, 112):
        A.i(f"v_mov_b32 {v(ACC+r)}, 0")
    mark(19)
    ln_signal()
    mark(4)
    for r in range(48):
        A.i(f"v_mov_b32 {v(ACC+r)}, 0")
    g1_ids()
    srd(A, 16, P_WS, 2048*3584*2, WS['act'])
    def g1reads(fs, kk):
        out = []
        Xr, W = FS[fs], FS[fs] + 16
        vx = vX0 if kk == 0 else vX1
        def wr(t):
            for hb in range(2):
                out.append(f"ds_read_b64_tr_b16 {v(W+4*t+2*hb,2)}, {v(vW0 if t%2==0 else vW1)} offset:{(32*kk+4*hb)*448 + 32*t}")
        wr(0)
        for st in range(4):
            out.append(f"ds_read_b128 {v(Xr+4*st,4)}, {v(vx)} offset:{st*2048}")
        for t in range(1, 7): wr(t)
        return out
    def g1phase(fs, side):
        Xr, W = FS[fs], FS[fs] + 16
        side = list(side)
        for t in range(7):
            for st in range(4):
                ac = ACC + (t*4+st)*4
                A.i(f"v_mfma_f32_16x16x32_bf16 {v(ac,4)}, {v(W+4*t,4)}, {v(Xr+4*st,4)}, {v(ac,4)}")
                if side: A.i(side.pop(0))
        for x in side: A.i(x)
    A.i("s_mov_b32 s26, 0")
    A.i("s_mov_b32 s24, 0")
    A.i(f"v_mov_b32 {v(vX0)}, {v(vXb0)}")
    A.i(f"v_mov_b32 {v(vX1)}, {v(vXb1)}")
    A.i(f"v_mov_b32 {v(vW0)}, {v(vWb0)}")
    A.i(f"v_mov_b32 {v(vW1)}, {v(vWb1)}")
    A.i("s_mov_b32 s23, 16")
    A.i("s_barrier                          ; G1 B0")
    mark(5)
    for x in g1reads(0, 0): A.i(x)
    A(".p2align 6")
    A.label(f"{N}_g1c")
    A.i("s_waitcnt lgkmcnt(0)")
    nxt = ["s_add_u32 s26, s26, 28672", "s_add_u32 s24, s24, 16384", "s_cmp_eq_u32 s24, 49152",
           "s_cselect_b32 s26, 0, s26", "s_cselect_b32 s24, 0, s24",
           f"v_add_u32 {v(vX0)}, s24, {v(vXb0)}", f"v_add_u32 {v(vW0)}, s26, {v(vWb0)}",
           f"v_add_u32 {v(vW1)}, s26, {v(vWb1)}", f"v_add_u32 {v(vX1)}, s24, {v(vXb1)}"]
    g1phase(0, g1reads(1, 1) + nxt)
    A.i("s_waitcnt lgkmcnt(0)")
    A.i("s_barrier")
    g1phase(1, g1reads(0, 0) + ["s_sub_u32 s23, s23, 1", "s_cmp_lg_u32 s23, 0"])
    A.i(f"s_cbranch_scc1 {N}_g1c")
    mark(6)
    A.i("s_lshl_b32 s27, s21, 3")
    A.i("s_lshl_b32 s30, s28, 2")
    A.i("s_add_u32 s27, s27, s30")
    A.i("s_mul_i32 s27, s27, 112")
    A.i("s_mul_i32 s30, s22, 7")
    A.i("s_add_u32 s27, s27, s30")
    A.i("s_lshl_b32 s27, s27, 10")
    A.i("v_and_b32 v13, 1, v12")
    A.i("v_lshrrev_b32 v14, 1, v12")
    A.i("v_lshl_or_b32 v13, v13, 1, v14     ; pi(g)")
    A.i("v_lshlrev_b32 v108, 4, v13")
    A.i("v_lshlrev_b32 v13, 8, v13")
    A.i("v_lshl_add_u32 v13, v110, 4, v13")
    A.i("v_lshlrev_b32 v14, 8, v14")
    A.i("v_lshl_add_u32 v14, v110, 4, v14")
    A.i("v_and_b32 v15, 1, v12")
    A.i("v_lshl_add_u32 v14, v15, 3, v14")
    A.i(f"s_mov_b32 s32, 0x{LOG2E ^ 0x80000000:x}")
    A.i("s_waitcnt lgkmcnt(0)")
    def silu4(dst, ac, tmp):
        A.i(f"v_pk_mul_f32 {v(tmp,2)}, {v(ac,2)}, s[32:33] op_sel_hi:[1,0]")
        A.i(f"v_pk_mul_f32 {v(tmp+2,2)}, {v(ac+2,2)}, s[32:33] op_sel_hi:[1,0]")
        for r in range(4): A.i(f"v_exp_f32 {v(tmp+r)}, {v(tmp+r)}")
        A.i(f"v_pk_add_f32 {v(tmp,2)}, {v(tmp,2)}, 1.0 op_sel_hi:[1,0]")
        A.i(f"v_pk_add_f32 {v(tmp+2,2)}, {v(tmp+2,2)}, 1.0 op_sel_hi:[1,0]")
        for r in range(4): A.i(f"v_rcp_f32 {v(tmp+r)}, {v(tmp+r)}")
        A.i(f"v_pk_mul_f32 {v(tmp,2)}, {v(tmp,2)}, {v(ac,2)}")
        A.i(f"v_pk_mul_f32 {v(tmp+2,2)}, {v(tmp+2,2)}, {v(ac+2,2)}")
        A.i(f"v_cvt_pk_bf16_f32 {v(dst)}, {v(tmp)}, {v(tmp+1)}")
        A.i(f"v_cvt_pk_bf16_f32 {v(dst+1)}, {v(tmp+2)}, {v(tmp+3)}")
    def ebody(wf):
        pairs = [(0,0),(2,1),(4,2)] if wf == 0 else [(1,4),(3,5),(5,6)]
        single = 6 if wf == 0 else 0
        cnt = 0
        for st in range(4):
            A.i(f"s_add_u32 s30, s27, {st*112*1024}")
            for (t, blk) in pairs:
                d = 16 + (cnt % 4) * 4
                cnt += 1
                silu4(d, ACC + (t*4+st)*4, 40)
                silu4(d+2, ACC + ((t+1)*4+st)*4, 44)
                A.i("s_nop 1")
                A.i(f"v_permlane16_swap_b32 {v(d)}, {v(d+2)}")
                A.i(f"v_permlane16_swap_b32 {v(d+1)}, {v(d+3)}")
                A.i(f"buffer_store_dwordx4 {v(d,4)}, {'v13' if blk < 4 else 'v15'}, s[16:19], s30 offen offset:{(blk%4)*1024} {WT}")
            d = 32 + (st % 2) * 2
            silu4(d, ACC + (single*4+st)*4, 40)
            A.i(f"buffer_store_dwordx2 {v(d,2)}, v14, s[16:19], s30 offen offset:{3*1024 + wf*512} {WT}")
    A.i("v_add_u32 v15, 4096, v13")
    A.i("s_cmp_eq_u32 s29, 0")
    A.i(f"s_cbranch_scc0 {N}_epi1")
    ebody(0)
    A.i(f"s_branch {N}_epi2")
    A.label(f"{N}_epi1")
    ebody(1)
    A.label(f"{N}_epi2")
    mark(7)
    A.i("s_lshl_b32 s62, s21, 4")
    A.i("s_add_u32 s62, s62, s22")
    A.i("s_lshl_b32 s62, s62, 10")
    A.i("s_lshl_b32 s23, s20, 2")
    A.i("s_add_u32 s62, s62, s23")
    FS = [16, 48]
    vXb, vWb = 12, 13
    vX, vW = 4, 8
    X1, GB = 96, 112
    g2_ids()
    A.i("v_lshl_add_u32 v81, v110, 11, v108")
    A.i("s_lshl_b32 s30, s21, 1")
    A.i("s_add_u32 s30, s30, s28")
    A.i("s_lshl_b32 s30, s30, 17")
    A.i("s_lshl_b32 s31, s22, 1")
    A.i("s_add_u32 s31, s31, s29")
    A.i("s_lshl_b32 s31, s31, 1")
    A.i("s_add_u32 s31, s31, s52")
    A.i("s_lshl_b32 s31, s31, 6")
    A.i("s_add_u32 s30, s30, s31")
    A.i("s_lshl_b32 s31, s31, 1")
    A.i(f"s_add_u32 s31, s31, {5*4096}")
    A.i("v_lshrrev_b32 v14, 4, v2           ; g")
    A.i("v_lshrrev_b32 v80, 2, v110")
    A.i("v_lshl_add_u32 v82, v14, 3, v80")
    A.i("v_and_b32 v83, 1, v14")
    A.i("v_xor_b32 v83, s29, v83")
    A.i("v_lshl_or_b32 v80, v83, 2, v80")
    A.i("v_lshlrev_b32 v80, 5, v80")
    A.i("v_and_b32 v83, 3, v2")
    A.i("v_lshl_add_u32 v80, v83, 3, v80")
    A.i(f"v_lshl_add_u32 {v(vWb)}, v82, 8, v80")
    A.i("s_lshl_b32 s27, s28, 13")
    A.i(f"s_add_u32 s27, s27, {G2X}")
    A.i(f"v_add_u32 {v(vXb)}, s27, v3")
    A.i("v_mov_b32 v83, 0")
    A.i(f"v_mov_b32 v94, s{SV}")
    A.i("s_waitcnt vmcnt(0)")
    A.i(f"buffer_store_dword v94, v83, s[{FL}:{FL+3}], s62 offen offset:{F_ACT} {WT}")
    mark(8)
    for r in range(64):
        A.i(f"v_mov_b32 {v(ACC+r)}, 0")
    def g2addr():
        out = ["s_add_u32 s26, s26, 16384", "s_and_b32 s26, s26, 0xffff",
               f"v_add_u32 {v(vW)}, s26, {v(vWb)}", f"v_add_u32 {v(vX)}, s26, {v(vXb)}"]
        for t in range(1, 4):
            out.append(f"v_xor_b32 {v(vW+t)}, {32*t}, {v(vW)}")
        return out
    def g2reads(fs, kk):
        out = []
        Xr, W = FS[fs], FS[fs] + 16
        def wr(t):
            for hb in range(2):
                out.append(f"ds_read_b64_tr_b16 {v(W+4*t+2*hb,2)}, {v(vW+t)} offset:{kk*8192 + hb*1024}")
        wr(0)
        for st in range(4):
            out.append(f"ds_read_b128 {v(Xr+4*st,4)}, {v(vX)} offset:{st*2048 + kk*1024}")
        for t in range(1, 4): wr(t)
        return out
    def g2phase(fs, side):
        Xr, W = FS[fs], FS[fs] + 16
        side = list(side)
        n = 0
        for t in range(4):
            for st in range(4):
                ac = ACC + (t*4+st)*4
                A.i(f"v_mfma_f32_16x16x32_bf16 {v(ac,4)}, {v(W+4*t,4)}, {v(Xr+4*st,4)}, {v(ac,4)}")
                n += 1
                for _ in range(1 if n <= 12 else 2):
                    if side: A.i(side.pop(0))
        for x in side: A.i(x)
    A.i("s_mov_b32 s26, 49152")
    for x in g2addr(): A.i(x)
    srd(A, 8, P_WS, 4*MB, WS['x1'])
    srd(A, 12, P_WS, 2*24576, WS['mod'])
    srd(A, 16, P_OUT, 4*MB)
    A.i("v_lshlrev_b32 v15, 1, v108")
    A.i(f"s_add_u32 s25, s31, 24576")
    A.i("s_mov_b32 s23, 28")
    A.i("s_barrier                          ; G2 B0")
    mark(9)
    for x in g2reads(0, 0): A.i(x)
    for st in range(4):
        A.i(f"s_add_u32 s{32+st}, s30, {st*16*2048}")
        A.i(f"buffer_load_dwordx4 {v(X1+4*st,4)}, v81, s[8:11], s{32+st} offen {WT}")
    for h in range(2):
        for e in range(2):
            A.i(f"buffer_load_dwordx4 {v(GB+8*h+4*e,4)}, v15, s[12:15], {'s31' if h==0 else 's25'} offen offset:{16*e} {WT}")
    srd(A, 8, P_WS, 8*MB, WS['xch'])
    A(".p2align 6")
    A.label(f"{N}_g2c")
    A.i("s_waitcnt lgkmcnt(0)")
    g2phase(0, g2reads(1, 1) + g2addr())
    A.i("s_waitcnt lgkmcnt(0)")
    A.i("s_barrier")
    g2phase(1, g2reads(0, 0) + ["s_sub_u32 s23, s23, 1", "s_cmp_lg_u32 s23, 0"])
    A.i(f"s_cbranch_scc1 {N}_g2c")
    mark(10)
    A.i("s_lshl_b32 s27, s2, 2")
    A.i("s_add_u32 s27, s27, s20")
    A.i("s_xor_b32 s36, s27, 4")
    A.i("s_lshl_b32 s53, s27, 13")
    A.i("s_lshl_b32 s54, s36, 13")
    A.i("s_add_u32 s55, s53, 4096")
    A.i("s_add_u32 s62, s54, 4096")
    A.i("s_lshl_b32 s63, s2, 10")
    A.i("s_lshl_b32 s27, s20, 7")
    A.i("s_add_u32 s63, s63, s27")
    A.i("s_xor_b32 s27, s63, 1024")
    A.i("v_mov_b32 v82, s27")
    A.i("s_mov_b32 s27, 0xffff0000")
    A.i("s_waitcnt vmcnt(0) lgkmcnt(0)")
    A.i("s_cmp_eq_u32 s52, 0")
    A.i(f"s_cbranch_scc0 {N}_e1")
    def fin(h):
        send = ACC + (2*(1-h))*16
        keep = ACC + (2*h)*16
        for q in range(8):
            A.i(f"buffer_store_dwordx4 {v(send+4*q,4)}, v3, s[8:11], {'s53' if q < 4 else 's55'} offen offset:{1024*(q%4)} {WT}")
        for q in range(4):
            A.i(f"v_pk_add_f32 {v(84+2*q,2)}, {v(GB+2*q,2)}, {v(GB+8+2*q,2)}")
            A.i(f"v_cvt_pk_bf16_f32 v92, {v(84+2*q)}, {v(85+2*q)}")
            A.i(f"v_lshlrev_b32 {v(84+2*q)}, 16, v92")
            A.i(f"v_and_b32 {v(85+2*q)}, s27, v92")
        A.i("s_waitcnt vmcnt(0)")
        A.i(f"buffer_store_dword v94, v83, s[{FL}:{FL+3}], s63 offen {WT}")
        poll(A, f"{N}_px{h}", 82, vt=95)
        mark(11)
        for q in (0,4,1,5,2,6,3,7):
            A.i(f"buffer_load_dwordx4 {v(16+4*q,4)}, v3, s[8:11], {'s54' if q < 4 else 's62'} offen offset:{1024*(q%4)} {WT}")
        for st in range(4):
            p, q = keep + st*4, keep + 16 + st*4
            A.i(f"s_waitcnt vmcnt({6-st})")
            for hh in range(2):
                A.i(f"v_pk_add_f32 {v(p+2*hh,2)}, {v(p+2*hh,2)}, {v(16+4*st+2*hh,2)}")
                A.i(f"v_pk_add_f32 {v(q+2*hh,2)}, {v(q+2*hh,2)}, {v(32+4*st+2*hh,2)}")
            A.i("s_nop 1")
            for r in range(4):
                A.i(f"v_permlane16_swap_b32 {v(p+r)}, {v(q+r)}")
            for hh in range(4):
                src = (p if hh < 2 else q) + 2*(hh % 2)
                A.i(f"v_lshlrev_b32 v92, 16, {v(X1+4*st+hh)}")
                A.i(f"v_and_b32 v93, s27, {v(X1+4*st+hh)}")
                A.i(f"v_pk_fma_f32 v[92:93], {v(src,2)}, {v(84+2*hh,2)}, v[92:93]")
                A.i(f"v_cvt_pk_bf16_f32 {v(X1+4*st+hh)}, v92, v93")
            A.i(f"buffer_store_dwordx4 {v(X1+4*st,4)}, v81, s[16:19], s{32+st} offen {outf}")
    fin(0)
    A.i(f"s_branch {N}_fin")
    A.label(f"{N}_e1")
    fin(1)
    A.label(f"{N}_fin")
    if ts: ts_end(A, N, P_WS, tsw)
    A.i("s_endpgm")

    A.label(f"{N}_L")
    A.i("s_sub_u32 s63, s20, 4             ; lw")
    A.i("s_waitcnt vmcnt(0)")
    A.i(f"buffer_store_dword v13, v12, s[{FL}:{FL+3}], s23 offen offset:{F_KV} {WT}")
    A.i("s_cmp_ge_u32 s2, 192")
    A.i(f"s_cbranch_scc1 {N}_Lidle")
    A.i("s_lshr_b32 s23, s2, 1")
    A.i("s_and_b32 s24, s2, 1")
    A.i("s_lshl_b32 s24, s24, 2")
    A.i("s_add_u32 s24, s24, s63           ; k part 0..7")
    A.i("v_and_b32 v4, 7, v2               ; cc")
    A.i("v_lshrrev_b32 v5, 3, v2")
    A.i(f"s_mov_b32 s25, {16*12288}")
    A.i("v_mul_lo_u32 v6, v5, s25")
    A.i("v_lshl_add_u32 v6, v4, 4, v6")
    A.i("v_lshlrev_b32 v7, 5, v5")
    A.i(f"s_mul_i32 s25, s24, {128*12288}")
    A.i("s_lshl_b32 s26, s23, 7")
    A.i("s_add_u32 s25, s25, s26")
    A.i("s_lshl_b32 s34, s24, 8")
    srd(A, 16, P_C, 2048)
    srd(A, 28, P_WM, 1024*12288)
    C, S, Wd = 16, 32, 64
    for u in range(2):
        A.i(f"buffer_load_dwordx4 {v(C+4*u,4)}, v7, s[16:19], s34 offen offset:{16*u}")
    for j in range(16):
        A.i(f"buffer_load_dwordx4 {v(Wd+4*j,4)}, v6, s[28:31], s25 offen {nt}")
        A.i("s_add_u32 s25, s25, 12288")
    xrow_load()
    w1_pref()
    A.i("s_mov_b32 s27, 0xffff0000")
    A.i(f"s_mov_b32 s35, 0x{LOG2E ^ 0x80000000:x}")
    if prio: A.i(f"s_setprio {prio}")
    A.i(f"s_waitcnt vmcnt({18+NP})")
    for q in range(8):
        A.i(f"v_lshlrev_b32 {v(S+4*q)}, 16, {v(C+q)}")
        A.i(f"v_and_b32 {v(S+4*q+2)}, s27, {v(C+q)}")
    for q in range(8):
        x0, x1 = S+4*q, S+4*q+2
        A.i(f"v_mul_f32 v8, s35, {v(x0)}")
        A.i(f"v_mul_f32 v9, s35, {v(x1)}")
        A.i("v_exp_f32 v8, v8"); A.i("v_exp_f32 v9, v9")
        A.i("s_nop 0")
        A.i("v_add_f32 v8, 1.0, v8"); A.i("v_add_f32 v9, 1.0, v9")
        A.i("v_rcp_f32 v8, v8"); A.i("v_rcp_f32 v9, v9")
        A.i("s_nop 0")
        A.i(f"v_mul_f32 v8, v8, {v(x0)}"); A.i(f"v_mul_f32 v9, v9, {v(x1)}")
        A.i("v_cvt_pk_bf16_f32 v8, v8, v9")
        A.i(f"v_lshlrev_b32 {v(x0)}, 16, v8")
        A.i(f"v_and_b32 {v(x1)}, s27, v8")
    AC = 16
    for r in range(8): A.i(f"v_mov_b32 {v(AC+r)}, 0")
    for j in range(16):
        if j % 2 == 0: A.i(f"s_waitcnt vmcnt({16-j+NP})")
        for q in range(4):
            t = 8 + 2*(q % 2)
            A.i(f"v_lshlrev_b32 {v(t)}, 16, {v(Wd+4*j+q)}")
            A.i(f"v_and_b32 {v(t+1)}, s27, {v(Wd+4*j+q)}")
            A.i(f"v_pk_fma_f32 {v(AC+2*q,2)}, {v(t,2)}, {v(S+2*j,2)}, {v(AC+2*q,2)} op_sel_hi:[1,0,1]")
    A.i("s_nop 1")
    for r in range(8):
        A.i(f"v_add_f32_dpp {v(AC+r)}, {v(AC+r)}, {v(AC+r)} row_ror:8 row_mask:0xf bank_mask:0xf")
    for sw in ("v_permlane16_swap_b32", "v_permlane32_swap_b32"):
        for r in range(8): A.i(f"v_mov_b32 {v(24+r)}, {v(AC+r)}")
        for r in range(8): A.i(f"{sw} {v(AC+r)}, {v(24+r)}")
        for r in range(8): A.i(f"v_add_f32 {v(AC+r)}, {v(AC+r)}, {v(24+r)}")
    A.i("s_lshl_b32 s25, s63, 8")
    A.i(f"s_add_u32 s25, s25, {GP}")
    A.i("v_lshlrev_b32 v8, 5, v4")
    A.i("v_add_u32 v8, s25, v8")
    A.i(f"ds_write_b128 v8, {v(AC,4)}")
    A.i(f"ds_write_b128 v8, {v(AC+4,4)} offset:16")
    A.i(f"v_mov_b32 v9, {CNT+4}")
    A.i("v_mov_b32 v10, 1")
    A.i("s_waitcnt lgkmcnt(0)")
    A.i("ds_add_rtn_u32 v10, v9, v10")
    A.i("s_waitcnt lgkmcnt(0)")
    A.i("v_cmp_le_u32 vcc, 192, v10")
    A.i("s_nop 1")
    A.i(f"s_cbranch_vccz {N}_Lj")
    A.i("v_lshlrev_b32 v8, 2, v2")
    A.i(f"v_add_u32 v9, {GP}, v8")
    for p in range(4):
        A.i(f"ds_read_b32 {v(16+p)}, v9 offset:{256*p}")
    srd(A, 16, P_WS, 2*24576, WS['mod'])
    A.i("s_and_b32 s25, s2, 1")
    A.i("s_mul_i32 s25, s25, 24576")
    A.i("s_lshl_b32 s26, s23, 8")
    A.i("s_add_u32 s25, s25, s26")
    A.i("s_waitcnt lgkmcnt(0)")
    A.i("v_add_f32 v16, v16, v17")
    A.i("v_add_f32 v18, v18, v19")
    A.i("v_add_f32 v16, v16, v18")
    A.i(f"buffer_store_dword v16, v8, s[16:19], s25 offen {WT}")
    A.i(f"s_branch {N}_Lj")
    A.label(f"{N}_Lidle")
    xrow_load()
    w1_pref()
    A.label(f"{N}_Lj")
    if prio: A.i("s_setprio 0")
    A.i("v_lshrrev_b32 v160, 3, v2")
    A.i("v_and_b32 v161, 7, v2")
    A.i("v_xor_b32 v161, v161, v160")
    A.i("v_lshlrev_b32 v161, 4, v161")
    A.i("v_lshl_add_u32 v161, v160, 11, v161")
    A.i("s_mul_i32 s27, s63, 448")
    A.i("v_add_u32 v162, s27, v2")
    A.i("s_movk_i32 s30, 2341")
    A.i("s_movk_i32 s31, 7168")
    for q in range(7):
        A.i(f"v_add_u32 v163, {64*q}, v162")
        A.i("v_mul_u32_u24 v164, s30, v163")
        A.i("v_lshrrev_b32 v164, 16, v164")
        A.i("v_mul_u32_u24 v165, 28, v164")
        A.i("v_sub_u32 v163, v163, v165")
        A.i("v_bfe_u32 v165, v164, 3, 1")
        A.i("v_lshlrev_b32 v165, 1, v165")
        A.i("v_xor_b32 v163, v163, v165")
        A.i("v_mul_u32_u24 v164, s31, v164")
        A.i(f"v_lshl_add_u32 {v(168+q)}, v163, 4, v164")
    A.i("s_waitcnt vmcnt(0)")
    ln_pre()
    A.i("s_barrier                         ; b2")
    A.i("s_bfe_u32 s80, s2, 0x20001")
    A.i("s_lshl_b32 s80, s80, 2")
    A.i("s_lshr_b32 s22, s2, 6")
    A.i("s_add_u32 s80, s80, s22")
    A.i("s_mul_i32 s80, s80, 448            ; W soffset")
    A.i("s_mul_i32 s81, s63, 7168")
    srd(A, 8, P_W1, 1024*7168)
    def g1w(slot):
        for q in range(7):
            A.i(f"s_add_u32 m0, s81, {slot + q*1024}" if isinstance(slot, int) else f"s_add_u32 m0, {slot}, {q*1024}")
            A.i("s_nop 0")
            A.i(f"buffer_load_dwordx4 {v(168+q)}, s[8:11], s80 offen lds")
        A.i(f"s_add_u32 s80, s80, {64*7168}")
    for j in range(3): g1w(G1W + j*28672)
    A.i("s_barrier                         ; b3")
    ln_main(True)
    ln_signal()
    g1_ids()
    A.i("s_lshl_b32 s24, s21, 4")
    A.i("s_lshl_b32 s27, s63, 2")
    A.i("s_add_u32 s24, s24, s27")
    A.i("v_bfe_u32 v4, v2, 3, 2")
    A.i("v_add_u32 v4, s24, v4")
    A.i("v_lshlrev_b32 v4, 10, v4")
    A.i("v_and_b32 v5, 7, v2")
    A.i("v_lshl_add_u32 v4, v5, 2, v4")
    A.i(f"v_add_u32 v4, {F_H2}, v4")
    A.i("s_lshl_b32 s24, s24, 14")
    A.i("s_lshl_b32 s33, s63, 12")
    A.i(f"s_add_u32 s33, s33, {G1X}")
    srd(A, 12, P_WS, 4*MB, WS['h2'])
    if pw2:
        srd(A, 16, P_W2, 1024*7168)
        A.i("s_lshl_b32 s82, s2, 2")
        A.i("s_add_u32 s82, s82, s63")
        A.i(f"s_mul_i32 s82, s82, {56*128}")
        A.i("v_min_u32 v6, 4, v2")
        A.i("v_lshlrev_b32 v6, 7, v6")
    NL1 = 12 if pw2 else 11
    poll(A, f"{N}_ph", 4)
    def g1x(slot):
        for q in range(4):
            A.i(f"s_add_u32 m0, s33, {slot + q*1024}" if isinstance(slot, int) else f"s_add_u32 m0, {slot}, {q*1024}")
            A.i(f"s_add_u32 s37, s24, {q*8*2048}")
            A.i(f"buffer_load_dwordx4 v161, s[12:15], s37 offen {WT} lds")
        A.i("s_add_u32 s24, s24, 128")
    for j in range(3): g1x(j*16384)
    A.i("s_waitcnt vmcnt(8)")
    A.i("s_barrier                          ; G1 B0")
    A.i("s_mov_b32 s26, 0")
    A.i("s_mov_b32 s25, 0")
    A.i("s_mov_b32 s23, 13")
    A.i("s_waitcnt vmcnt(4)")
    A.i(f"s_branch {N}_g1l2")
    A.label(f"{N}_g1l")
    A.i(f"s_waitcnt vmcnt({NL1})")
    A.label(f"{N}_g1l2")
    A.i("s_barrier")
    A.i("s_add_u32 s35, s26, s81")
    A.i("s_add_u32 s36, s25, s33")
    g1w("s35"); g1x("s36")
    if pw2:
        A.i("buffer_load_dword v20, v6, s[16:19], s82 offen")
        A.i("s_add_u32 s82, s82, 640")
    A.i("s_add_u32 s26, s26, 28672")
    A.i("s_add_u32 s25, s25, 16384")
    A.i("s_cmp_eq_u32 s25, 49152")
    A.i("s_cselect_b32 s26, 0, s26")
    A.i("s_cselect_b32 s25, 0, s25")
    A.i("s_sub_u32 s23, s23, 1")
    A.i("s_cmp_lg_u32 s23, 0")
    A.i(f"s_cbranch_scc1 {N}_g1l")
    g2_ids()
    A.i("v_lshrrev_b32 v4, 4, v2")
    A.i("v_lshlrev_b32 v5, 1, v4")
    A.i("v_and_b32 v6, 15, v2")
    A.i("v_xor_b32 v5, v5, v6")
    A.i("v_lshlrev_b32 v5, 4, v5")
    A.i("v_lshl_add_u32 v5, v4, 11, v5")
    A.i("v_xor_b32 v6, 128, v5")
    A.i("s_lshl_b32 s24, s21, 3")
    A.i("s_lshl_b32 s27, s63, 1")
    A.i("s_add_u32 s24, s24, s27")
    A.i(f"s_mul_i32 s24, s24, {112*1024}")
    A.i(f"s_mul_i32 s27, s52, {56*1024}")
    A.i("s_add_u32 s24, s24, s27            ; X soffset")
    A.i("s_lshl_b32 s80, s22, 8")
    A.i("s_lshl_b32 s27, s63, 15")
    A.i("s_add_u32 s80, s80, s27")
    A.i(f"s_mul_i32 s27, s52, {1792*2048}")
    A.i("s_add_u32 s80, s80, s27            ; W soffset")
    A.i("s_lshl_b32 s81, s63, 12")
    A.i(f"s_add_u32 s33, s81, {G2X}")
    A.i("s_lshl_b32 s27, s21, 4")
    A.i("s_lshl_b32 s30, s52, 3")
    A.i("s_add_u32 s27, s27, s30")
    A.i("v_bfe_u32 v7, v2, 1, 3")
    A.i("v_add_u32 v7, s27, v7")
    A.i("v_lshlrev_b32 v7, 10, v7")
    A.i("v_and_b32 v8, 1, v2")
    A.i("v_lshl_add_u32 v7, v8, 3, v7")
    A.i("s_lshr_b32 s27, s63, 1")
    A.i("s_lshl_b32 s27, s27, 2")
    A.i(f"s_add_u32 s27, s27, {F_ACT}")
    A.i("v_add_u32 v7, s27, v7")
    for rem in (NL1, 0, 0):
        A.i(f"s_waitcnt vmcnt({rem})")
        A.i("s_barrier")
    srd(A, 8, P_W2, 3584*2048)
    srd(A, 12, P_WS, 2048*3584*2, WS['act'])
    def g2w(slot):
        for q in range(4):
            A.i(f"s_add_u32 m0, s81, {slot + q*1024}" if isinstance(slot, int) else f"s_add_u32 m0, {slot}, {q*1024}")
            A.i(f"s_add_u32 s37, s80, {q*4*2048}")
            A.i(f"buffer_load_dwordx4 {v(5+(q//2))}, s[8:11], s37 offen lds")
        A.i(f"s_add_u32 s80, s80, {64*2048}")
    def g2x(slot):
        A.i(f"s_add_u32 m0, s33, {slot}")
        A.i(f"s_add_u32 s37, s24, {112*1024}")
        for kb in range(2):
            A.i(f"buffer_load_dwordx4 v3, s[12:15], s24 offen offset:{kb*1024} {WT} lds")
        A.i("s_add_u32 m0, m0, 2048")
        A.i("s_add_u32 s24, s24, 2048")
        for kb in range(2):
            A.i(f"buffer_load_dwordx4 v3, s[12:15], s37 offen offset:{kb*1024} {WT} lds")
    for j in range(4): g2w(G2W + j*16384)
    poll(A, f"{N}_pa", 7)
    for j in range(4): g2x(j*16384)
    A.i("s_waitcnt vmcnt(12)")
    A.i("s_barrier                          ; G2 B0")
    A.i("s_mov_b32 s26, 0")
    def g2step():
        A.i("s_barrier")
        A.i("s_add_u32 s35, s26, s81")
        g2w("s35"); g2x("s26")
        A.i("s_add_u32 s26, s26, 16384")
        A.i("s_and_b32 s26, s26, 0xffff")
    A.i("s_waitcnt vmcnt(8)")
    g2step()
    A.i("s_waitcnt vmcnt(12)")
    g2step()
    A.i("s_mov_b32 s23, 22")
    A.label(f"{N}_g2l")
    A.i("s_waitcnt vmcnt(16)")
    g2step()
    A.i("s_sub_u32 s23, s23, 1")
    A.i("s_cmp_lg_u32 s23, 0")
    A.i(f"s_cbranch_scc1 {N}_g2l")
    for rem in (16, 8, 0, 0):
        A.i(f"s_waitcnt vmcnt({rem})")
        A.i("s_barrier")
    A.label(f"{N}_done")
    A.i("s_endpgm")
    kernel_desc(A, N, 240, 102)
    return (256, 512, 163840)
```

```python
import sys
from asmlib import *
from g1 import gen_g1
HDR = open('adaLN_cond__ssm_conv_h3__dense_activation_silu__prompt.s.ref').read().split('; Override launch')[0]
def build(kernels, path):
    A = Asm()
    body = Asm()
    launches = []
    body('.amdgcn_target "amdgcn-amd-amdhsa--gfx950"')
    for (fn, name, kw) in kernels:
        body.ts = True if kw.get('ts', fn.__name__ in ('gen_bw',)) else False
        g, b, lds = fn(body, name=name, **kw)
        if name.startswith("adaLN"):
            launches.append(f"; @launch grid=({g},1,1) block=({b},1,1) lds={lds}")
        else:
            launches.append(f"; @launch kernel={name} grid=({g},1,1) block=({b},1,1) lds={lds}")
    body(".text")
    body("code_end:")
    body("    s_endpgm")
    open(path, 'w').write(HDR + "\n".join(launches) + "\n" + body.text())
if __name__ == "__main__":
    lo = dict(ts=True, mf=False, rd=False, epi=False)
    ks = [(gen_g1, "g1_kernel", dict(ts=True, ntw=False)),
          (gen_g1, "g1_ldonly_kernel", dict(lo, ntw=False)),
          (gen_g1, "g1_ldonly_nt_kernel", dict(lo)),
          (gen_g1, "g1_ldx_kernel", dict(lo, ntw=False, ldw=False)),
          (gen_g1, "g1_ldw_kernel", dict(lo, ntw=False, ldx=False)),
          (gen_g1, "g1_ldw_nt_kernel", dict(lo, ldx=False)),
          (gen_g1, "g1_nold_kernel", dict(ts=True, ld=False)),
          (gen_g1, "g1_nold_noepi_kernel", dict(ts=True, ld=False, epi=False)),
          (gen_g1, "g1_mfonly_kernel", dict(ts=True, ld=False, epi=False, rd=False)),
          (gen_g1, "g1_empty_kernel", dict(ts=True, ld=False, epi=False, rd=False, mf=False)),
          ]
    build(ks, 'mb_g1.s')
```

```python
import sys
from build_mb import build
from fused import gen_f
FULL = "adaLN_cond__ssm_conv_h3__dense_activation_silu__prompt_kernel"
def fullf(path, ts=False, f={}, plain=False):
    build([(gen_f, FULL if plain else "f1_kernel", dict(ts=ts, **f))], path)
if __name__ == "__main__":
    fullf('f.s')
```

```python
from buildf import *
fullf('z0.s', plain=True)
fullf('z1.s', f=dict(pw1=False))
fullf('z2.s', f=dict(pw2=False))
fullf('z3.s', f=dict(pw1=False, pw2=False))
fullf('z4.s', f=dict(pw1=False, pw2=False, nt=""))
fullf('z5.s', f=dict(pw1=False, pw2=False, outf="nt"))
```

```python
from asmlib import *
from bw import ts_begin, ts_end, ts_mark
from k2 import wave_reduce
LOG2E = 0x3fb8aa3b
WT = "sc0 sc1"

P_WS, P_Q = 4, 6
P_SSM, P_D, P_W1, P_W2, P_C, P_WM, P_OUT = 64, 66, 70, 72, 74, 76, 78
FL = 56
F_X, F_H2, F_ACT, F_KV = 0, 512, 640, 768
F_BAR = 896
F_MOD = 288*1024
F_NONCE = 400*1024 + 52
SV = 83
P_K, P_V, P_SH = 96, 98, 100

PSLEEP = {}
def poll(A, tag, vaddr, vt=15, cnt=60, wide=False):
    val = f"s{SV}"
    A.i(f"s_mov_b32 s{cnt}, 0x40000")
    sl = PSLEEP.get(tag.split("_")[-1][:2], 0)
    if sl:
        A.i(f"s_branch {tag}_in")
    A.label(tag)
    if sl:
        A.i(f"s_sleep {sl}")
        A.label(f"{tag}_in")
    if wide: A.i(f"buffer_load_dwordx4 {v(vt,4)}, {v(vaddr)}, s[{FL}:{FL+3}], 0 offen {WT}")
    else:    A.i(f"buffer_load_dword {v(vt)}, {v(vaddr)}, s[{FL}:{FL+3}], 0 offen {WT}")
    A.i(f"s_sub_u32 s{cnt}, s{cnt}, 1")
    A.i(f"s_cmp_eq_u32 s{cnt}, 0")
    A.i(f"s_cbranch_scc1 {tag}_out")
    A.i("s_waitcnt vmcnt(0)")
    if wide:
        for r in range(4): A.i(f"v_xor_b32 {v(vt+r)}, {val}, {v(vt+r)}")
        A.i(f"v_or3_b32 {v(vt)}, {v(vt)}, {v(vt+1)}, {v(vt+2)}")
        A.i(f"v_or_b32 {v(vt)}, {v(vt)}, {v(vt+3)}")
        val = "0"
    A.i(f"v_cmp_ne_u32 vcc, {val}, {v(vt)}")
    A.i("s_nop 1")
    A.i(f"s_cbranch_vccnz {tag}")
    A.label(f"{tag}_out")

def poll_all(A, tag, vaddr, groups, vt=16, cnt=60, stride=65536, mask=84):
    sl = PSLEEP.get(tag.split("_")[-1][:2], 0)
    M = [f"s[{44+2*g}:{45+2*g}]" if g < 2 else f"s[{52+2*(g-2)}:{53+2*(g-2)}]" for g in range(groups)]
    A.i(f"s_mov_b32 s{cnt}, 0x40000")
    for g in range(groups):
        A.i(f"s_mov_b64 {M[g]}, -1")
        if g: A.i(f"v_add_u32 {v(vt+4+g)}, {g*stride}, {v(vaddr)}")
    A.i(f"s_branch {tag}_in")
    A.label(tag)
    if sl: A.i(f"s_sleep {sl}")
    A.label(f"{tag}_in")
    for g in range(groups):
        A.i(f"s_or_b64 exec, {M[g]}, 1")
        A.i(f"buffer_load_dword {v(vt+g)}, {v(vt+4+g) if g else v(vaddr)}, s[{FL}:{FL+3}], 0 offen {WT}")
    A.i(f"s_sub_u32 s{cnt}, s{cnt}, 1")
    A.i(f"s_cmp_eq_u32 s{cnt}, 0")
    A.i(f"s_cbranch_scc1 {tag}_out")
    A.i("s_waitcnt vmcnt(0)")
    for g in range(groups):
        A.i(f"s_or_b64 exec, {M[g]}, 1")
        A.i(f"v_cmp_ne_u32 {M[g]}, s{SV}, {v(vt+g)}")
    A.i("s_nop 1")
    A.i(f"s_or_b64 vcc, {M[0]}, {M[1]}")
    for g in range(2, groups):
        A.i(f"s_or_b64 vcc, vcc, {M[g]}")
    A.i(f"s_cbranch_scc1 {tag}")
    A.label(f"{tag}_out")
    A.i("s_mov_b64 exec, -1")

def gen_f(A, name="f1_kernel", ts=False, nt="nt", outf="", pw1=True, pw2=True, marks=(0,1,2,3,4,5), tsw=0, prio=0, ntk='nt', prefill='b4', npf=3, wf1='', E1=4, E2=0, halo=True, D1=7, D2=10, ncode=16, psleep=dict(pk=4, pg=8, pm=8, ph=4, pa=4, px=2), onepm=True, nogemv=False):
    N = name
    PSLEEP.clear(); PSLEEP.update(psleep)
    def mark(j):
        if ts and j in marks: ts_mark(A, marks.index(j))
    WB, HC = 24320, 4160
    XO = 4*HC
    GP = 4*WB
    CNT = 161792
    G1W, G1X = 0, 86016
    LNP, LNY, LNT = 86016, 135168, 151552
    G2W, G2X = 0, 65536
    XROW = 232
    HH = 216
    SD = 104
    vWM, vCO, CR = 204, 205, 208
    P0B = 135168

    def xrow_load():
        srd(A, 8, P_Q, 4*MB)
        for hf in range(2):
            A.i(f"buffer_load_dwordx4 {v(XROW+hf*4,4)}, v3, s[8:11], s61 offen offset:{hf*1024} {nt}")

    def arrive(tag, cnt, n, soff, off, wait="vmcnt(0)", vc=14, vt=15):
        A.i(f"v_mov_b32 {v(vt)}, 1")
        A.i(f"s_waitcnt {wait}")
        A.i("s_mov_b64 exec, 1")
        A.i(f"ds_add_rtn_u32 {v(vt)}, {v(vc)}, {v(vt)} offset:{cnt}")
        A.i("s_waitcnt lgkmcnt(0)")
        A.i(f"v_cmp_eq_u32 vcc, {n-1}, {v(vt)}")
        A.i(f"v_mov_b32 {v(vt)}, s{SV}")
        A.i("s_nop 0")
        A.i(f"s_cbranch_vccz {tag}")
        A.i(f"buffer_store_dword {v(vt)}, off, s[{FL}:{FL+3}], {soff} offset:{off} {WT}")
        A.label(tag)
        A.i("s_mov_b64 exec, -1")
    def stream(j0, j1):
        for j in range(j0, j1):
            A.i(f"buffer_load_dwordx4 {v(SD+4*j,4)}, {v(vWM)}, s[12:15], s80 offen {nt}")
            A.i("s_add_u32 s80, s80, 12288")
    kernel_head(A, N)
    A.i("s_cmp_ge_u32 s2, 256")
    A.i(f"s_cbranch_scc1 {N}_done")
    A.i(f"s_load_dwordx4 s[{P_K}:{P_K+3}], s[0:1], {KA['k']}")
    A.i(f"s_load_dwordx2 s[{P_SH}:{P_SH+1}], s[0:1], {KA['shift']}")
    A.i(f"s_load_dwordx16 s[64:79], s[0:1], {KA['ssm']}")
    A.i(f"s_load_dwordx2 s[4:5], s[0:1], {KA['ws']}")
    A.i(f"s_load_dwordx2 s[6:7], s[0:1], {KA['q']}")
    A.i(f"s_cmp_ge_u32 s2, {ncode}")
    A.i(f"s_cbranch_scc1 {N}_nc")
    A.i("s_getpc_b64 s[8:9]")
    A.label(f"{N}_pc")
    A.i(f"s_mov_b32 s10, code_end-{N}_pc")
    A.i("s_mov_b32 s11, 0x20000")
    A.i("v_lshlrev_b32 v13, 6, v0")
    A.i(f"buffer_load_dword {v(HH)}, v13, s[8:11], 0 offen")
    A.label(f"{N}_nc")
    if ts: ts_begin(A)
    A.i(f"v_mov_b32 v14, {CNT}")
    A.i("v_mov_b32 v4, 0")
    A.i("v_mov_b32 v5, 0")
    for o in range(4): A.i(f"ds_write_b64 v14, v[4:5] offset:{8*o}")
    A.i("v_lshrrev_b32 v1, 6, v0")
    A.i("v_and_b32 v2, 63, v0              ; lane")
    A.i("v_readfirstlane_b32 s20, v1       ; wave")
    A.i("s_and_b32 s21, s2, 7")
    A.i("s_lshl_b32 s21, s21, 1")
    A.i("s_bfe_u32 s22, s2, 0x10003")
    A.i("s_add_u32 s21, s21, s22           ; cb")
    A.i("s_lshr_b32 s22, s2, 4             ; rb")
    A.i("v_and_b32 v1, 15, v0              ; cc")
    A.i("v_lshrrev_b32 v9, 4, v0           ; rg")
    A.i("s_lshl_b32 s23, s22, 18")
    A.i("s_lshl_b32 s24, s21, 7")
    A.i("s_add_u32 s23, s23, s24")
    A.i(f"s_sub_u32 s23, s23, {3*2048}")
    A.i("v_lshlrev_b32 v3, 13, v9")
    A.i("v_lshl_add_u32 v3, v1, 3, v3")
    A.i("v_add_u32 v3, s23, v3")
    A.i("v_add_u32 v4, 4096, v3")
    A.i("v_add_u32 v5, 6144, v3")
    A.i("v_add_u32 v6, 10240, v3")
    A.i("s_lshl_b32 s24, s21, 9")
    A.i("v_lshlrev_b32 v7, 5, v1")
    A.i("s_waitcnt lgkmcnt(0)")
    srd(A, 12, P_K, 4*MB)
    srd(A, 16, P_V, 4*MB)
    K, V, W = 16, 32, 40
    addr = [(3,0),(3,2048),(4,0),(5,0),(5,2048),(6,0),(6,2048)]
    for j in range(3, 7):
        r,o = addr[j]
        A.i(f"buffer_load_dwordx2 {v(K+2*j,2)}, v{r}, s[12:15], 0 offen offset:{o} {ntk}")
    for j in range(4):
        r,o = addr[3+j]
        A.i(f"buffer_load_dwordx2 {v(V+2*j,2)}, v{r}, s[16:19], 0 offen offset:{o} {nt}")
    if halo: A.i("s_mov_b64 exec, 0xffff")
    for j in range(3):
        r,o = addr[j]
        A.i(f"buffer_load_dwordx2 {v(K+2*j,2)}, v{r}, s[12:15], 0 offen offset:{o} {ntk}")
    if halo: A.i("s_mov_b64 exec, -1")
    srd(A, 28, P_SH, 8192)
    A.i(f"buffer_load_dwordx4 {v(W,4)}, v7, s[28:31], s24 offen")
    A.i(f"buffer_load_dwordx4 {v(W+4,4)}, v7, s[28:31], s24 offen offset:16")
    srd(A, FL, P_WS, 512*1024, WS['flag'])
    A.i(f"s_load_dword s{SV}, s[{FL}:{FL+1}], {F_NONCE}")
    A.i("v_lshlrev_b32 v3, 4, v2           ; lane*16")
    A.i("s_and_b32 s62, s2, 7")
    A.i("s_lshl_b32 s62, s62, 5")
    A.i("s_lshr_b32 s63, s2, 3")
    A.i("s_add_u32 s62, s62, s63")
    srd(A, 32, P_WS, 4*MB, WS['kvT'])
    A.i("v_lshrrev_b32 v8, 1, v9")
    A.i("v_and_b32 v10, 7, v1")
    A.i("v_xor_b32 v8, v8, v10")
    A.i("v_lshlrev_b32 v8, 4, v8")
    A.i("v_lshl_add_u32 v8, v1, 10, v8")
    A.i("v_and_b32 v10, 1, v9")
    A.i("v_xor_b32 v10, 1, v10")
    A.i("v_lshl_add_u32 v8, v10, 3, v8")
    A.i(f"v_add_u32 v8, {P0B}, v8")
    A.i("v_lshrrev_b32 v10, 6, v0")
    A.i("v_xor_b32 v10, v10, v1")
    A.i("v_lshlrev_b32 v10, 4, v10")
    A.i("v_lshl_add_u32 v10, v9, 8, v10")
    A.i(f"v_add_u32 v10, {P0B}, v10")
    A.i("v_lshlrev_b32 v11, 4, v1")
    A.i("v_lshl_add_u32 v11, v9, 12, v11")
    A.i("s_lshl_b32 s25, s21, 18")
    A.i("s_lshl_b32 s26, s22, 8")
    A.i("s_add_u32 s25, s25, s26")
    A.i("s_add_u32 s26, s25, 0x20000")
    A.i("s_mov_b32 s27, 0xffff0000")
    A.i("s_lshl_b32 s23, s21, 4")
    A.i("s_add_u32 s23, s23, s22")
    A.i("s_lshl_b32 s23, s23, 10")

    A.i("s_lshl_b32 s61, s62, 3")
    A.i("s_add_u32 s61, s61, s20")
    A.i("s_lshl_b32 s61, s61, 11")
    A.i("v_subrev_u32 v12, 16, v2")
    A.i("v_lshlrev_b32 v12, 2, v12")
    A.i("s_cmp_ge_u32 s20, 4")
    A.i(f"s_cbranch_scc1 {N}_noh")
    A.i("s_lshl_b32 s63, s62, 2")
    A.i("s_add_u32 s63, s63, s20           ; channel d")
    A.i("s_lshl_b32 s60, s63, 12")
    srd(A, 8, P_SSM, 4*MB)
    for u in range(4):
        A.i(f"buffer_load_dwordx4 {v(HH+4*u,4)}, v3, s[8:11], s60 offen offset:{1024*u} {nt}")
    A.i("s_lshr_b32 s60, s63, 1")
    A.i("s_lshl_b32 s60, s60, 2")
    A.i(f"s_load_dword s82, s[{P_D}:{P_D+1}], s60                 ; D pair")
    xrow_load()
    A.i(f"v_mov_b32 {v(vWM)}, 0")
    A.i(f"v_mov_b32 {v(vCO)}, 0")
    A.i("s_waitcnt vmcnt(6)")
    A.i(f"s_branch {N}_h1")
    A.label(f"{N}_noh")
    A.i("s_sub_u32 s63, s20, 4             ; lw")
    xrow_load()
    A.i("s_lshr_b32 s36, s2, 1")
    A.i("s_and_b32 s37, s2, 1")
    A.i("s_lshl_b32 s37, s37, 2")
    A.i("s_add_u32 s37, s37, s63           ; k part 0..7")
    A.i("v_and_b32 v4, 7, v2               ; cc")
    A.i("v_lshrrev_b32 v5, 3, v2")
    A.i(f"s_mov_b32 s80, {16*12288}")
    A.i(f"v_mul_lo_u32 {v(vWM)}, v5, s80")
    A.i(f"v_lshl_add_u32 {v(vWM)}, v4, 4, {v(vWM)}")
    A.i(f"v_lshlrev_b32 {v(vCO)}, 5, v5")
    A.i(f"s_mul_i32 s80, s37, {128*12288}")
    A.i("s_lshl_b32 s81, s36, 7")
    A.i("s_add_u32 s80, s80, s81")
    A.i("s_lshl_b32 s37, s37, 8            ; c soffset")
    srd(A, 12, P_WM, 1024*12288)
    srd(A, 28, P_C, 2048)
    A.i(f"s_cmp_ge_u32 s2, {0 if nogemv else 192}")
    A.i("s_cselect_b32 s14, 0, s14")
    A.i("s_waitcnt vmcnt(2)")
    stream(0, E1)
    A.label(f"{N}_h1")
    if halo:
        for j in range(3):
            for e in range(2):
                A.i(f"ds_bpermute_b32 {v(96+2*j+e)}, v12, {v(K+2*(j+4)+e)}")
        A.i("v_cmp_gt_u32 vcc, 16, v2")
    WU = 48
    for pr in range(2):
        for e in range(2):
            ch = 2*pr + e
            for tap in range(4):
                src = W + 2*ch + tap//2
                dst = WU + (pr*4+tap)*2 + e
                if tap % 2 == 0: A.i(f"v_lshlrev_b32 {v(dst)}, 16, {v(src)}")
                else:            A.i(f"v_and_b32 {v(dst)}, s27, {v(src)}")
    if halo:
        A.i("s_waitcnt lgkmcnt(0)")
        for j in range(6):
            A.i(f"v_cndmask_b32 {v(K+j)}, {v(96+j)}, {v(K+j)}, vcc")
    KU, VU, R = 64, 80, 88
    for pr in range(2):
        for j in range(7):
            A.i(f"v_lshlrev_b32 {v(KU+2*j)}, 16, {v(K+2*j+pr)}")
            A.i(f"v_and_b32 {v(KU+2*j+1)}, s27, {v(K+2*j+pr)}")
        for j in range(4):
            A.i(f"v_lshlrev_b32 {v(VU+2*j)}, 16, {v(V+2*j+pr)}")
            A.i(f"v_and_b32 {v(VU+2*j+1)}, s27, {v(V+2*j+pr)}")
        w = lambda tap: v(WU+(pr*4+tap)*2, 2)
        for r in range(4):
            A.i(f"v_pk_mul_f32 {v(R+2*r,2)}, {v(KU+2*r,2)}, {w(3)}")
        for tap in (2,1,0):
            for r in range(4):
                A.i(f"v_pk_fma_f32 {v(R+2*r,2)}, {v(KU+2*(r+3-tap),2)}, {w(tap)}, {v(R+2*r,2)}")
        for r in range(4):
            A.i(f"v_pk_mul_f32 {v(R+2*r,2)}, {v(R+2*r,2)}, {v(VU+2*r,2)}")
        for e in range(2):
            d = 96 + (pr*2+e)*2
            A.i(f"v_cvt_pk_bf16_f32 {v(d)}, {v(R+6+e)}, {v(R+4+e)}")
            A.i(f"v_cvt_pk_bf16_f32 {v(d+1)}, {v(R+2+e)}, {v(R+e)}")
            A.i(f"ds_write_b64 v8, {v(d,2)} offset:{(2*pr+e)*256}")
    A.i("s_waitcnt lgkmcnt(0)")
    A.i("s_barrier                         ; b0")
    A.i("ds_read_b128 v[16:19], v10")
    A.i("ds_read_b128 v[20:23], v10 offset:8192")
    A.i(f"s_mul_i32 s{SV}, s{SV}, 0x9e3779b1")
    A.i(f"s_add_u32 s{SV}, s{SV}, 0x7f4a7c15")
    A.i("s_mov_b32 s21, s62")
    A.i("s_waitcnt lgkmcnt(1)")
    A.i(f"buffer_store_dwordx4 v[16:19], v11, s[32:35], s25 offen {WT}")
    A.i("s_waitcnt lgkmcnt(0)")
    A.i(f"buffer_store_dwordx4 v[20:23], v11, s[32:35], s26 offen {WT}")
    A.i("v_mov_b32 v12, 0")
    A.i(f"v_mov_b32 v13, s{SV}")
    A.label(f"{N}_p0end")
    mark(20)
    A.i("s_cmp_ge_u32 s20, 4")
    A.i(f"s_cbranch_scc1 {N}_L")

    NP = 4
    def gate(tag):
        A.label(tag)
        A.i("ds_read_b32 v15, v14 offset:8")
        A.i("s_waitcnt lgkmcnt(0)")
        A.i("v_cmp_ne_u32 vcc, 256, v15")
        A.i("s_nop 1")
        A.i(f"s_cbranch_vccnz {tag}")

    X, Y, M, MF, T, H = 16, 24, 32, 88, 136, 144
    XF, RS, LA = 176, 192, 196
    def unpack(dst, src):
        A.i(f"v_lshlrev_b32 {v(dst)}, 16, {v(src)}")
        A.i(f"v_and_b32 {v(dst+1)}, s27, {v(src)}")
    def stats(t):
        a, b_ = v(t,2), v(t+2,2)
        A.i(f"v_pk_add_f32 {a}, {v(XF,2)}, {v(XF+2,2)}")
        A.i(f"v_pk_mul_f32 {b_}, {v(XF,2)}, {v(XF,2)}")
        A.i(f"v_pk_fma_f32 {b_}, {v(XF+2,2)}, {v(XF+2,2)}, {b_}")
        for q in range(2, 8):
            b = XF + 2*q
            A.i(f"v_pk_add_f32 {a}, {a}, {v(b,2)}")
            A.i(f"v_pk_fma_f32 {b_}, {v(b,2)}, {v(b,2)}, {b_}")
        A.i(f"v_add_f32 {v(t+4)}, {v(t)}, {v(t+1)}")
        A.i(f"v_add_f32 {v(t+5)}, {v(t+2)}, {v(t+3)}")
        wave_reduce(A, [t+4, t+5])
        A.i("s_nop 0")
        A.i(f"v_readlane_b32 s52, {v(t+4)}, 63")
        A.i(f"v_readlane_b32 s53, {v(t+5)}, 63")
        A.i(f"v_mov_b32 {v(t+2)}, 0x3a800000        ; 1/1024")
        A.i("s_nop 0")
        A.i(f"v_mul_f32 {v(t)}, s52, {v(t+2)}           ; mean")
        A.i(f"v_mul_f32 {v(t+1)}, s53, {v(t+2)}         ; E[x^2]")
        A.i(f"v_fma_f32 {v(t+1)}, -{v(t)}, {v(t)}, {v(t+1)}     ; var")
        A.i(f"v_max_f32 {v(t+1)}, 0, {v(t+1)}")
        A.i(f"v_add_f32 {v(t+1)}, 0x3727c5ac, {v(t+1)}   ; + 1e-5")
        A.i(f"v_rsq_f32 {v(RS)}, {v(t+1)}")
        A.i("s_nop 0")
        A.i(f"v_mul_f32 {v(RS+2)}, -{v(t)}, {v(RS)}")
    def ln_pre(t):
        A.i("s_lshr_b32 s52, s20, 1")
        A.i(f"v_lshrrev_b32 {v(LA)}, 1, v2")
        A.i(f"v_xor_b32 {v(LA)}, s52, {v(LA)}")
        A.i(f"v_and_b32 {v(LA)}, 3, {v(LA)}")
        A.i(f"v_lshlrev_b32 {v(LA)}, 4, {v(LA)}")
        A.i(f"v_lshl_add_u32 {v(LA)}, v2, 7, {v(LA)}")
        A.i("s_and_b32 s52, s20, 1")
        A.i("s_lshl_b32 s52, s52, 3")
        A.i(f"s_add_u32 s52, s52, {LNY}")
        A.i(f"v_add_u32 {v(LA)}, s52, {v(LA)}")
        A.i(f"v_add_u32 {v(LA+1)}, {LNT}, v3")
        for q in range(8):
            unpack(XF + 2*q, XROW + q)
        stats(t)
    def ln_main(hi, after_b3=None):
        rs = f"{v(RS,2)}, {v(RS+2,2)} op_sel_hi:[1,0,0]"
        srd(A, 28, P_WS, 4*MB, WS['x1'])
        srd(A, 32, P_WS, 4*MB, WS['h2'])
        A.i("s_mov_b32 s27, 0xffff0000")
        for q in range(8):
            A.i(f"v_pk_fma_f32 {v(H+2*q,2)}, {v(XF+2*q,2)}, {rs}")
        A.i("s_barrier")
        if not hi: mark(3)
        for vec in (1, 0, 2, 4, 3):
            for hf in range(2):
                A.i(f"ds_read_b128 {v(M+(vec*2+hf)*4,4)}, {v(LA+1)} offset:{vec*2048 + hf*1024}")
        if after_b3: after_b3()
        SA, CA, GA = MF, MF+16, MF+32
        A.i("s_waitcnt lgkmcnt(6)")
        for q in range(8):
            unpack(CA+2*q, M+8+q); unpack(SA+2*q, M+q)
            A.i(f"v_pk_fma_f32 {v(H+2*q,2)}, {v(H+2*q,2)}, {v(CA+2*q,2)}, {v(SA+2*q,2)}")
        A.i("s_waitcnt lgkmcnt(4)")
        for q in range(8):
            unpack(GA+2*q, M+16+q)
            A.i(f"v_pk_mul_f32 {v(H+2*q,2)}, {v(H+2*q,2)}, {v(GA+2*q,2)}")
        A.i("s_waitcnt lgkmcnt(0)")
        SB, CB = MF, MF+16
        for q in range(8):
            unpack(CB+2*q, M+32+q); unpack(SB+2*q, M+24+q)
        if not hi:
            mark(16)
            A.i("s_waitcnt vmcnt(0)")
        A.i("s_barrier                         ; b4: y landed")
        if not hi: mark(17)
        for hf in range(2):
            for e in range(2):
                A.i(f"ds_read_b64 {v(Y+(hf*2+e)*2,2)}, {v(LA)} offset:{hf*8192 + e*64}")
        for q in range(8):
            t = T + (q % 2) * 2
            if q % 2 == 0: A.i(f"s_waitcnt lgkmcnt({3 - q//2})")
            unpack(t, Y + q)
            A.i(f"v_pk_fma_f32 {v(H+2*q,2)}, {v(H+2*q,2)}, {v(t,2)}, {v(XF+2*q,2)}")
            A.i(f"v_cvt_pk_bf16_f32 {v(X+q)}, {v(H+2*q)}, {v(H+2*q+1)}")
            unpack(XF+2*q, X+q)
        for hf in range(2):
            A.i(f"buffer_store_dwordx4 {v(X+hf*4,4)}, v3, s[28:31], s61 offen offset:{hf*1024} {WT}")
        stats(8)
        for q in range(8):
            A.i(f"v_pk_fma_f32 {v(H+2*q,2)}, {v(XF+2*q,2)}, {rs}")
            A.i(f"v_pk_fma_f32 {v(H+2*q,2)}, {v(H+2*q,2)}, {v(CB+2*q,2)}, {v(SB+2*q,2)}")
            A.i(f"v_cvt_pk_bf16_f32 {v(Y+q)}, {v(H+2*q)}, {v(H+2*q+1)}")
        for hf in range(2):
            A.i(f"buffer_store_dwordx4 {v(Y+hf*4,4)}, v3, s[32:35], s61 offen offset:{hf*1024} {WT}")
        A.i("s_lshl_b32 s22, s21, 10")
        A.i(f"v_mov_b32 v8, {CNT}")
    def ln_signal(tag):
        arrive(tag, 20, 8, "s22", F_H2, vc=8, vt=9)

    def g1_ids():
        A.i("s_and_b32 s21, s2, 1")
        A.i("s_lshl_b32 s21, s21, 3")
        A.i("s_bfe_u32 s27, s2, 0x30003")
        A.i("s_add_u32 s21, s21, s27            ; sblk")
        A.i("s_bfe_u32 s22, s2, 0x20001")
        A.i("s_lshl_b32 s22, s22, 2")
        A.i("s_lshr_b32 s27, s2, 6")
        A.i("s_add_u32 s22, s22, s27            ; fblk")
    def g2_ids():
        A.i("s_and_b32 s52, s2, 1               ; khalf")
        A.i("s_bfe_u32 s21, s2, 0x20001")
        A.i("s_lshl_b32 s21, s21, 2")
        A.i("s_bfe_u32 s27, s2, 0x20003")
        A.i("s_add_u32 s21, s21, s27            ; sblk")
        A.i("s_lshr_b32 s22, s2, 5")

    A.i("s_mov_b32 s22, s63                ; channel d")
    A.i(f"s_mul_i32 s62, s20, {WB}")
    A.i("s_lshl_b32 s24, s22, 12           ; d*4096")
    Hh, XR = HH, 16
    A.i("v_mov_b32 v32, 0"); A.i("v_mov_b32 v33, 0"); A.i("v_mov_b32 v34, 0"); A.i("v_mov_b32 v35, 0")

    A.i("v_add_u32 v4, s62, v3")
    A.i(f"ds_write_b128 v4, v[32:35] offset:{XO}")
    A.i("v_min_u32 v5, 25, v2")
    A.i("v_lshlrev_b32 v5, 4, v5")
    A.i("v_add_u32 v5, s62, v5")
    A.i(f"ds_write_b128 v5, v[32:35] offset:{XO+1024}")
    A.i("v_and_b32 v6, 15, v2              ; r / i")
    A.i("v_lshrrev_b32 v7, 4, v2           ; g")
    A.i("v_and_b32 v8, 3, v6")
    A.i(f"v_mul_u32_u24 v8, {HC}, v8")
    A.i("v_lshl_add_u32 v5, v7, 4, v8")
    A.i("v_add_u32 v5, s62, v5")
    A.i("ds_write_b128 v5, v[32:35]")
    A.i("v_lshrrev_b32 v5, 2, v2")
    A.i("v_mul_u32_u24 v5, 96, v5")
    A.i("v_and_b32 v9, 3, v2")
    A.i("v_lshl_add_u32 v5, v9, 4, v5")
    A.i("v_add_u32 v5, s62, v5")
    A.i("v_lshrrev_b32 v9, 2, v6")
    A.i("v_lshlrev_b32 v10, 1, v7")
    A.i("v_sub_u32 v9, v9, v10")
    A.i("v_add_u32 v9, 7, v9")
    A.i("v_lshl_add_u32 v8, v9, 3, v8")
    A.i("v_add_u32 v8, s62, v8             ; vA")
    A.i("v_mul_u32_u24 v9, 96, v6")
    A.i("v_lshl_add_u32 v9, v7, 4, v9")
    A.i(f"s_add_u32 s25, s62, {XO + 96*14}")
    A.i("v_add_u32 v9, s25, v9             ; vB - 96")
    ACC = 48
    FS = [80, 128]
    for r in range(32):
        A.i(f"v_mov_b32 {v(ACC+r)}, 0")
    DI = 36
    A.i("v_lshlrev_b32 v10, 3, v7")
    A.i("v_add_u32 v10, 7, v10")
    A.i("v_sub_u32 v10, v10, v6")
    A.i("v_and_b32 v11, 1, v10")
    A.i("v_lshlrev_b32 v11, 4, v11")
    A.i("v_ashrrev_i32 v10, 1, v10")
    A.i("s_and_b32 s25, s22, 1")
    A.i("s_lshl_b32 s25, s25, 4")
    A.i("s_lshr_b32 s82, s82, s25")
    A.i("s_and_b32 s82, s82, 0xffff")
    A.i("v_lshlrev_b32 v11, v11, s82")
    for rt in range(2):
        for q in range(4):
            A.i(f"v_cmp_eq_u32 s[{8+2*q}:{9+2*q}], {q + 8*rt}, v10")
        for q in range(4):
            A.i(f"v_cndmask_b32 {v(DI+4*rt+q)}, 0, v11, s[{8+2*q}:{9+2*q}]")
    arrive(f"{N}_ak", 16, 8, "s23", F_KV)
    mark(21)
    P, TT = 96, 100
    for u in range(4):
        R = Hh + 4*u
        p = P + 2*(u % 2)
        t = TT + 12*(u % 2)
        if u == 0:
            A.i(f"v_mov_b32 {v(p)}, 0"); A.i(f"v_mov_b32 {v(p+1)}, 0")
        else:
            A.i(f"v_mov_b32_dpp {v(p)}, {v(R-2)} wave_ror:1 row_mask:0xf bank_mask:0xf")
            A.i(f"v_mov_b32_dpp {v(p+1)}, {v(R-1)} wave_ror:1 row_mask:0xf bank_mask:0xf")
        A.i(f"ds_write_b128 v4, {v(R,4)} offset:{3*HC + 64 + 1024*u}")
        A.i(f"v_mov_b32_dpp {v(p)}, {v(R+2)} wave_shr:1 row_mask:0xf bank_mask:0xf")
        A.i(f"v_mov_b32_dpp {v(p+1)}, {v(R+3)} wave_shr:1 row_mask:0xf bank_mask:0xf")
        A.i(f"v_alignbit_b32 {v(t+5)}, {v(R+1)}, {v(R)}, 16")
        A.i(f"v_alignbit_b32 {v(t+6)}, {v(R+2)}, {v(R+1)}, 16")
        A.i(f"v_alignbit_b32 {v(t+7)}, {v(R+3)}, {v(R+2)}, 16")
        A.i(f"v_alignbit_b32 {v(t+4)}, {v(R)}, {v(p+1)}, 16")
        A.i(f"ds_write_b128 v4, {v(t+4,4)} offset:{2*HC + 64 + 1024*u}")
        A.i(f"v_mov_b32 {v(t)}, {v(p+1)}")
        for e in range(3): A.i(f"v_mov_b32 {v(t+1+e)}, {v(R+e)}")
        A.i(f"ds_write_b128 v4, {v(t,4)} offset:{1*HC + 64 + 1024*u}")
        A.i(f"v_alignbit_b32 {v(t+8)}, {v(p+1)}, {v(p)}, 16")
        for e in range(3): A.i(f"v_mov_b32 {v(t+9+e)}, {v(t+4+e)}")
        A.i(f"ds_write_b128 v4, {v(t+8,4)} offset:{64 + 1024*u}")
    ln_pre(96)
    A.i("s_lshr_b32 s25, s21, 4")
    A.i("s_lshl_b32 s25, s25, 14")
    A.i(f"s_add_u32 s25, s25, {F_KV}")
    A.i("v_lshlrev_b32 v10, 10, v6")
    A.i("v_add_u32 v10, s25, v10")
    srd(A, 28, P_WS, 4*MB, WS['kvT'])
    poll(A, f"{N}_pk", 10)
    mark(22)
    for u in range(4):
        A.i(f"buffer_load_dwordx4 {v(XR+4*u,4)}, v3, s[28:31], s24 offen offset:{1024*u} {WT}")
    A.i("v_mov_b32 v15, 1")
    A.i("ds_add_u32 v14, v15 offset:8")
    for u in range(4):
        A.i(f"s_waitcnt vmcnt({3-u})")
        A.i(f"ds_write_b128 v5, {v(XR+4*u,4)} offset:{XO + 96*15 + 96*16*u}")
    A.i("s_waitcnt lgkmcnt(0)")
    mark(0)
    def creads(fs, par):
        out = []
        F = FS[fs]
        def ar(j):
            for rt in range(2):
                for hb in range(2):
                    out.append(f"ds_read_b64 {v(F+(j*2+rt)*4+2*hb,2)}, v8 offset:{64*(par+16*j) + 32*rt + 8*hb}")
        ar(0)
        for d in range(4):
            out.append(f"ds_read_b128 {v(F+32+4*d,4)}, v9 offset:{96*(16*d + 1 - par)}")
        for j in range(1,4): ar(j)
        return out
    def cbody(fs, side):
        F = FS[fs]
        side = list(side)
        n = 0
        for j in range(4):
            A.i("s_waitcnt lgkmcnt(12)" if n == 0 else "s_waitcnt lgkmcnt(15)")
            for d in range(4-j):
                for rt in range(2):
                    ac = ACC + ((j+d)*2+rt)*4
                    A.i(f"v_mfma_f32_16x16x32_bf16 {v(ac,4)}, {v(F+(j*2+rt)*4,4)}, {v(F+32+4*d,4)}, {v(ac,4)}")
                    if side: A.i(side.pop(0))
                    n += 1
        for x in side: A.i(x)
    for x in creads(0, 0): A.i(x)
    A.i("s_waitcnt lgkmcnt(12)")
    for d in range(4):
        for rt in range(2):
            ac = ACC + (d*2+rt)*4
            A.i(f"v_mfma_f32_16x16x32_bf16 {v(ac,4)}, {v(DI+4*rt,4)}, {v(FS[0]+32+4*d,4)}, {v(ac,4)}")
    A.i("s_mov_b32 s26, 8")
    A(".p2align 6")
    A.label(f"{N}_cv")
    cbody(0, creads(1, 1))
    A.i("v_add_u32 v8, 128, v8")
    A.i("v_subrev_u32 v9, 192, v9")
    cbody(1, creads(0, 0))
    A.i("s_sub_u32 s26, s26, 1")
    A.i("s_cmp_lg_u32 s26, 0")
    A.i(f"s_cbranch_scc1 {N}_cv")
    A.i("v_mul_u32_u24 v10, 80, v6")
    A.i("v_lshl_add_u32 v10, v7, 3, v10")
    A.i("v_add_u32 v10, s62, v10")
    srd(A, 16, P_WS, 4*MB, WS['y4'])
    A.i("s_waitcnt lgkmcnt(0)")
    for G in range(4):
        for rt in range(2):
            ac = ACC + (G*2+rt)*4
            d = 16 + (G*2+rt)*2
            A.i(f"v_cvt_pk_bf16_f32 {v(d)}, {v(ac)}, {v(ac+1)}")
            A.i(f"v_cvt_pk_bf16_f32 {v(d+1)}, {v(ac+2)}, {v(ac+3)}")
            A.i(f"ds_write_b64 v10, {v(d,2)} offset:{80*16*G + 32*rt}")
    A.i("v_lshrrev_b32 v11, 4, v0")
    A.i("v_mul_u32_u24 v11, 80, v11")
    A.i("v_lshl_add_u32 v11, v6, 2, v11")
    A.i(f"v_add_u32 v13, {3*WB}, v11")
    A.i("v_lshlrev_b32 v12, 4, v0")
    A.i("s_lshl_b32 s25, s21, 14")
    A.i("s_mov_b32 s34, 0x05040100")
    A.i("s_mov_b32 s35, 0x07060302")
    A.i("s_waitcnt lgkmcnt(0)")
    mark(1)
    A.i("v_mov_b32 v15, 1")
    A.i("ds_add_u32 v14, v15")
    A.label(f"{N}_ys")
    A.i("ds_read_b32 v15, v14")
    A.i("s_waitcnt lgkmcnt(0)")
    A.i("v_cmp_ne_u32 vcc, 256, v15")
    A.i("s_nop 1")
    A.i(f"s_cbranch_vccnz {N}_ys")
    mark(12)
    for u in range(4):
        for ch in range(4):
            if ch < 3: A.i(f"ds_read_b32 {v(48+4*u+ch)}, v11 offset:{ch*WB + 80*16*u}")
            else:      A.i(f"ds_read_b32 {v(48+4*u+ch)}, v13 offset:{80*16*u}")
    for u in range(4):
        A.i(f"s_waitcnt lgkmcnt({12-4*u})")
        s0 = 48+4*u; d = 64+4*u
        A.i(f"v_perm_b32 {v(d)}, {v(s0+1)}, {v(s0)}, s34")
        A.i(f"v_perm_b32 {v(d+1)}, {v(s0+3)}, {v(s0+2)}, s34")
        A.i(f"v_perm_b32 {v(d+2)}, {v(s0+1)}, {v(s0)}, s35")
        A.i(f"v_perm_b32 {v(d+3)}, {v(s0+3)}, {v(s0+2)}, s35")
        A.i(f"s_add_u32 s26, s25, {4096*u}")
        A.i(f"buffer_store_dwordx4 {v(d,4)}, v12, s[16:19], s26 offen {WT}")
    mark(13)
    A.i("s_waitcnt vmcnt(0)")
    mark(15)
    A.i("s_barrier                         ; b2")
    mark(2)
    A.i("s_cmp_lg_u32 s20, 0")
    A.i(f"s_cbranch_scc1 {N}_gb")
    A.i("s_lshl_b32 s22, s2, 10")
    A.i(f"v_mov_b32 v13, s{SV}")
    A.i("s_mov_b64 exec, 1")
    A.i(f"buffer_store_dword v13, off, s[{FL}:{FL+3}], s22 offset:{F_BAR} {WT}")
    A.i("s_mov_b64 exec, -1")
    A.i("v_lshlrev_b32 v12, 10, v2")
    A.i(f"v_add_u32 v12, {F_BAR}, v12")
    A.i("v_lshrrev_b32 v4, 4, v2")
    A.i("v_xor_b32 v4, v4, v2")
    A.i("v_and_b32 v4, 3, v4")
    A.i("v_lshlrev_b32 v4, 4, v4")
    A.i("v_lshrrev_b32 v5, 2, v2")
    A.i("v_lshl_add_u32 v4, v5, 14, v4")
    A.i("s_lshl_b32 s23, s21, 6")
    srd(A, 12, P_WS, 4*MB, WS['y4'])
    A.i(f"s_mov_b32 m0, {LNY}")
    poll_all(A, f"{N}_pg", 12, 4, cnt=39)
    mark(14)
    for e in range(16):
        A.i(f"buffer_load_dwordx4 v4, s[12:15], s23 offen {WT} lds")
        A.i("s_add_u32 m0, m0, 1024")
        A.i("s_add_u32 s23, s23, 0x40000")
    A.i("s_cmp_lg_u32 s2, 0")
    A.i(f"s_cbranch_scc1 {N}_gb")
    A.i(f"v_mov_b32 v12, {F_NONCE}")
    A.i(f"buffer_store_dword v13, v12, s[{FL}:{FL+3}], 0 offen {WT}")
    A.label(f"{N}_gb")
    ln_main(False)
    ACC = 128
    FS = [16, 60]
    vXb0, vXb1, vWb0, vWb1 = 4, 5, 6, 7
    vX0, vX1, vW0, vW1 = 104, 105, 106, 107
    A.i("s_and_b32 s28, s20, 1              ; ws")
    A.i("s_lshr_b32 s29, s20, 1             ; wf")
    A.i("v_and_b32 v110, 15, v2             ; n")
    A.i("v_lshrrev_b32 v12, 4, v2           ; g")
    A.i("v_and_b32 v13, 7, v110")
    A.i("v_xor_b32 v13, v13, v12")
    A.i("v_lshlrev_b32 v13, 4, v13")
    A.i("s_lshl_b32 s27, s28, 13")
    A.i(f"s_add_u32 s27, s27, {G1X}")
    A.i(f"v_lshl_add_u32 {v(vXb0)}, v110, 7, v13")
    A.i(f"v_add_u32 {v(vXb0)}, s27, {v(vXb0)}")
    A.i(f"v_xor_b32 {v(vXb1)}, 64, {v(vXb0)}")
    A.i("v_lshrrev_b32 v13, 2, v110")
    A.i("v_lshl_add_u32 v13, v12, 3, v13")
    A.i("v_mul_u32_u24 v13, 448, v13")
    A.i("v_and_b32 v14, 3, v2")
    A.i("v_lshl_add_u32 v13, v14, 3, v13")
    A.i("s_mul_i32 s27, s29, 224")
    A.i("v_add_u32 v13, s27, v13")
    A.i("v_and_b32 v14, 1, v12")
    A.i("v_lshlrev_b32 v14, 5, v14")
    A.i(f"v_add_u32 {v(vWb0)}, v13, v14")
    A.i(f"v_sub_u32 {v(vWb1)}, v13, v14")
    A.i("s_cmp_eq_u32 s29, 0")
    A.i(f"s_cbranch_scc1 {N}_noswap")
    A.i(f"v_swap_b32 {v(vWb0)}, {v(vWb1)}")
    A.label(f"{N}_noswap")
    for r in range(32, 112):
        A.i(f"v_mov_b32 {v(ACC+r)}, 0")
    mark(19)
    ln_signal(f"{N}_ah")
    mark(4)
    for r in range(32):
        A.i(f"v_mov_b32 {v(ACC+r)}, 0")
    g1_ids()
    srd(A, 16, P_WS, 2048*3584*2, WS['act'])
    def g1reads(fs, kk):
        out = []
        Xr, W = FS[fs], FS[fs] + 16
        vx = vX0 if kk == 0 else vX1
        def wr(t):
            for hb in range(2):
                out.append(f"ds_read_b64_tr_b16 {v(W+4*t+2*hb,2)}, {v(vW0 if t%2==0 else vW1)} offset:{(32*kk+4*hb)*448 + 32*t}")
        wr(0)
        for st in range(4):
            out.append(f"ds_read_b128 {v(Xr+4*st,4)}, {v(vx)} offset:{st*2048}")
        for t in range(1, 7): wr(t)
        return out
    def g1phase(fs, side):
        Xr, W = FS[fs], FS[fs] + 16
        side = list(side)
        for t in range(7):
            for st in range(4):
                ac = ACC + (t*4+st)*4
                A.i(f"v_mfma_f32_16x16x32_bf16 {v(ac,4)}, {v(W+4*t,4)}, {v(Xr+4*st,4)}, {v(ac,4)}")
                if side: A.i(side.pop(0))
        for x in side: A.i(x)
    A.i("s_mov_b32 s26, 0")
    A.i("s_mov_b32 s24, 0")
    A.i(f"v_mov_b32 {v(vX0)}, {v(vXb0)}")
    A.i(f"v_mov_b32 {v(vX1)}, {v(vXb1)}")
    A.i(f"v_mov_b32 {v(vW0)}, {v(vWb0)}")
    A.i(f"v_mov_b32 {v(vW1)}, {v(vWb1)}")
    A.i("s_mov_b32 s23, 16")
    A.i("s_barrier                          ; G1 B0")
    mark(5)
    for x in g1reads(0, 0): A.i(x)
    A(".p2align 6")
    A.label(f"{N}_g1c")
    A.i("s_waitcnt lgkmcnt(0)")
    nxt = ["s_add_u32 s26, s26, 28672", "s_add_u32 s24, s24, 16384", "s_cmp_eq_u32 s24, 49152",
           "s_cselect_b32 s26, 0, s26", "s_cselect_b32 s24, 0, s24",
           f"v_add_u32 {v(vX0)}, s24, {v(vXb0)}", f"v_add_u32 {v(vW0)}, s26, {v(vWb0)}",
           f"v_add_u32 {v(vW1)}, s26, {v(vWb1)}", f"v_add_u32 {v(vX1)}, s24, {v(vXb1)}"]
    g1phase(0, g1reads(1, 1) + nxt)
    A.i("s_waitcnt lgkmcnt(0)")
    A.i("s_barrier")
    g1phase(1, g1reads(0, 0) + ["s_sub_u32 s23, s23, 1", "s_cmp_lg_u32 s23, 0"])
    A.i(f"s_cbranch_scc1 {N}_g1c")
    mark(6)
    A.i("s_lshl_b32 s27, s21, 3")
    A.i("s_lshl_b32 s30, s28, 2")
    A.i("s_add_u32 s27, s27, s30")
    A.i("s_mul_i32 s27, s27, 112")
    A.i("s_mul_i32 s30, s22, 7")
    A.i("s_add_u32 s27, s27, s30")
    A.i("s_lshl_b32 s27, s27, 10")
    A.i("v_and_b32 v13, 1, v12")
    A.i("v_lshrrev_b32 v14, 1, v12")
    A.i("v_lshl_or_b32 v13, v13, 1, v14     ; pi(g)")
    A.i("v_lshlrev_b32 v108, 4, v13")
    A.i("v_lshlrev_b32 v13, 8, v13")
    A.i("v_lshl_add_u32 v13, v110, 4, v13")
    A.i("v_lshlrev_b32 v14, 8, v14")
    A.i("v_lshl_add_u32 v14, v110, 4, v14")
    A.i("v_and_b32 v15, 1, v12")
    A.i("v_lshl_add_u32 v14, v15, 3, v14")
    A.i(f"s_mov_b32 s32, 0x{LOG2E ^ 0x80000000:x}")
    A.i("s_waitcnt lgkmcnt(0)")
    def silu4(dst, ac, tmp):
        A.i(f"v_pk_mul_f32 {v(tmp,2)}, {v(ac,2)}, s[32:33] op_sel_hi:[1,0]")
        A.i(f"v_pk_mul_f32 {v(tmp+2,2)}, {v(ac+2,2)}, s[32:33] op_sel_hi:[1,0]")
        for r in range(4): A.i(f"v_exp_f32 {v(tmp+r)}, {v(tmp+r)}")
        A.i(f"v_pk_add_f32 {v(tmp,2)}, {v(tmp,2)}, 1.0 op_sel_hi:[1,0]")
        A.i(f"v_pk_add_f32 {v(tmp+2,2)}, {v(tmp+2,2)}, 1.0 op_sel_hi:[1,0]")
        for r in range(4): A.i(f"v_rcp_f32 {v(tmp+r)}, {v(tmp+r)}")
        A.i(f"v_pk_mul_f32 {v(tmp,2)}, {v(tmp,2)}, {v(ac,2)}")
        A.i(f"v_pk_mul_f32 {v(tmp+2,2)}, {v(tmp+2,2)}, {v(ac+2,2)}")
        A.i(f"v_cvt_pk_bf16_f32 {v(dst)}, {v(tmp)}, {v(tmp+1)}")
        A.i(f"v_cvt_pk_bf16_f32 {v(dst+1)}, {v(tmp+2)}, {v(tmp+3)}")
    def ebody(wf):
        pairs = [(0,0),(2,1),(4,2)] if wf == 0 else [(1,4),(3,5),(5,6)]
        single = 6 if wf == 0 else 0
        cnt = 0
        for st in range(4):
            A.i(f"s_add_u32 s30, s27, {st*112*1024}")
            for (t, blk) in pairs:
                d = 16 + (cnt % 4) * 4
                cnt += 1
                silu4(d, ACC + (t*4+st)*4, 40)
                silu4(d+2, ACC + ((t+1)*4+st)*4, 44)
                A.i("s_nop 1")
                A.i(f"v_permlane16_swap_b32 {v(d)}, {v(d+2)}")
                A.i(f"v_permlane16_swap_b32 {v(d+1)}, {v(d+3)}")
                A.i(f"buffer_store_dwordx4 {v(d,4)}, {'v13' if blk < 4 else 'v15'}, s[16:19], s30 offen offset:{(blk%4)*1024} {WT}")
            d = 32 + (st % 2) * 2
            silu4(d, ACC + (single*4+st)*4, 40)
            A.i(f"buffer_store_dwordx2 {v(d,2)}, v14, s[16:19], s30 offen offset:{3*1024 + wf*512} {WT}")
    A.i("v_add_u32 v15, 4096, v13")
    A.i("s_cmp_eq_u32 s29, 0")
    A.i(f"s_cbranch_scc0 {N}_epi1")
    ebody(0)
    A.i(f"s_branch {N}_epi2")
    A.label(f"{N}_epi1")
    ebody(1)
    A.label(f"{N}_epi2")
    mark(7)
    A.i("s_lshl_b32 s62, s21, 4")
    A.i("s_add_u32 s62, s62, s22")
    A.i("s_lshl_b32 s62, s62, 10")

    FS = [16, 48]
    vXb, vWb = 12, 13
    vX, vW = 4, 8
    X1, GB = 96, 112
    g2_ids()
    A.i("v_lshl_add_u32 v81, v110, 11, v108")
    A.i("s_lshl_b32 s30, s21, 1")
    A.i("s_add_u32 s30, s30, s28")
    A.i("s_lshl_b32 s30, s30, 17")
    A.i("s_lshl_b32 s31, s22, 1")
    A.i("s_add_u32 s31, s31, s29")
    A.i("s_lshl_b32 s31, s31, 1")
    A.i("s_add_u32 s31, s31, s52")
    A.i("s_lshl_b32 s31, s31, 6")
    A.i("s_add_u32 s30, s30, s31")
    A.i("s_lshl_b32 s31, s31, 1")
    A.i(f"s_add_u32 s31, s31, {5*4096}")
    A.i("v_lshrrev_b32 v14, 4, v2           ; g")
    A.i("v_lshrrev_b32 v80, 2, v110")
    A.i("v_lshl_add_u32 v82, v14, 3, v80")
    A.i("v_and_b32 v83, 1, v14")
    A.i("v_xor_b32 v83, s29, v83")
    A.i("v_lshl_or_b32 v80, v83, 2, v80")
    A.i("v_lshlrev_b32 v80, 5, v80")
    A.i("v_and_b32 v83, 3, v2")
    A.i("v_lshl_add_u32 v80, v83, 3, v80")
    A.i(f"v_lshl_add_u32 {v(vWb)}, v82, 8, v80")
    A.i("s_lshl_b32 s27, s28, 13")
    A.i(f"s_add_u32 s27, s27, {G2X}")
    A.i(f"v_add_u32 {v(vXb)}, s27, v3")
    A.i("v_mov_b32 v83, 0")
    A.i(f"v_mov_b32 v94, s{SV}")
    A.i(f"v_mov_b32 v92, {CNT}")
    arrive(f"{N}_aa", 24, 4, "s62", F_ACT, vc=92, vt=93)
    mark(8)
    for r in range(64):
        A.i(f"v_mov_b32 {v(ACC+r)}, 0")
    def g2addr():
        out = ["s_add_u32 s26, s26, 16384", "s_and_b32 s26, s26, 0xffff",
               f"v_add_u32 {v(vW)}, s26, {v(vWb)}", f"v_add_u32 {v(vX)}, s26, {v(vXb)}"]
        for t in range(1, 4):
            out.append(f"v_xor_b32 {v(vW+t)}, {32*t}, {v(vW)}")
        return out
    def g2reads(fs, kk):
        out = []
        Xr, W = FS[fs], FS[fs] + 16
        def wr(t):
            for hb in range(2):
                out.append(f"ds_read_b64_tr_b16 {v(W+4*t+2*hb,2)}, {v(vW+t)} offset:{kk*8192 + hb*1024}")
        wr(0)
        for st in range(4):
            out.append(f"ds_read_b128 {v(Xr+4*st,4)}, {v(vX)} offset:{st*2048 + kk*1024}")
        for t in range(1, 4): wr(t)
        return out
    def g2phase(fs, side):
        Xr, W = FS[fs], FS[fs] + 16
        side = list(side)
        n = 0
        for t in range(4):
            for st in range(4):
                ac = ACC + (t*4+st)*4
                A.i(f"v_mfma_f32_16x16x32_bf16 {v(ac,4)}, {v(W+4*t,4)}, {v(Xr+4*st,4)}, {v(ac,4)}")
                n += 1
                for _ in range(1 if n <= 12 else 2):
                    if side: A.i(side.pop(0))
        for x in side: A.i(x)
    A.i("s_mov_b32 s26, 49152")
    for x in g2addr(): A.i(x)
    srd(A, 8, P_WS, 4*MB, WS['x1'])
    srd(A, 12, P_WS, 2*24576, WS['mod'])
    srd(A, 16, P_OUT, 4*MB)
    A.i("v_lshlrev_b32 v15, 1, v108")
    A.i(f"s_add_u32 s25, s31, 24576")
    A.i("s_mov_b32 s23, 28")
    A.i("s_barrier                          ; G2 B0")
    mark(9)
    for x in g2reads(0, 0): A.i(x)
    for st in range(4):
        A.i(f"s_add_u32 s{32+st}, s30, {st*16*2048}")
        A.i(f"buffer_load_dwordx4 {v(X1+4*st,4)}, v81, s[8:11], s{32+st} offen {WT}")
    for h in range(2):
        for e in range(2):
            A.i(f"buffer_load_dwordx4 {v(GB+8*h+4*e,4)}, v15, s[12:15], {'s31' if h==0 else 's25'} offen offset:{16*e} {WT}")
    srd(A, 8, P_WS, 8*MB, WS['xch'])
    A(".p2align 6")
    A.label(f"{N}_g2c")
    A.i("s_waitcnt lgkmcnt(0)")
    g2phase(0, g2reads(1, 1) + g2addr())
    A.i("s_waitcnt lgkmcnt(0)")
    A.i("s_barrier")
    g2phase(1, g2reads(0, 0) + ["s_sub_u32 s23, s23, 1", "s_cmp_lg_u32 s23, 0"])
    A.i(f"s_cbranch_scc1 {N}_g2c")
    mark(10)
    A.i("s_lshl_b32 s27, s2, 2")
    A.i("s_add_u32 s27, s27, s20")
    A.i("s_xor_b32 s36, s27, 4")
    A.i("s_lshl_b32 s53, s27, 13")
    A.i("s_lshl_b32 s54, s36, 13")
    A.i("s_add_u32 s55, s53, 4096")
    A.i("s_add_u32 s62, s54, 4096")
    A.i("s_lshl_b32 s63, s2, 10")
    A.i("s_lshl_b32 s27, s20, 7")
    A.i("s_add_u32 s63, s63, s27")
    A.i("s_xor_b32 s27, s63, 1024")
    A.i("v_mov_b32 v82, s27")
    A.i("s_mov_b32 s27, 0xffff0000")
    A.i("s_waitcnt vmcnt(0) lgkmcnt(0)")
    A.i("s_cmp_eq_u32 s52, 0")
    A.i(f"s_cbranch_scc0 {N}_e1")
    def fin(h):
        send = ACC + (2*(1-h))*16
        keep = ACC + (2*h)*16
        for q in range(8):
            A.i(f"buffer_store_dwordx4 {v(send+4*q,4)}, v3, s[8:11], {'s53' if q < 4 else 's55'} offen offset:{1024*(q%4)} {WT}")
        for q in range(4):
            A.i(f"v_pk_add_f32 {v(84+2*q,2)}, {v(GB+2*q,2)}, {v(GB+8+2*q,2)}")
            A.i(f"v_cvt_pk_bf16_f32 v92, {v(84+2*q)}, {v(85+2*q)}")
            A.i(f"v_lshlrev_b32 {v(84+2*q)}, 16, v92")
            A.i(f"v_and_b32 {v(85+2*q)}, s27, v92")
        A.i("s_waitcnt vmcnt(0)")
        A.i(f"buffer_store_dword v94, v83, s[{FL}:{FL+3}], s63 offen {WT}")
        poll(A, f"{N}_px{h}", 82, vt=95)
        mark(11)
        for q in (0,4,1,5,2,6,3,7):
            A.i(f"buffer_load_dwordx4 {v(16+4*q,4)}, v3, s[8:11], {'s54' if q < 4 else 's62'} offen offset:{1024*(q%4)} {WT}")
        for st in range(4):
            p, q = keep + st*4, keep + 16 + st*4
            A.i(f"s_waitcnt vmcnt({6-st})")
            for hh in range(2):
                A.i(f"v_pk_add_f32 {v(p+2*hh,2)}, {v(p+2*hh,2)}, {v(16+4*st+2*hh,2)}")
                A.i(f"v_pk_add_f32 {v(q+2*hh,2)}, {v(q+2*hh,2)}, {v(32+4*st+2*hh,2)}")
            A.i("s_nop 1")
            for r in range(4):
                A.i(f"v_permlane16_swap_b32 {v(p+r)}, {v(q+r)}")
            for hh in range(4):
                src = (p if hh < 2 else q) + 2*(hh % 2)
                A.i(f"v_lshlrev_b32 v92, 16, {v(X1+4*st+hh)}")
                A.i(f"v_and_b32 v93, s27, {v(X1+4*st+hh)}")
                A.i(f"v_pk_fma_f32 v[92:93], {v(src,2)}, {v(84+2*hh,2)}, v[92:93]")
                A.i(f"v_cvt_pk_bf16_f32 {v(X1+4*st+hh)}, v92, v93")
            A.i(f"buffer_store_dwordx4 {v(X1+4*st,4)}, v81, s[16:19], s{32+st} offen {outf}")
    fin(0)
    A.i(f"s_branch {N}_fin")
    A.label(f"{N}_e1")
    fin(1)
    A.label(f"{N}_fin")
    if ts and tsw < 4: ts_end(A, N, P_WS, tsw)
    A.i("s_endpgm")

    def l_pre():
        A.i("v_lshrrev_b32 v166, 3, v2")
        A.i("v_and_b32 v175, 7, v2")
        A.i("v_xor_b32 v175, v175, v166")
        A.i("v_lshlrev_b32 v175, 4, v175")
        A.i("v_lshl_add_u32 v175, v166, 11, v175")
        A.i("s_mul_i32 s52, s63, 448")
        A.i("v_add_u32 v162, s52, v2")
        A.i("s_movk_i32 s52, 2341")
        A.i("s_movk_i32 s53, 7168")
        for q in range(7):
            A.i(f"v_add_u32 v163, {64*q}, v162")
            A.i("v_mul_u32_u24 v164, s52, v163")
            A.i("v_lshrrev_b32 v164, 16, v164")
            A.i("v_mul_u32_u24 v165, 28, v164")
            A.i("v_sub_u32 v163, v163, v165")
            A.i("v_bfe_u32 v165, v164, 3, 1")
            A.i("v_lshlrev_b32 v165, 1, v165")
            A.i("v_xor_b32 v163, v163, v165")
            A.i("v_mul_u32_u24 v164, s53, v164")
            A.i(f"v_lshl_add_u32 {v(168+q)}, v163, 4, v164")
        ln_pre(64)
    A.label(f"{N}_L")
    for u in range(2):
        A.i(f"buffer_load_dwordx4 {v(CR+4*u,4)}, {v(vCO)}, s[28:31], s37 offen offset:{16*u}")
    stream(E1, E1+E2)
    arrive(f"{N}_ak2", 16, 8, "s23", F_KV, wait=f"vmcnt({2+E2})")
    A.i("s_cmp_ge_u32 s2, 192")
    A.i(f"s_cbranch_scc1 {N}_Lidle")
    S = 32
    A.i(f"s_mov_b32 s39, 0x{LOG2E ^ 0x80000000:x}")
    A.i(f"s_waitcnt vmcnt({E2})")
    for q in range(8):
        A.i(f"v_lshlrev_b32 {v(S+4*q)}, 16, {v(CR+q)}")
        A.i(f"v_and_b32 {v(S+4*q+2)}, s27, {v(CR+q)}")
    for q in range(8):
        x0, x1 = S+4*q, S+4*q+2
        A.i(f"v_mul_f32 v8, s39, {v(x0)}")
        A.i(f"v_mul_f32 v9, s39, {v(x1)}")
        A.i("v_exp_f32 v8, v8"); A.i("v_exp_f32 v9, v9")
        A.i("s_nop 0")
        A.i("v_add_f32 v8, 1.0, v8"); A.i("v_add_f32 v9, 1.0, v9")
        A.i("v_rcp_f32 v8, v8"); A.i("v_rcp_f32 v9, v9")
        A.i("s_nop 0")
        A.i(f"v_mul_f32 v8, v8, {v(x0)}"); A.i(f"v_mul_f32 v9, v9, {v(x1)}")
        A.i("v_cvt_pk_bf16_f32 v8, v8, v9")
        A.i(f"v_lshlrev_b32 {v(x0)}, 16, v8")
        A.i(f"v_and_b32 {v(x1)}, s27, v8")
    AC = 16
    for r in range(8): A.i(f"v_mov_b32 {v(AC+r)}, 0")
    def fma_rows(j0, j1, later):
        for j in range(j0, j1):
            A.i(f"s_waitcnt vmcnt({later(j)})")
            for q in range(4):
                t = 8 + 2*(q % 2)
                A.i(f"v_lshlrev_b32 {v(t)}, 16, {v(SD+4*j+q)}")
                A.i(f"v_and_b32 {v(t+1)}, s27, {v(SD+4*j+q)}")
                A.i(f"v_pk_fma_f32 {v(AC+2*q,2)}, {v(t,2)}, {v(S+2*j,2)}, {v(AC+2*q,2)} op_sel_hi:[1,0,1]")
    fma_rows(0, E1+E2, lambda j: min(E2, E1+E2-1-j))
    l_pre()
    mark(30)
    gate(f"{N}_gk")
    mark(31)
    stream(E1+E2, 16)
    mark(32)
    if prio: A.i(f"s_setprio {prio}")
    fma_rows(E1+E2, 16, lambda j: 15-j)
    mark(33)
    A.i("s_nop 1")
    for r in range(8):
        A.i(f"v_add_f32_dpp {v(AC+r)}, {v(AC+r)}, {v(AC+r)} row_ror:8 row_mask:0xf bank_mask:0xf")
    for sw in ("v_permlane16_swap_b32", "v_permlane32_swap_b32"):
        for r in range(8): A.i(f"v_mov_b32 {v(24+r)}, {v(AC+r)}")
        for r in range(8): A.i(f"{sw} {v(AC+r)}, {v(24+r)}")
        for r in range(8): A.i(f"v_add_f32 {v(AC+r)}, {v(AC+r)}, {v(24+r)}")
    A.i("s_lshl_b32 s25, s63, 8")
    A.i(f"s_add_u32 s25, s25, {GP}")
    A.i("v_and_b32 v8, 7, v2")
    A.i("v_lshlrev_b32 v8, 5, v8")
    A.i("v_add_u32 v8, s25, v8")
    A.i(f"ds_write_b128 v8, {v(AC,4)}")
    A.i(f"ds_write_b128 v8, {v(AC+4,4)} offset:16")
    A.i(f"v_mov_b32 v9, {CNT+4}")
    A.i("v_mov_b32 v10, 1")
    A.i("s_waitcnt lgkmcnt(0)")
    A.i("ds_add_rtn_u32 v10, v9, v10")
    A.i("s_waitcnt lgkmcnt(0)")
    A.i("v_cmp_le_u32 vcc, 192, v10")
    A.i("s_nop 1")
    A.i(f"s_cbranch_vccz {N}_Lj")
    A.i("v_lshlrev_b32 v8, 2, v2")
    A.i(f"v_add_u32 v9, {GP}, v8")
    for p in range(4):
        A.i(f"ds_read_b32 {v(16+p)}, v9 offset:{256*p}")
    srd(A, 16, P_WS, 2*24576, WS['mod'])
    A.i("s_and_b32 s25, s2, 1")
    A.i("s_mul_i32 s25, s25, 24576")
    A.i("s_lshl_b32 s26, s36, 8")
    A.i("s_add_u32 s25, s25, s26")
    A.i("s_waitcnt lgkmcnt(0)")
    A.i("v_add_f32 v16, v16, v17")
    A.i("v_add_f32 v18, v18, v19")
    A.i("v_add_f32 v16, v16, v18")
    A.i(f"buffer_store_dword v16, v8, s[16:19], s25 offen {WT}")
    A.i("s_lshl_b32 s25, s2, 7")
    A.i(f"s_add_u32 s25, s25, {F_MOD}")
    A.i("s_waitcnt vmcnt(0)")
    A.i("s_mov_b64 exec, 1")
    A.i(f"buffer_store_dword v13, off, s[{FL}:{FL+3}], s25 {WT}")
    A.i("s_mov_b64 exec, -1")
    A.i(f"s_branch {N}_Lj")
    A.label(f"{N}_Lidle")
    l_pre()
    gate(f"{N}_gk2")
    if pw1:
        srd(A, 12, P_W1, D1*64*7168)
        A.i("s_sub_u32 s30, s2, 192")
        A.i("s_lshl_b32 s30, s30, 2")
        A.i("s_add_u32 s30, s30, s63")
        A.i(f"s_mul_i32 s30, s30, {D1*14*128}")
        A.i("v_lshlrev_b32 v11, 7, v2")
        n = D1*14
        for b in range(0, n, 64):
            if n - b < 64: A.i(f"v_min_u32 v11, {(n-b-1)*128}, v11")
            A.i("buffer_load_dword v12, v11, s[12:15], s30 offen")
            A.i("s_add_u32 s30, s30, 8192")
    A.label(f"{N}_Lj")
    if prio: A.i("s_setprio 0")
    mark(34)
    A.i("s_barrier                         ; b2")
    A.i("v_lshlrev_b32 v4, 7, v2")
    A.i(f"v_add_u32 v4, {F_MOD}, v4")
    srd(A, 16, P_WS, 2*24576, WS['mod'])
    A.i("s_lshl_b32 s26, s63, 10")
    A.i("v_and_b32 v7, 0xff, v0")
    A.i("v_lshlrev_b32 v6, 3, v7")
    A.i(f"v_add_u32 v6, {LNT}, v6")
    A.i("v_lshlrev_b32 v7, 4, v7")
    A.i(f"v_add_u32 v7, {LNP}, v7")
    if onepm:
        A.i("s_cmp_lg_u32 s63, 0")
        A.i(f"s_cbranch_scc1 {N}_pmw")
        poll_all(A, f"{N}_pm", 4, 3, cnt=39, stride=8192)
        A.i("v_mov_b32 v15, 1")
        A.i("ds_write_b32 v14, v15 offset:12")
        A.label(f"{N}_pmw")
        A.i("ds_read_b32 v15, v14 offset:12")
        A.i("s_waitcnt lgkmcnt(0)")
        A.i("v_cmp_ne_u32 vcc, 1, v15")
        A.i("s_sleep 1")
        A.i(f"s_cbranch_vccnz {N}_pmw")
    else:
        poll(A, f"{N}_pm", 4, vt=16, wide=True)
    mark(35)
    for r in range(10):
        A.i(f"s_add_u32 m0, s26, {LNP + r*4096}")
        A.i(f"s_add_u32 s22, s26, {r*4096 + (4096 if r >= 5 else 0)}")
        A.i(f"buffer_load_dwordx4 v3, s[16:19], s22 offen {WT} lds")
    A.i("s_waitcnt vmcnt(0)")
    for r in range(5):
        A.i(f"ds_read_b128 {v(32+8*r,4)}, v7 offset:{4096*r}")
        A.i(f"ds_read_b128 {v(36+8*r,4)}, v7 offset:{4096*r + 20480}")
    for r in range(5):
        b = 32 + 8*r
        A.i(f"s_waitcnt lgkmcnt({2*(4-r)})")
        A.i(f"v_pk_add_f32 {v(b,2)}, {v(b,2)}, {v(b+4,2)}")
        A.i(f"v_pk_add_f32 {v(b+2,2)}, {v(b+2,2)}, {v(b+6,2)}")
        A.i(f"v_cvt_pk_bf16_f32 {v(b+4)}, {v(b)}, {v(b+1)}")
        A.i(f"v_cvt_pk_bf16_f32 {v(b+5)}, {v(b+2)}, {v(b+3)}")
        if r in (1, 4):
            unpack(b, b+4); unpack(b+2, b+5)
            A.i(f"v_pk_add_f32 {v(b,2)}, {v(b,2)}, 1.0 op_sel_hi:[1,0]")
            A.i(f"v_pk_add_f32 {v(b+2,2)}, {v(b+2,2)}, 1.0 op_sel_hi:[1,0]")
            A.i(f"v_cvt_pk_bf16_f32 {v(b+4)}, {v(b)}, {v(b+1)}")
            A.i(f"v_cvt_pk_bf16_f32 {v(b+5)}, {v(b+2)}, {v(b+3)}")
        A.i(f"ds_write_b64 v6, {v(b+4,2)} offset:{2048*r}")
    A.i("s_bfe_u32 s80, s2, 0x20001")
    A.i("s_lshl_b32 s80, s80, 2")
    A.i("s_lshr_b32 s22, s2, 6")
    A.i("s_add_u32 s80, s80, s22")
    A.i("s_mul_i32 s80, s80, 448            ; W soffset")
    A.i("s_mul_i32 s81, s63, 7168")
    srd(A, 8, P_W1, 1024*7168)
    def g1w(slot):
        for q in range(7):
            A.i(f"s_add_u32 m0, s81, {slot + q*1024}" if isinstance(slot, int) else f"s_add_u32 m0, {slot}, {q*1024}")
            A.i("s_nop 0")
            A.i(f"buffer_load_dwordx4 {v(168+q)}, s[8:11], s80 offen lds")
        A.i(f"s_add_u32 s80, s80, {64*7168}")
    def pf():
        for j in range(npf): g1w(G1W + j*28672)
    A.i("s_waitcnt lgkmcnt(0)")
    mark(36)
    ln_main(True, pf)
    mark(37)
    ln_signal(f"{N}_ah2")
    mark(38)
    g1_ids()
    A.i("s_lshl_b32 s24, s21, 4")
    A.i("s_lshl_b32 s27, s63, 2")
    A.i("s_add_u32 s24, s24, s27")
    A.i("v_and_b32 v4, 3, v2")
    A.i("v_add_u32 v4, s24, v4")
    A.i("v_lshlrev_b32 v4, 10, v4")
    A.i(f"v_add_u32 v4, {F_H2}, v4")
    A.i("s_lshl_b32 s24, s24, 14")
    A.i("s_lshl_b32 s33, s63, 12")
    A.i(f"s_add_u32 s33, s33, {G1X}")
    srd(A, 12, P_WS, 4*MB, WS['h2'])
    A.i("s_lshl_b32 s82, s2, 2")
    A.i("s_add_u32 s82, s82, s63           ; wave 0..1023")
    A.i("s_mul_i32 s38, s82, 448")
    A.i(f"s_add_u32 s38, s38, {D1*64*7168}")
    A.i(f"s_add_u32 s38, s38, s{P_W1}")
    A.i(f"s_addc_u32 s39, s{P_W1+1}, 0")
    A.i("s_and_b32 s54, s82, 511")
    A.i("s_lshl_b32 s54, s54, 8")
    A.i("s_lshr_b32 s55, s82, 9")
    A.i(f"s_mul_i32 s55, s55, {1792*2048}")
    A.i("s_add_u32 s54, s54, s55")
    A.i(f"s_add_u32 s54, s54, s{P_W2}")
    A.i(f"s_addc_u32 s55, s{P_W2+1}, 0")
    def w2_touch():
        for c in range(4):
            A.i(f"s_load_dword s{44+c}, s[54:55], {c*64}")
        A.i(f"s_add_u32 s54, s54, {64*2048}")
        A.i("s_addc_u32 s55, s55, 0")
    NL1 = 11
    poll(A, f"{N}_ph", 4)
    mark(39)
    def g1x(slot):
        for q in range(4):
            A.i(f"s_add_u32 m0, s33, {slot + q*1024}" if isinstance(slot, int) else f"s_add_u32 m0, {slot}, {q*1024}")
            A.i(f"s_add_u32 s37, s24, {q*8*2048}")
            A.i(f"buffer_load_dwordx4 v175, s[12:15], s37 offen {WT} lds")
        A.i("s_add_u32 s24, s24, 128")
    pend = []
    for j in range(3):
        if j >= npf: g1w(G1W + j*28672)
        g1x(j*16384)
        pend.append(4 + (7 if j >= npf else 0))
    mark(40)
    A.i(f"s_waitcnt vmcnt({pend[1]+pend[2]})")
    mark(41)
    A.i("s_barrier                          ; G1 B0")
    A.i("s_mov_b32 s26, 0")
    A.i("s_mov_b32 s25, 0")
    A.i("s_mov_b32 s23, 13")
    A.i(f"s_waitcnt vmcnt({pend[2]})")
    A.i(f"s_branch {N}_g1l2")
    A.label(f"{N}_g1l")
    A.i(f"s_waitcnt vmcnt({NL1})")
    A.label(f"{N}_g1l2")
    A.i("s_barrier")
    A.i("s_add_u32 s35, s26, s81")
    A.i("s_add_u32 s36, s25, s33")
    g1w("s35"); g1x("s36")
    if pw1:
        A.i(f"s_cmp_le_u32 s23, {13-(16-D1)}")
        A.i(f"s_cbranch_scc1 {N}_t1")
        for c in range(7):
            A.i(f"s_load_dword s{44+(c%4)}, s[38:39], {c*64}")
        A.i(f"s_add_u32 s38, s38, {64*7168}")
        A.i("s_addc_u32 s39, s39, 0")
        A.label(f"{N}_t1")
    if pw2:
        A.i(f"s_cmp_gt_u32 s23, {D2}")
        A.i(f"s_cbranch_scc1 {N}_t2")
        w2_touch()
        A.label(f"{N}_t2")
    A.i("s_add_u32 s26, s26, 28672")
    A.i("s_add_u32 s25, s25, 16384")
    A.i("s_cmp_eq_u32 s25, 49152")
    A.i("s_cselect_b32 s26, 0, s26")
    A.i("s_cselect_b32 s25, 0, s25")
    A.i("s_sub_u32 s23, s23, 1")
    A.i("s_cmp_lg_u32 s23, 0")
    A.i(f"s_cbranch_scc1 {N}_g1l")
    g2_ids()
    A.i("v_lshrrev_b32 v4, 4, v2")
    A.i("v_lshlrev_b32 v5, 1, v4")
    A.i("v_and_b32 v6, 15, v2")
    A.i("v_xor_b32 v5, v5, v6")
    A.i("v_lshlrev_b32 v5, 4, v5")
    A.i("v_lshl_add_u32 v5, v4, 11, v5")
    A.i("v_xor_b32 v6, 128, v5")
    A.i("s_lshl_b32 s24, s21, 3")
    A.i("s_lshl_b32 s27, s63, 1")
    A.i("s_add_u32 s24, s24, s27")
    A.i(f"s_mul_i32 s24, s24, {112*1024}")
    A.i(f"s_mul_i32 s27, s52, {56*1024}")
    A.i("s_add_u32 s24, s24, s27            ; X soffset")
    A.i("s_lshl_b32 s80, s22, 8")
    A.i("s_lshl_b32 s27, s63, 15")
    A.i("s_add_u32 s80, s80, s27")
    A.i(f"s_mul_i32 s27, s52, {1792*2048}")
    A.i("s_add_u32 s80, s80, s27            ; W soffset")
    A.i("s_lshl_b32 s81, s63, 12")
    A.i(f"s_add_u32 s33, s81, {G2X}")
    A.i("s_lshl_b32 s27, s21, 4")
    A.i("s_lshl_b32 s30, s52, 3")
    A.i("s_add_u32 s27, s27, s30")
    A.i("v_and_b32 v7, 7, v2")
    A.i("v_add_u32 v7, s27, v7")
    A.i("v_lshlrev_b32 v7, 10, v7")
    A.i(f"v_add_u32 v7, {F_ACT}, v7")
    for rem in (NL1, 0, 0):
        A.i(f"s_waitcnt vmcnt({rem})")
        A.i("s_barrier")
    srd(A, 8, P_W2, 3584*2048)
    srd(A, 12, P_WS, 2048*3584*2, WS['act'])
    def g2w(slot):
        for q in range(4):
            A.i(f"s_add_u32 m0, s81, {slot + q*1024}" if isinstance(slot, int) else f"s_add_u32 m0, {slot}, {q*1024}")
            A.i(f"s_add_u32 s37, s80, {q*4*2048}")
            A.i(f"buffer_load_dwordx4 {v(5+(q//2))}, s[8:11], s37 offen lds")
        A.i(f"s_add_u32 s80, s80, {64*2048}")
    def g2x(slot):
        A.i(f"s_add_u32 m0, s33, {slot}")
        A.i(f"s_add_u32 s37, s24, {112*1024}")
        for kb in range(2):
            A.i(f"buffer_load_dwordx4 v3, s[12:15], s24 offen offset:{kb*1024} {WT} lds")
        A.i("s_add_u32 m0, m0, 2048")
        A.i("s_add_u32 s24, s24, 2048")
        for kb in range(2):
            A.i(f"buffer_load_dwordx4 v3, s[12:15], s37 offen offset:{kb*1024} {WT} lds")
    for j in range(4): g2w(G2W + j*16384)
    mark(42)
    poll(A, f"{N}_pa", 7)
    mark(43)
    for j in range(4): g2x(j*16384)
    A.i("s_waitcnt vmcnt(12)")
    mark(44)
    A.i("s_barrier                          ; G2 B0")
    A.i("s_mov_b32 s26, 0")
    def g2step(touch=True):
        A.i("s_barrier")
        A.i("s_add_u32 s35, s26, s81")
        g2w("s35"); g2x("s26")
        if pw2 and touch: w2_touch()
        A.i("s_add_u32 s26, s26, 16384")
        A.i("s_and_b32 s26, s26, 0xffff")
    A.i("s_waitcnt vmcnt(8)")
    g2step()
    A.i("s_waitcnt vmcnt(12)")
    g2step()
    A.i(f"s_mov_b32 s23, {28-D2-2}")
    A.label(f"{N}_g2l")
    A.i("s_waitcnt vmcnt(16)")
    g2step()
    A.i("s_sub_u32 s23, s23, 1")
    A.i("s_cmp_lg_u32 s23, 0")
    A.i(f"s_cbranch_scc1 {N}_g2l")
    for _ in range(D2-4):
        A.i("s_waitcnt vmcnt(16)")
        g2step(False)
    for rem in (16, 8, 0, 0):
        A.i(f"s_waitcnt vmcnt({rem})")
        A.i("s_barrier")
    if ts and tsw >= 4:
        A.i("s_waitcnt lgkmcnt(0)")
        ts_end(A, N, P_WS, tsw)
    A.label(f"{N}_done")
    A.i("s_endpgm")
    kernel_desc(A, N, 240, 102)
    return (256, 512, 163840)
```

```python
from buildf import *
def ps(a,b): return dict(pk=a, pg=b, pm=b, ph=a, pa=a, px=max(1,a//2))
fullf('z0.s', plain=True)
fullf('z1.s', f=dict(npf=1))
fullf('z2.s', f=dict(psleep=ps(1,4)))
fullf('z3.s', f=dict(outf="sc0 sc1"))
fullf('z4.s', f=dict(E1=8))
fullf('v3.s')
```

```python
from asmlib import *
from bw import ts_begin, ts_end, ts_mark
from k2 import wave_reduce
LOG2E = 0x3fb8aa3b
WT = "sc0 sc1"

P_WS, P_Q = 4, 6
P_SSM, P_D, P_W1, P_W2, P_C, P_WM, P_OUT = 64, 66, 70, 72, 74, 76, 78
FL = 56
F_X, F_H2, F_ACT, F_KV = 0, 512, 640, 768
F_X1 = 576
F_BAR = 896
F_MOD = 288*1024
F_NONCE = 448*1024 + 52
SV = 83
P_K, P_V, P_SH = 96, 98, 100

PSLEEP = {}
def poll(A, tag, vaddr, vt=15, cnt=60, wide=False):
    val = f"s{SV}"
    A.i(f"s_mov_b32 s{cnt}, 0x40000")
    sl = PSLEEP.get(tag.split("_")[-1][:2], 0)
    if sl:
        A.i(f"s_branch {tag}_in")
    A.label(tag)
    if sl:
        A.i(f"s_sleep {sl}")
        A.label(f"{tag}_in")
    if wide: A.i(f"buffer_load_dwordx4 {v(vt,4)}, {v(vaddr)}, s[{FL}:{FL+3}], 0 offen {WT}")
    else:    A.i(f"buffer_load_dword {v(vt)}, {v(vaddr)}, s[{FL}:{FL+3}], 0 offen {WT}")
    A.i(f"s_sub_u32 s{cnt}, s{cnt}, 1")
    A.i(f"s_cmp_eq_u32 s{cnt}, 0")
    A.i(f"s_cbranch_scc1 {tag}_out")
    A.i("s_waitcnt vmcnt(0)")
    if wide:
        for r in range(4): A.i(f"v_xor_b32 {v(vt+r)}, {val}, {v(vt+r)}")
        A.i(f"v_or3_b32 {v(vt)}, {v(vt)}, {v(vt+1)}, {v(vt+2)}")
        A.i(f"v_or_b32 {v(vt)}, {v(vt)}, {v(vt+3)}")
        val = "0"
    A.i(f"v_cmp_ne_u32 vcc, {val}, {v(vt)}")
    A.i("s_nop 1")
    A.i(f"s_cbranch_vccnz {tag}")
    A.label(f"{tag}_out")

def poll_all(A, tag, vaddr, groups, vt=16, cnt=60, stride=65536, mask=84):
    sl = PSLEEP.get(tag.split("_")[-1][:2], 0)
    M = [f"s[{44+2*g}:{45+2*g}]" if g < 2 else f"s[{52+2*(g-2)}:{53+2*(g-2)}]" for g in range(groups)]
    A.i(f"s_mov_b32 s{cnt}, 0x40000")
    for g in range(groups):
        A.i(f"s_mov_b64 {M[g]}, -1")
        if g: A.i(f"v_add_u32 {v(vt+4+g)}, {g*stride}, {v(vaddr)}")
    A.i(f"s_branch {tag}_in")
    A.label(tag)
    if sl: A.i(f"s_sleep {sl}")
    A.label(f"{tag}_in")
    for g in range(groups):
        A.i(f"s_or_b64 exec, {M[g]}, 1")
        A.i(f"buffer_load_dword {v(vt+g)}, {v(vt+4+g) if g else v(vaddr)}, s[{FL}:{FL+3}], 0 offen {WT}")
    A.i(f"s_sub_u32 s{cnt}, s{cnt}, 1")
    A.i(f"s_cmp_eq_u32 s{cnt}, 0")
    A.i(f"s_cbranch_scc1 {tag}_out")
    A.i("s_waitcnt vmcnt(0)")
    for g in range(groups):
        A.i(f"s_or_b64 exec, {M[g]}, 1")
        A.i(f"v_cmp_ne_u32 {M[g]}, s{SV}, {v(vt+g)}")
    A.i("s_nop 1")
    A.i(f"s_or_b64 vcc, {M[0]}, {M[1]}")
    for g in range(2, groups):
        A.i(f"s_or_b64 vcc, vcc, {M[g]}")
    A.i(f"s_cbranch_scc1 {tag}")
    A.label(f"{tag}_out")
    A.i("s_mov_b64 exec, -1")

def poll_ctr(A, tag, vaddr, shift, val, vt=16, cnt=39):
    sl = PSLEEP.get(tag.split("_")[-1][:2], 0)
    A.i(f"s_mov_b32 s{cnt}, 0x40000")
    A.i(f"s_branch {tag}_in")
    A.label(tag)
    if sl: A.i(f"s_sleep {sl}")
    A.label(f"{tag}_in")
    A.i(f"buffer_load_dword {v(vt)}, {v(vaddr)}, s[{FL}:{FL+3}], 0 offen {WT}")
    A.i(f"s_sub_u32 s{cnt}, s{cnt}, 1")
    A.i(f"s_cmp_eq_u32 s{cnt}, 0")
    A.i(f"s_cbranch_scc1 {tag}_out")
    A.i("s_waitcnt vmcnt(0)")
    A.i(f"v_bfe_u32 {v(vt)}, {v(vt)}, {shift}, 8")
    A.i(f"v_cmp_ne_u32 vcc, {val}, {v(vt)}")
    A.i("s_nop 1")
    A.i(f"s_cbranch_vccnz {tag}")
    A.label(f"{tag}_out")

def gen_f(A, name="f1_kernel", ts=False, nt="nt", outf="", pw1=True, pw2=True, marks=(0,1,2,3,4,5), tsw=0, prio=0, ntk='nt', prefill='y', npf=1, wf1='', E1=4, E2=0, halo=True, D1=7, D2=10, ncode=16, psleep=dict(pk=4, pg=8, pm=8, ph=4, pa=4, px=2), onepm=True, nogemv=False, spin=None, ctouch=True, pmgate=True, earlysig=False, reuse=True, FLAGIT=8, nosend=False, xw1=False, lazyx1=False, tlb=0):
    N = name
    NARR = 4
    PSLEEP.clear(); PSLEEP.update(psleep)
    def mark(j):
        if ts:
            for i, m in enumerate(marks):
                if m == j: ts_mark(A, i)
    WB, HC = 24320, 4160
    XO = 4*HC
    GP = 4*WB
    CNT = 161792
    G1W, G1X = 0, 86016
    LNP, LNY, LNT = 86016, 135168, 151552
    G2W, G2X = 0, 65536
    XROW = 232
    HH = 216
    SD = 104
    vWM, vCO, CR = 204, 205, 208
    P0B = 135168

    def xrow_load():
        srd(A, 8, P_Q, 4*MB)
        for hf in range(2):
            A.i(f"buffer_load_dwordx4 {v(XROW+hf*4,4)}, v3, s[8:11], s61 offen offset:{hf*1024} {nt}")

    def arrive(tag, cnt, n, soff, off, wait="vmcnt(0)", vc=14, vt=15, add=None):
        A.i(f"v_mov_b32 {v(vt)}, 1")
        A.i(f"s_waitcnt {wait}")
        A.i("s_mov_b64 exec, 1")
        A.i(f"ds_add_rtn_u32 {v(vt)}, {v(vc)}, {v(vt)} offset:{cnt}")
        A.i("s_waitcnt lgkmcnt(0)")
        A.i(f"v_cmp_eq_u32 vcc, {n-1}, {v(vt)}")
        A.i(f"v_mov_b32 {v(vt)}, {add if add else f's{SV}'}")
        A.i("s_nop 0")
        A.i(f"s_cbranch_vccz {tag}")
        if add: A.i(f"buffer_atomic_add {v(vt)}, off, s[{FL}:{FL+3}], {soff}")
        else:   A.i(f"buffer_store_dword {v(vt)}, off, s[{FL}:{FL+3}], {soff} offset:{off} {WT}")
        A.label(tag)
        A.i("s_mov_b64 exec, -1")
    def code_touch(tag):
        if not ctouch: return
        A.i("s_getpc_b64 s[46:47]")
        A.label(tag)
        A.i(f"s_sub_u32 s46, s46, {tag}-{N}")
        A.i("s_subb_u32 s47, s47, 0")
        A.i("s_lshr_b32 s44, s2, 3")
        A.i("s_lshl_b32 s44, s44, 2")
        A.i("s_add_u32 s44, s44, s63")
        A.i("s_mul_i32 s44, s44, 320")
        A.i(f"s_min_u32 s44, s44, code_end-{N}-320")
        A.i("s_add_u32 s46, s46, s44")
        A.i("s_addc_u32 s47, s47, 0")
        for c in range(5):
            A.i(f"s_load_dword s45, s[46:47], {64*c}")
    def page_touch(tag):
        if not tlb: return
        A.i("s_cmp_lg_u32 s63, 3")
        A.i(f"s_cbranch_scc1 {tag}")
        srd(A, 16, P_WS, 48*MB)
        A.i(f"v_lshlrev_b32 v8, {tlb}, v2")
        n = (48*MB >> tlb) // 64 or 1
        A.i("s_mov_b32 s52, 0")
        for i in range(n):
            A.i("buffer_load_dword v9, v8, s[16:19], s52 offen")
            A.i(f"s_add_u32 s52, s52, {64 << tlb}")
        srd(A, 16, P_OUT, 4*MB)
        A.i("buffer_load_dword v9, v8, s[16:19], 0 offen")
        A.i("s_waitcnt vmcnt(0)")
        A.label(tag)
    def stream(j0, j1):
        for j in range(j0, j1):
            A.i(f"buffer_load_dwordx4 {v(SD+4*j,4)}, {v(vWM)}, s[12:15], s80 offen {nt}")
            A.i("s_add_u32 s80, s80, 12288")
    kernel_head(A, N)
    A.i("s_cmp_ge_u32 s2, 256")
    A.i(f"s_cbranch_scc1 {N}_done")
    A.i(f"s_load_dwordx4 s[{P_K}:{P_K+3}], s[0:1], {KA['k']}")
    A.i(f"s_load_dwordx2 s[{P_SH}:{P_SH+1}], s[0:1], {KA['shift']}")
    A.i(f"s_load_dwordx16 s[64:79], s[0:1], {KA['ssm']}")
    A.i(f"s_load_dwordx2 s[4:5], s[0:1], {KA['ws']}")
    A.i(f"s_load_dwordx2 s[6:7], s[0:1], {KA['q']}")
    A.i(f"s_cmp_ge_u32 s2, {ncode}")
    A.i(f"s_cbranch_scc1 {N}_nc")
    A.i("s_getpc_b64 s[8:9]")
    A.label(f"{N}_pc")
    A.i(f"s_mov_b32 s10, code_end-{N}_pc")
    A.i("s_mov_b32 s11, 0x20000")
    A.i("v_lshlrev_b32 v13, 7, v0")
    A.i(f"buffer_load_dword {v(HH)}, v13, s[8:11], 0 offen")
    A.label(f"{N}_nc")
    if ts: ts_begin(A)
    A.i(f"v_mov_b32 v14, {CNT}")
    A.i("v_mov_b32 v4, 0")
    A.i("v_mov_b32 v5, 0")
    for o in range(5): A.i(f"ds_write_b64 v14, v[4:5] offset:{8*o}")
    A.i("v_lshrrev_b32 v1, 6, v0")
    A.i("v_and_b32 v2, 63, v0              ; lane")
    A.i("v_readfirstlane_b32 s20, v1       ; wave")
    A.i("s_and_b32 s21, s2, 7")
    A.i("s_lshl_b32 s21, s21, 1")
    A.i("s_bfe_u32 s22, s2, 0x10003")
    A.i("s_add_u32 s21, s21, s22           ; cb")
    A.i("s_lshr_b32 s22, s2, 4             ; rb")
    A.i("v_and_b32 v1, 15, v0              ; cc")
    A.i("v_lshrrev_b32 v9, 4, v0           ; rg")
    A.i("s_lshl_b32 s23, s22, 18")
    A.i("s_lshl_b32 s24, s21, 7")
    A.i("s_add_u32 s23, s23, s24")
    A.i(f"s_sub_u32 s23, s23, {3*2048}")
    A.i("v_lshlrev_b32 v3, 13, v9")
    A.i("v_lshl_add_u32 v3, v1, 3, v3")
    A.i("v_add_u32 v3, s23, v3")
    A.i("v_add_u32 v4, 4096, v3")
    A.i("v_add_u32 v5, 6144, v3")
    A.i("v_add_u32 v6, 10240, v3")
    A.i("s_lshl_b32 s24, s21, 9")
    A.i("v_lshlrev_b32 v7, 5, v1")
    A.i("s_waitcnt lgkmcnt(0)")
    mark(50)
    srd(A, 12, P_K, 4*MB)
    srd(A, 16, P_V, 4*MB)
    K, V, W = 16, 32, 40
    addr = [(3,0),(3,2048),(4,0),(5,0),(5,2048),(6,0),(6,2048)]
    for j in range(3, 7):
        r,o = addr[j]
        A.i(f"buffer_load_dwordx2 {v(K+2*j,2)}, v{r}, s[12:15], 0 offen offset:{o} {ntk}")
    for j in range(4):
        r,o = addr[3+j]
        A.i(f"buffer_load_dwordx2 {v(V+2*j,2)}, v{r}, s[16:19], 0 offen offset:{o} {nt}")
    if halo: A.i("s_mov_b64 exec, 0xffff")
    for j in range(3):
        r,o = addr[j]
        A.i(f"buffer_load_dwordx2 {v(K+2*j,2)}, v{r}, s[12:15], 0 offen offset:{o} {ntk}")
    if halo: A.i("s_mov_b64 exec, -1")
    srd(A, 28, P_SH, 8192)
    A.i(f"buffer_load_dwordx4 {v(W,4)}, v7, s[28:31], s24 offen")
    A.i(f"buffer_load_dwordx4 {v(W+4,4)}, v7, s[28:31], s24 offen offset:16")
    srd(A, FL, P_WS, 512*1024, WS['flag'])
    A.i(f"s_load_dword s{SV}, s[{FL}:{FL+1}], {F_NONCE}")
    A.i("v_lshlrev_b32 v3, 4, v2           ; lane*16")
    A.i("s_and_b32 s62, s2, 7")
    A.i("s_lshl_b32 s62, s62, 5")
    A.i("s_lshr_b32 s63, s2, 3")
    A.i("s_add_u32 s62, s62, s63")
    srd(A, 32, P_WS, 4*MB, WS['kvT'])
    A.i("v_lshrrev_b32 v8, 1, v9")
    A.i("v_and_b32 v10, 7, v1")
    A.i("v_xor_b32 v8, v8, v10")
    A.i("v_lshlrev_b32 v8, 4, v8")
    A.i("v_lshl_add_u32 v8, v1, 10, v8")
    A.i("v_and_b32 v10, 1, v9")
    A.i("v_xor_b32 v10, 1, v10")
    A.i("v_lshl_add_u32 v8, v10, 3, v8")
    A.i(f"v_add_u32 v8, {P0B}, v8")
    A.i("v_lshrrev_b32 v10, 6, v0")
    A.i("v_xor_b32 v10, v10, v1")
    A.i("v_lshlrev_b32 v10, 4, v10")
    A.i("v_lshl_add_u32 v10, v9, 8, v10")
    A.i(f"v_add_u32 v10, {P0B}, v10")
    A.i("v_lshlrev_b32 v11, 4, v1")
    A.i("v_lshl_add_u32 v11, v9, 12, v11")
    A.i("s_lshl_b32 s25, s21, 18")
    A.i("s_lshl_b32 s26, s22, 8")
    A.i("s_add_u32 s25, s25, s26")
    A.i("s_add_u32 s26, s25, 0x20000")
    A.i("s_mov_b32 s27, 0xffff0000")
    A.i("s_lshl_b32 s23, s21, 4")
    A.i("s_add_u32 s23, s23, s22")
    A.i("s_lshl_b32 s23, s23, 10")

    A.i("s_lshl_b32 s61, s62, 3")
    A.i("s_add_u32 s61, s61, s20")
    A.i("s_lshl_b32 s61, s61, 11")
    A.i("v_subrev_u32 v12, 16, v2")
    A.i("v_lshlrev_b32 v12, 2, v12")
    A.i("s_cmp_ge_u32 s20, 4")
    A.i(f"s_cbranch_scc1 {N}_noh")
    A.i("s_lshl_b32 s63, s62, 2")
    A.i("s_add_u32 s63, s63, s20           ; channel d")
    A.i("s_lshr_b32 s60, s63, 1")
    A.i("s_lshl_b32 s60, s60, 2")
    A.i(f"s_load_dword s82, s[{P_D}:{P_D+1}], s60                 ; D pair")
    A.i(f"v_mov_b32 {v(vWM)}, 0")
    A.i(f"v_mov_b32 {v(vCO)}, 0")
    mark(51)
    A.i("s_waitcnt vmcnt(0)")
    mark(52)
    A.i(f"s_branch {N}_h1")
    A.label(f"{N}_noh")
    A.i("s_sub_u32 s63, s20, 4             ; lw")
    A.i("s_lshr_b32 s36, s2, 1")
    A.i("s_and_b32 s37, s2, 1")
    A.i("s_lshl_b32 s37, s37, 2")
    A.i("s_add_u32 s37, s37, s63           ; k part 0..7")
    A.i("v_and_b32 v4, 7, v2               ; cc")
    A.i("v_lshrrev_b32 v5, 3, v2")
    A.i(f"s_mov_b32 s80, {16*12288}")
    A.i(f"v_mul_lo_u32 {v(vWM)}, v5, s80")
    A.i(f"v_lshl_add_u32 {v(vWM)}, v4, 4, {v(vWM)}")
    A.i(f"v_lshlrev_b32 {v(vCO)}, 5, v5")
    A.i(f"s_mul_i32 s80, s37, {128*12288}")
    A.i("s_lshl_b32 s81, s36, 7")
    A.i("s_add_u32 s80, s80, s81")
    A.i("s_lshl_b32 s37, s37, 8            ; c soffset")
    srd(A, 12, P_WM, 1024*12288)
    srd(A, 28, P_C, 2048)
    A.i(f"s_cmp_ge_u32 s2, {0 if nogemv else 192}")
    A.i("s_cselect_b32 s14, 0, s14")
    A.i("s_waitcnt vmcnt(0)")
    stream(0, E1)
    A.label(f"{N}_h1")
    if halo:
        for j in range(3):
            for e in range(2):
                A.i(f"ds_bpermute_b32 {v(96+2*j+e)}, v12, {v(K+2*(j+4)+e)}")
        A.i("v_cmp_gt_u32 vcc, 16, v2")
    WU = 48
    for pr in range(2):
        for e in range(2):
            ch = 2*pr + e
            for tap in range(4):
                src = W + 2*ch + tap//2
                dst = WU + (pr*4+tap)*2 + e
                if tap % 2 == 0: A.i(f"v_lshlrev_b32 {v(dst)}, 16, {v(src)}")
                else:            A.i(f"v_and_b32 {v(dst)}, s27, {v(src)}")
    if halo:
        A.i("s_waitcnt lgkmcnt(0)")
        for j in range(6):
            A.i(f"v_cndmask_b32 {v(K+j)}, {v(96+j)}, {v(K+j)}, vcc")
    KU, VU, R = 64, 80, 88
    for pr in range(2):
        for j in range(7):
            A.i(f"v_lshlrev_b32 {v(KU+2*j)}, 16, {v(K+2*j+pr)}")
            A.i(f"v_and_b32 {v(KU+2*j+1)}, s27, {v(K+2*j+pr)}")
        for j in range(4):
            A.i(f"v_lshlrev_b32 {v(VU+2*j)}, 16, {v(V+2*j+pr)}")
            A.i(f"v_and_b32 {v(VU+2*j+1)}, s27, {v(V+2*j+pr)}")
        w = lambda tap: v(WU+(pr*4+tap)*2, 2)
        for r in range(4):
            A.i(f"v_pk_mul_f32 {v(R+2*r,2)}, {v(KU+2*r,2)}, {w(3)}")
        for tap in (2,1,0):
            for r in range(4):
                A.i(f"v_pk_fma_f32 {v(R+2*r,2)}, {v(KU+2*(r+3-tap),2)}, {w(tap)}, {v(R+2*r,2)}")
        for r in range(4):
            A.i(f"v_pk_mul_f32 {v(R+2*r,2)}, {v(R+2*r,2)}, {v(VU+2*r,2)}")
        for e in range(2):
            d = 96 + (pr*2+e)*2
            A.i(f"v_cvt_pk_bf16_f32 {v(d)}, {v(R+6+e)}, {v(R+4+e)}")
            A.i(f"v_cvt_pk_bf16_f32 {v(d+1)}, {v(R+2+e)}, {v(R+e)}")
            A.i(f"ds_write_b64 v8, {v(d,2)} offset:{(2*pr+e)*256}")
    A.i("s_waitcnt lgkmcnt(0)")
    mark(53)
    A.i("s_barrier                         ; b0")
    mark(54)
    A.i("ds_read_b128 v[16:19], v10")
    A.i("ds_read_b128 v[20:23], v10 offset:8192")
    A.i(f"s_mul_i32 s{SV}, s{SV}, 0x9e3779b1")
    A.i(f"s_add_u32 s{SV}, s{SV}, 0x7f4a7c15")
    A.i("s_mov_b32 s21, s62")
    A.i("s_waitcnt lgkmcnt(1)")
    A.i(f"buffer_store_dwordx4 v[16:19], v11, s[32:35], s25 offen {WT}")
    A.i("s_waitcnt lgkmcnt(0)")
    A.i(f"buffer_store_dwordx4 v[20:23], v11, s[32:35], s26 offen {WT}")
    A.i("v_mov_b32 v12, 0")
    A.i(f"v_mov_b32 v13, s{SV}")
    A.label(f"{N}_p0end")
    mark(20)
    A.i("s_cmp_ge_u32 s20, 4")
    A.i(f"s_cbranch_scc1 {N}_L")

    NP = 4
    def gate(tag):
        A.label(tag)
        A.i("ds_read_b32 v15, v14 offset:8")
        A.i("s_waitcnt lgkmcnt(0)")
        A.i("v_cmp_ne_u32 vcc, 256, v15")
        A.i("s_nop 1")
        A.i(f"s_cbranch_vccnz {tag}")

    X, Y, M, MF, T, H = 16, 24, 32, 88, 136, 144
    XF, RS, LA = 176, 192, 196
    def unpack(dst, src):
        A.i(f"v_lshlrev_b32 {v(dst)}, 16, {v(src)}")
        A.i(f"v_and_b32 {v(dst+1)}, s27, {v(src)}")
    def stats(t):
        a, b_ = v(t,2), v(t+2,2)
        A.i(f"v_pk_add_f32 {a}, {v(XF,2)}, {v(XF+2,2)}")
        A.i(f"v_pk_mul_f32 {b_}, {v(XF,2)}, {v(XF,2)}")
        A.i(f"v_pk_fma_f32 {b_}, {v(XF+2,2)}, {v(XF+2,2)}, {b_}")
        for q in range(2, 8):
            b = XF + 2*q
            A.i(f"v_pk_add_f32 {a}, {a}, {v(b,2)}")
            A.i(f"v_pk_fma_f32 {b_}, {v(b,2)}, {v(b,2)}, {b_}")
        A.i(f"v_add_f32 {v(t+4)}, {v(t)}, {v(t+1)}")
        A.i(f"v_add_f32 {v(t+5)}, {v(t+2)}, {v(t+3)}")
        wave_reduce(A, [t+4, t+5])
        A.i("s_nop 0")
        A.i(f"v_readlane_b32 s52, {v(t+4)}, 63")
        A.i(f"v_readlane_b32 s53, {v(t+5)}, 63")
        A.i(f"v_mov_b32 {v(t+2)}, 0x3a800000        ; 1/1024")
        A.i("s_nop 0")
        A.i(f"v_mul_f32 {v(t)}, s52, {v(t+2)}           ; mean")
        A.i(f"v_mul_f32 {v(t+1)}, s53, {v(t+2)}         ; E[x^2]")
        A.i(f"v_fma_f32 {v(t+1)}, -{v(t)}, {v(t)}, {v(t+1)}     ; var")
        A.i(f"v_max_f32 {v(t+1)}, 0, {v(t+1)}")
        A.i(f"v_add_f32 {v(t+1)}, 0x3727c5ac, {v(t+1)}   ; + 1e-5")
        A.i(f"v_rsq_f32 {v(RS)}, {v(t+1)}")
        A.i("s_nop 0")
        A.i(f"v_mul_f32 {v(RS+2)}, -{v(t)}, {v(RS)}")
    def ln_pre(t):
        A.i("s_lshr_b32 s52, s20, 1")
        A.i(f"v_lshrrev_b32 {v(LA)}, 1, v2")
        A.i(f"v_xor_b32 {v(LA)}, s52, {v(LA)}")
        A.i(f"v_and_b32 {v(LA)}, 3, {v(LA)}")
        A.i(f"v_lshlrev_b32 {v(LA)}, 4, {v(LA)}")
        A.i(f"v_lshl_add_u32 {v(LA)}, v2, 7, {v(LA)}")
        A.i("s_and_b32 s52, s20, 1")
        A.i("s_lshl_b32 s52, s52, 3")
        A.i(f"s_add_u32 s52, s52, {LNY}")
        A.i(f"v_add_u32 {v(LA)}, s52, {v(LA)}")
        A.i(f"v_add_u32 {v(LA+1)}, {LNT}, v3")
        for q in range(8):
            unpack(XF + 2*q, XROW + q)
        stats(t)
    def ln_main(hi, after_b3=None):
        rs = f"{v(RS,2)}, {v(RS+2,2)} op_sel_hi:[1,0,0]"
        srd(A, 28, P_WS, 4*MB, WS['x1'])
        srd(A, 32, P_WS, 4*MB, WS['h2'])
        A.i("s_mov_b32 s27, 0xffff0000")
        for q in range(8):
            A.i(f"v_pk_fma_f32 {v(H+2*q,2)}, {v(XF+2*q,2)}, {rs}")
        A.i("s_barrier                         ; b3: modulation table ready, y on its way")
        if not hi: mark(3)
        for vec in (1, 0, 2, 4, 3):
            for hf in range(2):
                A.i(f"ds_read_b128 {v(M+(vec*2+hf)*4,4)}, {v(LA+1)} offset:{vec*2048 + hf*1024}")
        if after_b3: after_b3()
        SA, CA, GA = MF, MF+16, MF+32
        A.i("s_waitcnt lgkmcnt(6)")
        for q in range(8):
            unpack(CA+2*q, M+8+q); unpack(SA+2*q, M+q)
            A.i(f"v_pk_fma_f32 {v(H+2*q,2)}, {v(H+2*q,2)}, {v(CA+2*q,2)}, {v(SA+2*q,2)}")
        A.i("s_waitcnt lgkmcnt(4)")
        for q in range(8):
            unpack(GA+2*q, M+16+q)
            A.i(f"v_pk_mul_f32 {v(H+2*q,2)}, {v(H+2*q,2)}, {v(GA+2*q,2)}")
        A.i("s_waitcnt lgkmcnt(0)")
        SB, CB = MF, MF+16
        for q in range(8):
            unpack(CB+2*q, M+32+q); unpack(SB+2*q, M+24+q)
        if not hi:
            mark(16)
            A.i("s_waitcnt vmcnt(0)")
        A.i("s_barrier                         ; b4: y landed")
        if not hi: mark(17)
        for hf in range(2):
            for e in range(2):
                A.i(f"ds_read_b64 {v(Y+(hf*2+e)*2,2)}, {v(LA)} offset:{hf*8192 + e*64}")
        for q in range(8):
            t = T + (q % 2) * 2
            if q % 2 == 0: A.i(f"s_waitcnt lgkmcnt({3 - q//2})")
            unpack(t, Y + q)
            A.i(f"v_pk_fma_f32 {v(H+2*q,2)}, {v(H+2*q,2)}, {v(t,2)}, {v(XF+2*q,2)}")
            A.i(f"v_cvt_pk_bf16_f32 {v(X+q)}, {v(H+2*q)}, {v(H+2*q+1)}")
            unpack(XF+2*q, X+q)
        if not lazyx1:
            for hf in range(2):
                A.i(f"buffer_store_dwordx4 {v(X+hf*4,4)}, v3, s[28:31], s61 offen offset:{hf*1024} {WT}")
        stats(8)
        for q in range(8):
            A.i(f"v_pk_fma_f32 {v(H+2*q,2)}, {v(XF+2*q,2)}, {rs}")
            A.i(f"v_pk_fma_f32 {v(H+2*q,2)}, {v(H+2*q,2)}, {v(CB+2*q,2)}, {v(SB+2*q,2)}")
            A.i(f"v_cvt_pk_bf16_f32 {v(Y+q)}, {v(H+2*q)}, {v(H+2*q+1)}")
        for hf in range(2):
            A.i(f"buffer_store_dwordx4 {v(Y+hf*4,4)}, v3, s[32:35], s61 offen offset:{hf*1024} {WT}")
        A.i("s_lshl_b32 s22, s21, 10")
        A.i(f"v_mov_b32 v8, {CNT}")
    def ln_signal(tag):
        arrive(tag, 20, 8, "s22", F_H2, vc=8, vt=9)
        if lazyx1:
            srd(A, 16, P_WS, 4*MB, WS['x1'])
            for hf in range(2):
                A.i(f"buffer_store_dwordx4 {v(X+hf*4,4)}, v3, s[16:19], s61 offen offset:{hf*1024} {WT}")
            A.i("s_mov_b32 s61, s22")
    def x1_signal(tag, vc, vt, wait="vmcnt(0)"):
        if lazyx1:
            A.i(f"v_mov_b32 {v(vc)}, {CNT}")
            arrive(tag, 32, 8, "s61", F_X1, vc=vc, vt=vt, wait=wait)

    def g1_ids():
        A.i("s_and_b32 s21, s2, 1")
        A.i("s_lshl_b32 s21, s21, 3")
        A.i("s_bfe_u32 s27, s2, 0x30003")
        A.i("s_add_u32 s21, s21, s27            ; sblk")
        A.i("s_bfe_u32 s22, s2, 0x20001")
        A.i("s_lshl_b32 s22, s22, 2")
        A.i("s_lshr_b32 s27, s2, 6")
        A.i("s_add_u32 s22, s22, s27            ; fblk")
    def g2_ids():
        A.i("s_and_b32 s52, s2, 1               ; khalf")
        A.i("s_bfe_u32 s21, s2, 0x20001")
        A.i("s_lshl_b32 s21, s21, 2")
        A.i("s_bfe_u32 s27, s2, 0x20003")
        A.i("s_add_u32 s21, s21, s27            ; sblk")
        A.i("s_lshr_b32 s22, s2, 5")

    A.i("s_mov_b32 s22, s63                ; channel d")
    A.i(f"s_mul_i32 s62, s20, {WB}")
    A.i("s_lshl_b32 s24, s22, 12           ; d*4096")
    srd(A, 16, P_SSM, 4*MB)
    for u in range(4):
        A.i(f"buffer_load_dwordx4 {v(HH+4*u,4)}, v3, s[16:19], s24 offen offset:{1024*u} {nt}")
    if earlysig:
        arrive(f"{N}_ak", 16, 8, "s23", F_KV, wait="vmcnt(4)")
        mark(21)
    Hh, XR = HH, 16
    A.i("v_mov_b32 v32, 0"); A.i("v_mov_b32 v33, 0"); A.i("v_mov_b32 v34, 0"); A.i("v_mov_b32 v35, 0")

    A.i("v_add_u32 v4, s62, v3")
    A.i(f"ds_write_b128 v4, v[32:35] offset:{XO}")
    A.i("v_min_u32 v5, 25, v2")
    A.i("v_lshlrev_b32 v5, 4, v5")
    A.i("v_add_u32 v5, s62, v5")
    A.i(f"ds_write_b128 v5, v[32:35] offset:{XO+1024}")
    A.i("v_and_b32 v6, 15, v2              ; r / i")
    A.i("v_lshrrev_b32 v7, 4, v2           ; g")
    A.i("v_and_b32 v8, 3, v6")
    A.i(f"v_mul_u32_u24 v8, {HC}, v8")
    A.i("v_lshl_add_u32 v5, v7, 4, v8")
    A.i("v_add_u32 v5, s62, v5")
    A.i("ds_write_b128 v5, v[32:35]")
    A.i("v_lshrrev_b32 v5, 2, v2")
    A.i("v_mul_u32_u24 v5, 96, v5")
    A.i("v_and_b32 v9, 3, v2")
    A.i("v_lshl_add_u32 v5, v9, 4, v5")
    A.i("v_add_u32 v5, s62, v5")
    A.i("v_lshrrev_b32 v9, 2, v6")
    A.i("v_lshlrev_b32 v10, 1, v7")
    A.i("v_sub_u32 v9, v9, v10")
    A.i("v_add_u32 v9, 7, v9")
    A.i("v_lshl_add_u32 v8, v9, 3, v8")
    A.i("v_add_u32 v8, s62, v8             ; vA")
    A.i("v_mul_u32_u24 v9, 96, v6")
    A.i("v_lshl_add_u32 v9, v7, 4, v9")
    A.i(f"s_add_u32 s25, s62, {XO + 96*14}")
    A.i("v_add_u32 v9, s25, v9             ; vB - 96")
    ACC = 48
    FS = [80, 128]
    for r in range(32):
        A.i(f"v_mov_b32 {v(ACC+r)}, 0")
    DI = 36
    A.i("v_lshlrev_b32 v10, 3, v7")
    A.i("v_add_u32 v10, 7, v10")
    A.i("v_sub_u32 v10, v10, v6")
    A.i("v_and_b32 v11, 1, v10")
    A.i("v_lshlrev_b32 v11, 4, v11")
    A.i("v_ashrrev_i32 v10, 1, v10")
    A.i("s_and_b32 s25, s22, 1")
    A.i("s_lshl_b32 s25, s25, 4")
    A.i("s_lshr_b32 s82, s82, s25")
    A.i("s_and_b32 s82, s82, 0xffff")
    A.i("v_lshlrev_b32 v11, v11, s82")
    for rt in range(2):
        for q in range(4):
            A.i(f"v_cmp_eq_u32 s[{8+2*q}:{9+2*q}], {q + 8*rt}, v10")
        for q in range(4):
            A.i(f"v_cndmask_b32 {v(DI+4*rt+q)}, 0, v11, s[{8+2*q}:{9+2*q}]")
    if not earlysig:
        arrive(f"{N}_ak", 16, 8, "s23", F_KV, wait="vmcnt(4)")
        mark(21)
    P, TT = 96, 100
    for u in range(4):
        R = Hh + 4*u
        p = P + 2*(u % 2)
        t = TT + 12*(u % 2)
        A.i(f"s_waitcnt vmcnt({3-u})")
        if u == 0:
            A.i(f"v_mov_b32 {v(p)}, 0"); A.i(f"v_mov_b32 {v(p+1)}, 0")
        else:
            A.i(f"v_mov_b32_dpp {v(p)}, {v(R-2)} wave_ror:1 row_mask:0xf bank_mask:0xf")
            A.i(f"v_mov_b32_dpp {v(p+1)}, {v(R-1)} wave_ror:1 row_mask:0xf bank_mask:0xf")
        A.i(f"ds_write_b128 v4, {v(R,4)} offset:{3*HC + 64 + 1024*u}")
        A.i(f"v_mov_b32_dpp {v(p)}, {v(R+2)} wave_shr:1 row_mask:0xf bank_mask:0xf")
        A.i(f"v_mov_b32_dpp {v(p+1)}, {v(R+3)} wave_shr:1 row_mask:0xf bank_mask:0xf")
        A.i(f"v_alignbit_b32 {v(t+5)}, {v(R+1)}, {v(R)}, 16")
        A.i(f"v_alignbit_b32 {v(t+6)}, {v(R+2)}, {v(R+1)}, 16")
        A.i(f"v_alignbit_b32 {v(t+7)}, {v(R+3)}, {v(R+2)}, 16")
        A.i(f"v_alignbit_b32 {v(t+4)}, {v(R)}, {v(p+1)}, 16")
        A.i(f"ds_write_b128 v4, {v(t+4,4)} offset:{2*HC + 64 + 1024*u}")
        A.i(f"v_mov_b32 {v(t)}, {v(p+1)}")
        for e in range(3): A.i(f"v_mov_b32 {v(t+1+e)}, {v(R+e)}")
        A.i(f"ds_write_b128 v4, {v(t,4)} offset:{1*HC + 64 + 1024*u}")
        A.i(f"v_alignbit_b32 {v(t+8)}, {v(p+1)}, {v(p)}, 16")
        for e in range(3): A.i(f"v_mov_b32 {v(t+9+e)}, {v(t+4+e)}")
        A.i(f"ds_write_b128 v4, {v(t+8,4)} offset:{64 + 1024*u}")
    A.i("s_lshr_b32 s25, s21, 4")
    A.i("s_lshl_b32 s25, s25, 14")
    A.i(f"s_add_u32 s25, s25, {F_KV}")
    A.i("v_lshlrev_b32 v10, 10, v6")
    A.i("v_add_u32 v10, s25, v10")
    srd(A, 28, P_WS, 4*MB, WS['kvT'])
    poll(A, f"{N}_pk", 10)
    mark(22)
    for u in range(4):
        A.i(f"buffer_load_dwordx4 {v(XR+4*u,4)}, v3, s[28:31], s24 offen offset:{1024*u} {WT}")
    xrow_load()
    A.i("v_mov_b32 v15, 1")
    A.i("ds_add_u32 v14, v15 offset:8")
    for u in range(4):
        A.i(f"s_waitcnt vmcnt({5-u})")
        A.i(f"ds_write_b128 v5, {v(XR+4*u,4)} offset:{XO + 96*15 + 96*16*u}")
    A.i("s_waitcnt lgkmcnt(0)")
    mark(0)
    def creads(fs, par):
        out = []
        F = FS[fs]
        def ar(j):
            for rt in range(2):
                for hb in range(2):
                    out.append(f"ds_read_b64 {v(F+(j*2+rt)*4+2*hb,2)}, v8 offset:{64*(par+16*j) + 32*rt + 8*hb}")
        ar(0)
        for d in range(4):
            out.append(f"ds_read_b128 {v(F+32+4*d,4)}, v9 offset:{96*(16*d + 1 - par)}")
        for j in range(1,4): ar(j)
        return out
    def cbody(fs, side):
        F = FS[fs]
        side = list(side)
        n = 0
        for j in range(4):
            A.i("s_waitcnt lgkmcnt(12)" if n == 0 else "s_waitcnt lgkmcnt(15)")
            for d in range(4-j):
                for rt in range(2):
                    ac = ACC + ((j+d)*2+rt)*4
                    A.i(f"v_mfma_f32_16x16x32_bf16 {v(ac,4)}, {v(F+(j*2+rt)*4,4)}, {v(F+32+4*d,4)}, {v(ac,4)}")
                    if side: A.i(side.pop(0))
                    n += 1
        for x in side: A.i(x)
    for x in creads(0, 0): A.i(x)
    A.i("s_waitcnt lgkmcnt(12)")
    for d in range(4):
        for rt in range(2):
            ac = ACC + (d*2+rt)*4
            A.i(f"v_mfma_f32_16x16x32_bf16 {v(ac,4)}, {v(DI+4*rt,4)}, {v(FS[0]+32+4*d,4)}, {v(ac,4)}")
    A.i("s_mov_b32 s26, 8")
    A(".p2align 6")
    A.label(f"{N}_cv")
    cbody(0, creads(1, 1))
    A.i("v_add_u32 v8, 128, v8")
    A.i("v_subrev_u32 v9, 192, v9")
    cbody(1, creads(0, 0))
    A.i("s_sub_u32 s26, s26, 1")
    A.i("s_cmp_lg_u32 s26, 0")
    A.i(f"s_cbranch_scc1 {N}_cv")
    A.i("v_mul_u32_u24 v10, 80, v6")
    A.i("v_lshl_add_u32 v10, v7, 3, v10")
    A.i("v_add_u32 v10, s62, v10")
    srd(A, 16, P_WS, 4*MB, WS['y4'])
    A.i("s_waitcnt lgkmcnt(0)")
    for G in range(4):
        for rt in range(2):
            ac = ACC + (G*2+rt)*4
            d = 16 + (G*2+rt)*2
            A.i(f"v_cvt_pk_bf16_f32 {v(d)}, {v(ac)}, {v(ac+1)}")
            A.i(f"v_cvt_pk_bf16_f32 {v(d+1)}, {v(ac+2)}, {v(ac+3)}")
            A.i(f"ds_write_b64 v10, {v(d,2)} offset:{80*16*G + 32*rt}")
    A.i("v_lshrrev_b32 v11, 4, v0")
    A.i("v_mul_u32_u24 v11, 80, v11")
    A.i("v_lshl_add_u32 v11, v6, 2, v11")
    A.i(f"v_add_u32 v13, {3*WB}, v11")
    A.i("v_lshlrev_b32 v12, 4, v0")
    A.i("s_lshl_b32 s25, s21, 14")
    A.i("s_mov_b32 s34, 0x05040100")
    A.i("s_mov_b32 s35, 0x07060302")
    A.i("s_waitcnt lgkmcnt(0)")
    mark(1)
    A.i("v_mov_b32 v15, 1")
    A.i("ds_add_u32 v14, v15")
    A.label(f"{N}_ys")
    A.i("ds_read_b32 v15, v14")
    A.i("s_waitcnt lgkmcnt(0)")
    A.i("v_cmp_ne_u32 vcc, 256, v15")
    A.i("s_nop 1")
    A.i(f"s_cbranch_vccnz {N}_ys")
    mark(12)
    for u in range(4):
        for ch in range(4):
            if ch < 3: A.i(f"ds_read_b32 {v(48+4*u+ch)}, v11 offset:{ch*WB + 80*16*u}")
            else:      A.i(f"ds_read_b32 {v(48+4*u+ch)}, v13 offset:{80*16*u}")
    for u in range(4):
        A.i(f"s_waitcnt lgkmcnt({12-4*u})")
        s0 = 48+4*u; d = 64+4*u
        A.i(f"v_perm_b32 {v(d)}, {v(s0+1)}, {v(s0)}, s34")
        A.i(f"v_perm_b32 {v(d+1)}, {v(s0+3)}, {v(s0+2)}, s34")
        A.i(f"v_perm_b32 {v(d+2)}, {v(s0+1)}, {v(s0)}, s35")
        A.i(f"v_perm_b32 {v(d+3)}, {v(s0+3)}, {v(s0+2)}, s35")
        A.i(f"s_add_u32 s26, s25, {4096*u}")
        A.i(f"buffer_store_dwordx4 {v(d,4)}, v12, s[16:19], s26 offen {WT}")
    mark(13)
    A.i("s_lshl_b32 s22, s2, 10")
    arrive(f"{N}_ay", 28, 4, "s22", F_BAR)
    mark(2)
    A.i("s_mov_b32 s27, 0xffff0000")
    ln_pre(96)
    A.i("s_cmp_lg_u32 s20, 0")
    A.i(f"s_cbranch_scc1 {N}_gb")
    A.i(f"v_mov_b32 v13, s{SV}")
    A.i("v_lshlrev_b32 v12, 10, v2")
    A.i(f"v_add_u32 v12, {F_BAR}, v12")
    A.i("v_lshrrev_b32 v4, 4, v2")
    A.i("v_xor_b32 v4, v4, v2")
    A.i("v_and_b32 v4, 3, v4")
    A.i("v_lshlrev_b32 v4, 4, v4")
    A.i("v_lshrrev_b32 v5, 2, v2")
    A.i("v_lshl_add_u32 v4, v5, 14, v4")
    A.i("s_lshl_b32 s23, s21, 6")
    srd(A, 12, P_WS, 4*MB, WS['y4'])
    A.i(f"s_mov_b32 m0, {LNY}")
    poll_all(A, f"{N}_pg", 12, 4, cnt=39)
    mark(14)
    for e in range(16):
        A.i(f"buffer_load_dwordx4 v4, s[12:15], s23 offen {WT} lds")
        A.i("s_add_u32 m0, m0, 1024")
        A.i("s_add_u32 s23, s23, 0x40000")
    A.i("s_cmp_lg_u32 s2, 0")
    A.i(f"s_cbranch_scc1 {N}_gb")
    A.i(f"v_mov_b32 v12, {F_NONCE}")
    A.i(f"buffer_store_dword v13, v12, s[{FL}:{FL+3}], 0 offen {WT}")
    A.label(f"{N}_gb")
    ln_main(False)
    ACC = 128
    FS = [16, 60]
    vXb0, vXb1, vWb0, vWb1 = 4, 5, 6, 7
    vX0, vX1, vW0, vW1 = 104, 105, 106, 107
    A.i("s_and_b32 s28, s20, 1              ; ws")
    A.i("s_lshr_b32 s29, s20, 1             ; wf")
    A.i("v_and_b32 v110, 15, v2             ; n")
    A.i("v_lshrrev_b32 v12, 4, v2           ; g")
    A.i("v_and_b32 v13, 7, v110")
    A.i("v_xor_b32 v13, v13, v12")
    A.i("v_lshlrev_b32 v13, 4, v13")
    A.i("s_lshl_b32 s27, s28, 13")
    A.i(f"s_add_u32 s27, s27, {G1X}")
    A.i(f"v_lshl_add_u32 {v(vXb0)}, v110, 7, v13")
    A.i(f"v_add_u32 {v(vXb0)}, s27, {v(vXb0)}")
    A.i(f"v_xor_b32 {v(vXb1)}, 64, {v(vXb0)}")
    A.i("v_lshrrev_b32 v13, 2, v110")
    A.i("v_lshl_add_u32 v13, v12, 3, v13")
    A.i("v_mul_u32_u24 v13, 448, v13")
    A.i("v_and_b32 v14, 3, v2")
    A.i("v_lshl_add_u32 v13, v14, 3, v13")
    A.i("s_mul_i32 s27, s29, 224")
    A.i("v_add_u32 v13, s27, v13")
    A.i("v_and_b32 v14, 1, v12")
    A.i("v_lshlrev_b32 v14, 5, v14")
    A.i(f"v_add_u32 {v(vWb0)}, v13, v14")
    A.i(f"v_sub_u32 {v(vWb1)}, v13, v14")
    A.i("s_cmp_eq_u32 s29, 0")
    A.i(f"s_cbranch_scc1 {N}_noswap")
    A.i(f"v_swap_b32 {v(vWb0)}, {v(vWb1)}")
    A.label(f"{N}_noswap")
    for r in range(32, 112):
        A.i(f"v_mov_b32 {v(ACC+r)}, 0")
    mark(19)
    ln_signal(f"{N}_ah")
    mark(4)
    for r in range(32):
        A.i(f"v_mov_b32 {v(ACC+r)}, 0")
    g1_ids()
    srd(A, 16, P_WS, 2048*3584*2, WS['act'])
    def g1reads(fs, kk):
        out = []
        Xr, W = FS[fs], FS[fs] + 16
        vx = vX0 if kk == 0 else vX1
        def wr(t):
            for hb in range(2):
                out.append(f"ds_read_b64_tr_b16 {v(W+4*t+2*hb,2)}, {v(vW0 if t%2==0 else vW1)} offset:{(32*kk+4*hb)*448 + 32*t}")
        wr(0)
        for st in range(4):
            out.append(f"ds_read_b128 {v(Xr+4*st,4)}, {v(vx)} offset:{st*2048}")
        for t in range(1, 7): wr(t)
        return out
    def g1phase(fs, side):
        Xr, W = FS[fs], FS[fs] + 16
        side = list(side)
        for t in range(7):
            for st in range(4):
                ac = ACC + (t*4+st)*4
                A.i(f"v_mfma_f32_16x16x32_bf16 {v(ac,4)}, {v(W+4*t,4)}, {v(Xr+4*st,4)}, {v(ac,4)}")
                if side: A.i(side.pop(0))
        for x in side: A.i(x)
    A.i("s_mov_b32 s26, 0")
    A.i("s_mov_b32 s24, 0")
    A.i(f"v_mov_b32 {v(vX0)}, {v(vXb0)}")
    A.i(f"v_mov_b32 {v(vX1)}, {v(vXb1)}")
    A.i(f"v_mov_b32 {v(vW0)}, {v(vWb0)}")
    A.i(f"v_mov_b32 {v(vW1)}, {v(vWb1)}")
    A.i("s_mov_b32 s23, 16")
    x1_signal(f"{N}_ax", 8, 9)
    A.i("s_barrier                          ; G1 B0")
    mark(5)
    for x in g1reads(0, 0): A.i(x)
    A(".p2align 6")
    A.label(f"{N}_g1c")
    A.i("s_waitcnt lgkmcnt(0)")
    nxt = ["s_add_u32 s26, s26, 28672", "s_add_u32 s24, s24, 16384", "s_cmp_eq_u32 s24, 49152",
           "s_cselect_b32 s26, 0, s26", "s_cselect_b32 s24, 0, s24",
           f"v_add_u32 {v(vX0)}, s24, {v(vXb0)}", f"v_add_u32 {v(vW0)}, s26, {v(vWb0)}",
           f"v_add_u32 {v(vW1)}, s26, {v(vWb1)}", f"v_add_u32 {v(vX1)}, s24, {v(vXb1)}"]
    g1phase(0, g1reads(1, 1) + nxt)
    A.i("s_waitcnt lgkmcnt(0)")
    A.i("s_barrier")
    g1phase(1, g1reads(0, 0) + ["s_sub_u32 s23, s23, 1", "s_cmp_lg_u32 s23, 0"])
    A.i(f"s_cbranch_scc1 {N}_g1c")
    mark(6)
    A.i("s_lshl_b32 s27, s21, 3")
    A.i("s_lshl_b32 s30, s28, 2")
    A.i("s_add_u32 s27, s27, s30")
    A.i("s_mul_i32 s27, s27, 112")
    A.i("s_mul_i32 s30, s22, 7")
    A.i("s_add_u32 s27, s27, s30")
    A.i("s_lshl_b32 s27, s27, 10")
    A.i("v_and_b32 v13, 1, v12")
    A.i("v_lshrrev_b32 v14, 1, v12")
    A.i("v_lshl_or_b32 v13, v13, 1, v14     ; pi(g)")
    A.i("v_lshlrev_b32 v108, 4, v13")
    A.i("v_lshlrev_b32 v13, 8, v13")
    A.i("v_lshl_add_u32 v13, v110, 4, v13")
    A.i("v_lshlrev_b32 v14, 8, v14")
    A.i("v_lshl_add_u32 v14, v110, 4, v14")
    A.i("v_and_b32 v15, 1, v12")
    A.i("v_lshl_add_u32 v14, v15, 3, v14")
    A.i(f"s_mov_b32 s32, 0x{LOG2E ^ 0x80000000:x}")
    A.i("s_waitcnt lgkmcnt(0)")
    def silu4(dst, ac, tmp):
        A.i(f"v_pk_mul_f32 {v(tmp,2)}, {v(ac,2)}, s[32:33] op_sel_hi:[1,0]")
        A.i(f"v_pk_mul_f32 {v(tmp+2,2)}, {v(ac+2,2)}, s[32:33] op_sel_hi:[1,0]")
        for r in range(4): A.i(f"v_exp_f32 {v(tmp+r)}, {v(tmp+r)}")
        A.i(f"v_pk_add_f32 {v(tmp,2)}, {v(tmp,2)}, 1.0 op_sel_hi:[1,0]")
        A.i(f"v_pk_add_f32 {v(tmp+2,2)}, {v(tmp+2,2)}, 1.0 op_sel_hi:[1,0]")
        for r in range(4): A.i(f"v_rcp_f32 {v(tmp+r)}, {v(tmp+r)}")
        A.i(f"v_pk_mul_f32 {v(tmp,2)}, {v(tmp,2)}, {v(ac,2)}")
        A.i(f"v_pk_mul_f32 {v(tmp+2,2)}, {v(tmp+2,2)}, {v(ac+2,2)}")
        A.i(f"v_cvt_pk_bf16_f32 {v(dst)}, {v(tmp)}, {v(tmp+1)}")
        A.i(f"v_cvt_pk_bf16_f32 {v(dst+1)}, {v(tmp+2)}, {v(tmp+3)}")
    def ebody(wf):
        pairs = [(0,0),(2,1),(4,2)] if wf == 0 else [(1,4),(3,5),(5,6)]
        single = 6 if wf == 0 else 0
        cnt = 0
        for st in range(4):
            A.i(f"s_add_u32 s30, s27, {st*112*1024}")
            for (t, blk) in pairs:
                d = 16 + (cnt % 4) * 4
                cnt += 1
                silu4(d, ACC + (t*4+st)*4, 40)
                silu4(d+2, ACC + ((t+1)*4+st)*4, 44)
                A.i("s_nop 1")
                A.i(f"v_permlane16_swap_b32 {v(d)}, {v(d+2)}")
                A.i(f"v_permlane16_swap_b32 {v(d+1)}, {v(d+3)}")
                A.i(f"buffer_store_dwordx4 {v(d,4)}, {'v13' if blk < 4 else 'v15'}, s[16:19], s30 offen offset:{(blk%4)*1024} {WT}")
            d = 32 + (st % 2) * 2
            silu4(d, ACC + (single*4+st)*4, 40)
            A.i(f"buffer_store_dwordx2 {v(d,2)}, v14, s[16:19], s30 offen offset:{3*1024 + wf*512} {WT}")
    A.i("v_add_u32 v15, 4096, v13")
    A.i("s_cmp_eq_u32 s29, 0")
    A.i(f"s_cbranch_scc0 {N}_epi1")
    ebody(0)
    A.i(f"s_branch {N}_epi2")
    A.label(f"{N}_epi1")
    ebody(1)
    A.label(f"{N}_epi2")
    mark(7)
    A.i("s_lshl_b32 s62, s21, 4")
    A.i("s_add_u32 s62, s62, s22")
    A.i("s_lshl_b32 s62, s62, 10")

    FS = [16, 48]
    vXb, vWb = 12, 13
    vX, vW = 4, 8
    X1, GB = 96, 112
    g2_ids()
    A.i("v_lshl_add_u32 v81, v110, 11, v108")
    A.i("s_lshl_b32 s30, s21, 1")
    A.i("s_add_u32 s30, s30, s28")
    A.i("s_lshl_b32 s30, s30, 17")
    A.i("s_lshl_b32 s31, s22, 1")
    A.i("s_add_u32 s31, s31, s29")
    A.i("s_lshl_b32 s31, s31, 1")
    A.i("s_add_u32 s31, s31, s52")
    A.i("s_lshl_b32 s31, s31, 6")
    A.i("s_add_u32 s30, s30, s31")
    A.i("s_lshl_b32 s31, s31, 1")
    A.i(f"s_add_u32 s31, s31, {5*4096}")
    A.i("v_lshrrev_b32 v14, 4, v2           ; g")
    A.i("v_lshrrev_b32 v80, 2, v110")
    A.i("v_lshl_add_u32 v82, v14, 3, v80")
    A.i("v_and_b32 v83, 1, v14")
    A.i("v_xor_b32 v83, s29, v83")
    A.i("v_lshl_or_b32 v80, v83, 2, v80")
    A.i("v_lshlrev_b32 v80, 5, v80")
    A.i("v_and_b32 v83, 3, v2")
    A.i("v_lshl_add_u32 v80, v83, 3, v80")
    A.i(f"v_lshl_add_u32 {v(vWb)}, v82, 8, v80")
    A.i("s_lshl_b32 s27, s28, 13")
    A.i(f"s_add_u32 s27, s27, {G2X}")
    A.i(f"v_add_u32 {v(vXb)}, s27, v3")
    A.i("v_mov_b32 v83, 0")
    A.i(f"v_mov_b32 v94, s{SV}")
    A.i(f"v_mov_b32 v92, {CNT}")
    arrive(f"{N}_aa", 24, 4, "s62", F_ACT, vc=92, vt=93)
    mark(8)
    for r in range(64):
        A.i(f"v_mov_b32 {v(ACC+r)}, 0")
    def g2addr():
        out = ["s_add_u32 s26, s26, 16384", "s_and_b32 s26, s26, 0xffff",
               f"v_add_u32 {v(vW)}, s26, {v(vWb)}", f"v_add_u32 {v(vX)}, s26, {v(vXb)}"]
        for t in range(1, 4):
            out.append(f"v_xor_b32 {v(vW+t)}, {32*t}, {v(vW)}")
        return out
    def g2reads(fs, kk):
        out = []
        Xr, W = FS[fs], FS[fs] + 16
        def wr(t):
            for hb in range(2):
                out.append(f"ds_read_b64_tr_b16 {v(W+4*t+2*hb,2)}, {v(vW+t)} offset:{kk*8192 + hb*1024}")
        wr(0)
        for st in range(4):
            out.append(f"ds_read_b128 {v(Xr+4*st,4)}, {v(vX)} offset:{st*2048 + kk*1024}")
        for t in range(1, 4): wr(t)
        return out
    def g2phase(fs, side):
        Xr, W = FS[fs], FS[fs] + 16
        side = list(side)
        n = 0
        for t in range(4):
            for st in range(4):
                ac = ACC + (t*4+st)*4
                A.i(f"v_mfma_f32_16x16x32_bf16 {v(ac,4)}, {v(W+4*t,4)}, {v(Xr+4*st,4)}, {v(ac,4)}")
                n += 1
                for _ in range(1 if n <= 12 else 2):
                    if side: A.i(side.pop(0))
        for x in side: A.i(x)
    A.i("s_mov_b32 s26, 49152")
    for x in g2addr(): A.i(x)
    srd(A, 8, P_WS, 4*MB, WS['x1'])
    srd(A, 12, P_WS, 2*24576, WS['mod'])
    srd(A, 16, P_OUT, 4*MB)
    A.i("v_lshlrev_b32 v15, 1, v108")
    A.i(f"s_add_u32 s25, s31, 24576")
    A.i("s_mov_b32 s23, 28")
    A.i("s_barrier                          ; G2 B0")
    mark(9)
    for x in g2reads(0, 0): A.i(x)
    for st in range(4):
        A.i(f"s_add_u32 s{32+st}, s30, {st*16*2048}")
        A.i(f"buffer_load_dwordx4 {v(X1+4*st,4)}, v81, s[8:11], s{32+st} offen {WT}")
    for h in range(2):
        for e in range(2):
            A.i(f"buffer_load_dwordx4 {v(GB+8*h+4*e,4)}, v15, s[12:15], {'s31' if h==0 else 's25'} offen offset:{16*e} {WT}")
    srd(A, 8, P_WS, 4*MB, WS['xch'])
    A(".p2align 6")
    A.label(f"{N}_g2c")
    A.i("s_waitcnt lgkmcnt(0)")
    g2phase(0, g2reads(1, 1) + g2addr())
    A.i("s_waitcnt lgkmcnt(0)")
    A.i("s_barrier")
    g2phase(1, g2reads(0, 0) + ["s_sub_u32 s23, s23, 1", "s_cmp_lg_u32 s23, 0"])
    A.i(f"s_cbranch_scc1 {N}_g2c")
    mark(10)
    A.i("s_lshl_b32 s27, s2, 2")
    A.i("s_add_u32 s27, s27, s20")
    A.i("s_xor_b32 s36, s27, 4")
    A.i("s_lshl_b32 s53, s27, 12")
    A.i("s_lshl_b32 s54, s36, 12")
    A.i("s_lshl_b32 s63, s2, 10")
    A.i("s_lshl_b32 s27, s20, 7")
    A.i("s_add_u32 s63, s63, s27")
    A.i("s_xor_b32 s27, s63, 1024")
    A.i("v_mov_b32 v82, s27")
    A.i("s_mov_b32 s27, 0xffff0000")
    A.i("s_waitcnt vmcnt(0) lgkmcnt(0)")
    A.i("s_cmp_eq_u32 s52, 0")
    A.i(f"s_cbranch_scc0 {N}_e1")
    def fin(h):
        send = ACC + (2*(1-h))*16
        keep = ACC + (2*h)*16
        for st in range(4):
            d, a2 = send + st*4, send + 16 + st*4
            A.i(f"v_cvt_pk_bf16_f32 {v(d)}, {v(d)}, {v(d+1)}")
            A.i(f"v_cvt_pk_bf16_f32 {v(d+1)}, {v(d+2)}, {v(d+3)}")
            A.i(f"v_cvt_pk_bf16_f32 {v(d+2)}, {v(a2)}, {v(a2+1)}")
            A.i(f"v_cvt_pk_bf16_f32 {v(d+3)}, {v(a2+2)}, {v(a2+3)}")
            A.i(f"buffer_store_dwordx4 {v(d,4)}, v3, s[8:11], s53 offen offset:{1024*st} {WT}")
        for q in range(4):
            A.i(f"v_pk_add_f32 {v(84+2*q,2)}, {v(GB+2*q,2)}, {v(GB+8+2*q,2)}")
            A.i(f"v_cvt_pk_bf16_f32 v92, {v(84+2*q)}, {v(85+2*q)}")
            A.i(f"v_lshlrev_b32 {v(84+2*q)}, 16, v92")
            A.i(f"v_and_b32 {v(85+2*q)}, s27, v92")
        A.i("s_waitcnt vmcnt(0)")
        mark(62)
        A.i("s_mov_b64 exec, 1")
        A.i(f"buffer_store_dword v94, off, s[{FL}:{FL+3}], s63 {WT}")
        A.i("s_mov_b64 exec, -1")
        poll(A, f"{N}_px{h}", 82, vt=95)
        mark(11)
        for st in range(4):
            A.i(f"buffer_load_dwordx4 {v(16+4*st,4)}, v3, s[8:11], s54 offen offset:{1024*st} {WT}")
        for st in range(4):
            p, q = keep + st*4, keep + 16 + st*4
            A.i("s_waitcnt vmcnt(3)")
            for w_ in range(4):
                dst = (p if w_ < 2 else q) + 2*(w_ % 2)
                t = 32 + 2*w_
                A.i(f"v_lshlrev_b32 {v(t)}, 16, {v(16+4*st+w_)}")
                A.i(f"v_and_b32 {v(t+1)}, s27, {v(16+4*st+w_)}")
                A.i(f"v_pk_add_f32 {v(dst,2)}, {v(dst,2)}, {v(t,2)}")
            A.i("s_nop 1")
            for r in range(4):
                A.i(f"v_permlane16_swap_b32 {v(p+r)}, {v(q+r)}")
            for hh in range(4):
                src = (p if hh < 2 else q) + 2*(hh % 2)
                A.i(f"v_lshlrev_b32 v92, 16, {v(X1+4*st+hh)}")
                A.i(f"v_and_b32 v93, s27, {v(X1+4*st+hh)}")
                A.i(f"v_pk_fma_f32 v[92:93], {v(src,2)}, {v(84+2*hh,2)}, v[92:93]")
                A.i(f"v_cvt_pk_bf16_f32 {v(X1+4*st+hh)}, v92, v93")
            A.i(f"buffer_store_dwordx4 {v(X1+4*st,4)}, v81, s[16:19], s{32+st} offen {outf}")
    fin(0)
    A.i(f"s_branch {N}_fin")
    A.label(f"{N}_e1")
    fin(1)
    A.label(f"{N}_fin")
    if ts and tsw < 4 and spin is None: ts_end(A, N, P_WS, tsw)
    if spin is not None:
        A.i("s_waitcnt vmcnt(0)")
        A.i("s_memrealtime s[42:43]")
        A.i("s_waitcnt lgkmcnt(0)")
        A.i(f"s_cmp_lg_u32 s2, {spin[1]}")
        A.i(f"s_cbranch_scc1 {N}_done")
        A.i("s_cmp_lg_u32 s20, 0")
        A.i(f"s_cbranch_scc1 {N}_done")
        src = {-1: "s40", -2: "s42"}.get(spin[0], "s84")
        A.i(f"s_sub_u32 s46, {src}, s40")
        A.i("s_min_u32 s46, s46, 10000")
        A.i("s_mul_i32 s46, s46, 2")
        A.i("s_add_u32 s46, s46, 1000")
        A.i("s_add_u32 s46, s46, s42")
        A.label(f"{N}_spin")
        A.i("s_memrealtime s[44:45]")
        A.i("s_waitcnt lgkmcnt(0)")
        A.i("s_sub_u32 s45, s46, s44")
        A.i("s_cmp_gt_i32 s45, 0")
        A.i(f"s_cbranch_scc1 {N}_spin")
    A.i("s_endpgm")

    def l_epilogue():
        pass
    def l_pre(xw):
        A.i("v_lshrrev_b32 v166, 3, v2")
        A.i("v_and_b32 v175, 7, v2")
        A.i("v_xor_b32 v175, v175, v166")
        A.i("v_lshlrev_b32 v175, 4, v175")
        A.i("v_lshl_add_u32 v175, v166, 11, v175")
        A.i("s_mul_i32 s52, s63, 448")
        A.i("v_add_u32 v162, s52, v2")
        A.i("s_movk_i32 s52, 2341")
        A.i("s_movk_i32 s53, 7168")
        for q in range(7):
            A.i(f"v_add_u32 v163, {64*q}, v162")
            A.i("v_mul_u32_u24 v164, s52, v163")
            A.i("v_lshrrev_b32 v164, 16, v164")
            A.i("v_mul_u32_u24 v165, 28, v164")
            A.i("v_sub_u32 v163, v163, v165")
            A.i("v_bfe_u32 v165, v164, 3, 1")
            A.i("v_lshlrev_b32 v165, 1, v165")
            A.i("v_xor_b32 v163, v163, v165")
            A.i("v_mul_u32_u24 v164, s53, v164")
            A.i(f"v_lshl_add_u32 {v(168+q)}, v163, 4, v164")
        pass
    A.label(f"{N}_L")
    for u in range(2):
        A.i(f"buffer_load_dwordx4 {v(CR+4*u,4)}, {v(vCO)}, s[28:31], s37 offen offset:{16*u}")
    stream(E1, E1+E2)
    arrive(f"{N}_ak2", 16, 8, "s23", F_KV, wait=f"vmcnt({2+E2})")
    A.i("s_cmp_ge_u32 s2, 192")
    A.i(f"s_cbranch_scc1 {N}_Lidle")
    S = 32
    A.i(f"s_mov_b32 s39, 0x{LOG2E ^ 0x80000000:x}")
    A.i(f"s_waitcnt vmcnt({E2})")
    for q in range(8):
        A.i(f"v_lshlrev_b32 {v(S+4*q)}, 16, {v(CR+q)}")
        A.i(f"v_and_b32 {v(S+4*q+2)}, s27, {v(CR+q)}")
    for q in range(8):
        x0, x1 = S+4*q, S+4*q+2
        A.i(f"v_mul_f32 v8, s39, {v(x0)}")
        A.i(f"v_mul_f32 v9, s39, {v(x1)}")
        A.i("v_exp_f32 v8, v8"); A.i("v_exp_f32 v9, v9")
        A.i("s_nop 0")
        A.i("v_add_f32 v8, 1.0, v8"); A.i("v_add_f32 v9, 1.0, v9")
        A.i("v_rcp_f32 v8, v8"); A.i("v_rcp_f32 v9, v9")
        A.i("s_nop 0")
        A.i(f"v_mul_f32 v8, v8, {v(x0)}"); A.i(f"v_mul_f32 v9, v9, {v(x1)}")
        A.i("v_cvt_pk_bf16_f32 v8, v8, v9")
        A.i(f"v_lshlrev_b32 {v(x0)}, 16, v8")
        A.i(f"v_and_b32 {v(x1)}, s27, v8")
    AC = 16
    for r in range(8): A.i(f"v_mov_b32 {v(AC+r)}, 0")
    def fma_rows(j0, j1, later):
        for j in range(j0, j1):
            A.i(f"s_waitcnt vmcnt({later(j)})")
            for q in range(4):
                t = 8 + 2*(q % 2)
                A.i(f"v_lshlrev_b32 {v(t)}, 16, {v(SD+4*j+q)}")
                A.i(f"v_and_b32 {v(t+1)}, s27, {v(SD+4*j+q)}")
                A.i(f"v_pk_fma_f32 {v(AC+2*q,2)}, {v(t,2)}, {v(S+2*j,2)}, {v(AC+2*q,2)} op_sel_hi:[1,0,1]")
    fma_rows(0, E1+E2, lambda j: min(E2, E1+E2-1-j))
    l_pre(0)
    page_touch(f"{N}_pt1")
    mark(30)
    gate(f"{N}_gk")
    mark(31)
    xrow_load()
    stream(E1+E2, 16)
    code_touch(f"{N}_ct1")
    A.i(f"s_waitcnt vmcnt({16-E1-E2})")
    ln_pre(64)
    mark(32)
    if prio: A.i(f"s_setprio {prio}")
    fma_rows(E1+E2, 16, lambda j: 15-j)
    mark(33)
    A.i("s_nop 1")
    for r in range(8):
        A.i(f"v_add_f32_dpp {v(AC+r)}, {v(AC+r)}, {v(AC+r)} row_ror:8 row_mask:0xf bank_mask:0xf")
    for sw in ("v_permlane16_swap_b32", "v_permlane32_swap_b32"):
        for r in range(8): A.i(f"v_mov_b32 {v(24+r)}, {v(AC+r)}")
        for r in range(8): A.i(f"{sw} {v(AC+r)}, {v(24+r)}")
        for r in range(8): A.i(f"v_add_f32 {v(AC+r)}, {v(AC+r)}, {v(24+r)}")
    A.i("s_lshl_b32 s25, s63, 8")
    A.i(f"s_add_u32 s25, s25, {GP}")
    A.i("v_and_b32 v8, 7, v2")
    A.i("v_lshlrev_b32 v8, 5, v8")
    A.i("v_add_u32 v8, s25, v8")
    A.i(f"ds_write_b128 v8, {v(AC,4)}")
    A.i(f"ds_write_b128 v8, {v(AC+4,4)} offset:16")
    A.i(f"v_mov_b32 v9, {CNT+4}")
    A.i("v_mov_b32 v10, 1")
    A.i("s_waitcnt lgkmcnt(0)")
    A.i("ds_add_rtn_u32 v10, v9, v10")
    A.i("s_waitcnt lgkmcnt(0)")
    A.i("v_cmp_le_u32 vcc, 192, v10")
    A.i("s_nop 1")
    A.i(f"s_cbranch_vccz {N}_Lj")
    A.i("v_lshlrev_b32 v8, 2, v2")
    A.i(f"v_add_u32 v9, {GP}, v8")
    for p in range(4):
        A.i(f"ds_read_b32 {v(16+p)}, v9 offset:{256*p}")
    srd(A, 16, P_WS, 2*24576, WS['mod'])
    A.i("s_and_b32 s25, s2, 1")
    A.i("s_mul_i32 s25, s25, 24576")
    A.i("s_lshl_b32 s26, s36, 8")
    A.i("s_add_u32 s25, s25, s26")
    A.i("s_waitcnt lgkmcnt(0)")
    A.i("v_add_f32 v16, v16, v17")
    A.i("v_add_f32 v18, v18, v19")
    A.i("v_add_f32 v16, v16, v18")
    A.i(f"buffer_store_dword v16, v8, s[16:19], s25 offen {WT}")
    A.i("s_lshl_b32 s25, s2, 7")
    A.i(f"s_add_u32 s25, s25, {F_MOD}")
    A.i("s_waitcnt vmcnt(0)")
    A.i("s_mov_b64 exec, 1")
    A.i(f"buffer_store_dword v13, off, s[{FL}:{FL+3}], s25 {WT}")
    A.i("s_mov_b64 exec, -1")
    A.i(f"s_branch {N}_Lj")
    A.label(f"{N}_Lidle")
    l_pre(0)
    page_touch(f"{N}_pt2")
    gate(f"{N}_gk2")
    xrow_load()
    code_touch(f"{N}_ct2")
    A.i("s_waitcnt vmcnt(0)")
    ln_pre(64)
    if pw1:
        srd(A, 12, P_W1, D1*64*7168)
        A.i("s_sub_u32 s30, s2, 192")
        A.i("s_lshl_b32 s30, s30, 2")
        A.i("s_add_u32 s30, s30, s63")
        A.i(f"s_mul_i32 s30, s30, {D1*14*128}")
        A.i("v_lshlrev_b32 v11, 7, v2")
        n = D1*14
        for b in range(0, n, 64):
            if n - b < 64: A.i(f"v_min_u32 v11, {(n-b-1)*128}, v11")
            A.i("buffer_load_dword v12, v11, s[12:15], s30 offen")
            A.i("s_add_u32 s30, s30, 8192")
    A.label(f"{N}_Lj")
    if prio: A.i("s_setprio 0")
    A.i("s_waitcnt lgkmcnt(0)")
    mark(34)
    A.i("v_lshlrev_b32 v4, 7, v2")
    A.i(f"v_add_u32 v4, {F_MOD}, v4")
    srd(A, 16, P_WS, 2*24576, WS['mod'])
    A.i("v_and_b32 v7, 0xff, v0")
    A.i("v_lshlrev_b32 v6, 3, v7")
    A.i(f"v_add_u32 v6, {LNT}, v6")
    A.i("v_lshlrev_b32 v7, 4, v7")
    A.i("s_bfe_u32 s80, s2, 0x20001")
    A.i("s_lshl_b32 s80, s80, 2")
    A.i("s_lshr_b32 s22, s2, 6")
    A.i("s_add_u32 s80, s80, s22")
    A.i("s_mul_i32 s80, s80, 448            ; W soffset")
    A.i("s_mul_i32 s81, s63, 7168")
    srd(A, 8, P_W1, 1024*7168)
    def g1w(slot):
        for q in range(7):
            A.i(f"s_add_u32 m0, s81, {slot + q*1024}" if isinstance(slot, int) else f"s_add_u32 m0, {slot}, {q*1024}")
            A.i("s_nop 0")
            A.i(f"buffer_load_dwordx4 {v(168+q)}, s[8:11], s80 offen lds")
        A.i(f"s_add_u32 s80, s80, {64*7168}")
    if prefill == 'y':
        A.label(f"{N}_pfy")
        A.i("ds_read_b32 v15, v14 offset:28")
        A.i("s_waitcnt lgkmcnt(0)")
        A.i("v_cmp_ne_u32 vcc, 4, v15")
        A.i("s_sleep 1")
        A.i(f"s_cbranch_vccnz {N}_pfy")
        for j in range(npf): g1w(G1W + j*28672)
    if onepm:
        A.i("s_cmp_lg_u32 s63, 0")
        A.i(f"s_cbranch_scc1 {N}_pmw")
        if pmgate:
            A.label(f"{N}_pmg")
            A.i("ds_read_b32 v15, v14 offset:28")
            A.i("s_waitcnt lgkmcnt(0)")
            A.i("v_cmp_ne_u32 vcc, 4, v15")
            A.i("s_sleep 1")
            A.i(f"s_cbranch_vccnz {N}_pmg")
        poll_all(A, f"{N}_pm", 4, 3, cnt=39, stride=8192)
        A.i("v_mov_b32 v15, 1")
        A.i("ds_write_b32 v14, v15 offset:12")
        A.label(f"{N}_pmw")
        A.i("ds_read_b32 v15, v14 offset:12")
        A.i("s_waitcnt lgkmcnt(0)")
        A.i("v_cmp_ne_u32 vcc, 1, v15")
        A.i("s_sleep 1")
        A.i(f"s_cbranch_vccnz {N}_pmw")
    else:
        poll_ctr(A, f"{N}_pm", 4, 8, 12)
    mark(35)
    for r in range(5):
        for h in range(2):
            A.i(f"s_mov_b32 s22, {4096*r + 24576*h}")
            A.i(f"buffer_load_dwordx4 {v(32+8*r+4*h,4)}, v7, s[16:19], s22 offen {WT}")
    for r in range(5):
        b = 32 + 8*r
        A.i(f"s_waitcnt vmcnt({2*(4-r)})")
        A.i(f"v_pk_add_f32 {v(b,2)}, {v(b,2)}, {v(b+4,2)}")
        A.i(f"v_pk_add_f32 {v(b+2,2)}, {v(b+2,2)}, {v(b+6,2)}")
        A.i(f"v_cvt_pk_bf16_f32 {v(b+4)}, {v(b)}, {v(b+1)}")
        A.i(f"v_cvt_pk_bf16_f32 {v(b+5)}, {v(b+2)}, {v(b+3)}")
        if r in (1, 4):
            unpack(b, b+4); unpack(b+2, b+5)
            A.i(f"v_pk_add_f32 {v(b,2)}, {v(b,2)}, 1.0 op_sel_hi:[1,0]")
            A.i(f"v_pk_add_f32 {v(b+2,2)}, {v(b+2,2)}, 1.0 op_sel_hi:[1,0]")
            A.i(f"v_cvt_pk_bf16_f32 {v(b+4)}, {v(b)}, {v(b+1)}")
            A.i(f"v_cvt_pk_bf16_f32 {v(b+5)}, {v(b+2)}, {v(b+3)}")
        A.i(f"ds_write_b64 v6, {v(b+4,2)} offset:{2048*r}")
    def pf():
        if prefill == 'b3':
            for j in range(npf): g1w(G1W + j*28672)
    A.i("s_waitcnt lgkmcnt(0)")
    mark(36)
    ln_main(True, pf)
    mark(37)
    ln_signal(f"{N}_ah2")
    mark(38)
    if prefill == 'sig':
        for j in range(npf): g1w(G1W + j*28672)
    g1_ids()
    A.i("s_lshl_b32 s24, s21, 4")
    A.i("s_lshl_b32 s27, s63, 2")
    A.i("s_add_u32 s24, s24, s27")
    A.i("v_and_b32 v4, 3, v2")
    A.i("v_add_u32 v4, s24, v4")
    A.i("v_lshlrev_b32 v4, 10, v4")
    A.i(f"v_add_u32 v4, {F_H2}, v4")
    A.i("s_lshl_b32 s24, s24, 14")
    A.i("s_lshl_b32 s33, s63, 12")
    A.i(f"s_add_u32 s33, s33, {G1X}")
    srd(A, 12, P_WS, 4*MB, WS['h2'])
    A.i("s_lshl_b32 s82, s2, 2")
    A.i("s_add_u32 s82, s82, s63           ; wave 0..1023")
    if xw1:
        A.i("s_lshr_b32 s38, s2, 3")
        A.i("s_lshl_b32 s38, s38, 1")
        A.i("s_lshr_b32 s39, s63, 1")
        A.i("s_add_u32 s38, s38, s39")
        A.i("s_mul_i32 s38, s38, 7168")
        A.i("s_bfe_u32 s39, s2, 0x20001")
        A.i("s_lshl_b32 s39, s39, 1")
        A.i("s_and_b32 s53, s63, 1")
        A.i("s_add_u32 s39, s39, s53")
        A.i("s_mul_i32 s39, s39, 896")
        A.i("s_add_u32 s38, s38, s39")
    else:
        A.i("s_mul_i32 s38, s82, 448")
    A.i(f"s_add_u32 s38, s38, {D1*64*7168}")
    A.i(f"s_add_u32 s38, s38, s{P_W1}")
    A.i(f"s_addc_u32 s39, s{P_W1+1}, 0")
    A.i("s_and_b32 s54, s82, 511")
    A.i("s_lshl_b32 s54, s54, 8")
    A.i("s_lshr_b32 s55, s82, 9")
    A.i(f"s_mul_i32 s55, s55, {1792*2048}")
    A.i("s_add_u32 s54, s54, s55")
    A.i(f"s_add_u32 s54, s54, s{P_W2}")
    A.i(f"s_addc_u32 s55, s{P_W2+1}, 0")
    def w2_touch():
        for c in range(4):
            A.i(f"s_load_dword s{44+c}, s[54:55], {c*64}")
        A.i(f"s_add_u32 s54, s54, {64*2048}")
        A.i("s_addc_u32 s55, s55, 0")
    NL1 = 11
    poll(A, f"{N}_ph", 4)
    mark(39)
    def g1x(slot):
        for q in range(4):
            A.i(f"s_add_u32 m0, s33, {slot + q*1024}" if isinstance(slot, int) else f"s_add_u32 m0, {slot}, {q*1024}")
            A.i(f"s_add_u32 s37, s24, {q*8*2048}")
            A.i(f"buffer_load_dwordx4 v175, s[12:15], s37 offen {WT} lds")
        A.i("s_add_u32 s24, s24, 128")
    pend = []
    for j in range(3):
        if j >= npf: g1w(G1W + j*28672)
        g1x(j*16384)
        pend.append(4 + (7 if j >= npf else 0))
    x1_signal(f"{N}_ax2", 8, 9, wait="vmcnt(63)")
    mark(40)
    A.i(f"s_waitcnt vmcnt({pend[1]+pend[2]})")
    mark(41)
    A.i("s_barrier                          ; G1 B0")
    A.i("s_mov_b32 s26, 0")
    A.i("s_mov_b32 s25, 0")
    A.i("s_mov_b32 s23, 13")
    A.i(f"s_waitcnt vmcnt({pend[2]})")
    A.i(f"s_branch {N}_g1l2")
    A.label(f"{N}_g1l")
    A.i(f"s_waitcnt vmcnt({NL1})")
    A.label(f"{N}_g1l2")
    A.i("s_barrier")
    A.i("s_add_u32 s35, s26, s81")
    A.i("s_add_u32 s36, s25, s33")
    g1w("s35"); g1x("s36")
    if pw1:
        A.i(f"s_cmp_le_u32 s23, {13-(16-D1)}")
        A.i(f"s_cbranch_scc1 {N}_t1")
        for c in range(14 if xw1 else 7):
            A.i(f"s_load_dword s{44+(c%4)}, s[38:39], {c*64}")
        A.i(f"s_add_u32 s38, s38, {64*7168}")
        A.i("s_addc_u32 s39, s39, 0")
        A.label(f"{N}_t1")
    if pw2:
        A.i(f"s_cmp_gt_u32 s23, {D2}")
        A.i(f"s_cbranch_scc1 {N}_t2")
        w2_touch()
        A.label(f"{N}_t2")
    A.i("s_add_u32 s26, s26, 28672")
    A.i("s_add_u32 s25, s25, 16384")
    A.i("s_cmp_eq_u32 s25, 49152")
    A.i("s_cselect_b32 s26, 0, s26")
    A.i("s_cselect_b32 s25, 0, s25")
    A.i("s_sub_u32 s23, s23, 1")
    A.i("s_cmp_lg_u32 s23, 0")
    A.i(f"s_cbranch_scc1 {N}_g1l")
    A.i("s_waitcnt lgkmcnt(0)")
    code_touch(f"{N}_ct3")
    g2_ids()
    A.i("v_lshrrev_b32 v4, 4, v2")
    A.i("v_lshlrev_b32 v5, 1, v4")
    A.i("v_and_b32 v6, 15, v2")
    A.i("v_xor_b32 v5, v5, v6")
    A.i("v_lshlrev_b32 v5, 4, v5")
    A.i("v_lshl_add_u32 v5, v4, 11, v5")
    A.i("v_xor_b32 v6, 128, v5")
    A.i("s_lshl_b32 s24, s21, 3")
    A.i("s_lshl_b32 s27, s63, 1")
    A.i("s_add_u32 s24, s24, s27")
    A.i(f"s_mul_i32 s24, s24, {112*1024}")
    A.i(f"s_mul_i32 s27, s52, {56*1024}")
    A.i("s_add_u32 s24, s24, s27            ; X soffset")
    A.i("s_lshl_b32 s80, s22, 8")
    A.i("s_lshl_b32 s27, s63, 15")
    A.i("s_add_u32 s80, s80, s27")
    A.i(f"s_mul_i32 s27, s52, {1792*2048}")
    A.i("s_add_u32 s80, s80, s27            ; W soffset")
    A.i("s_lshl_b32 s81, s63, 12")
    A.i(f"s_add_u32 s33, s81, {G2X}")
    A.i("s_lshl_b32 s27, s21, 4")
    A.i("s_lshl_b32 s30, s52, 3")
    A.i("s_add_u32 s27, s27, s30")
    A.i("v_and_b32 v7, 7, v2")
    A.i("v_add_u32 v7, s27, v7")
    A.i("v_lshlrev_b32 v7, 10, v7")
    A.i(f"v_add_u32 v7, {F_ACT}, v7")
    if lazyx1:
        A.i("s_lshl_b32 s27, s21, 4")
        A.i("v_and_b32 v8, 15, v2")
        A.i("v_add_u32 v8, s27, v8")
        A.i("v_lshlrev_b32 v8, 10, v8")
        A.i(f"v_add_u32 v8, {F_X1}, v8")
        A.i("v_cmp_gt_u32 vcc, 32, v2")
        A.i("s_nop 1")
        A.i("v_cndmask_b32 v7, v8, v7, vcc")
    for rem in (NL1, 0, 0):
        A.i(f"s_waitcnt vmcnt({rem})")
        A.i("s_barrier")
    srd(A, 8, P_W2, 3584*2048)
    srd(A, 12, P_WS, 2048*3584*2, WS['act'])
    def g2w(slot):
        for q in range(4):
            A.i(f"s_add_u32 m0, s81, {slot + q*1024}" if isinstance(slot, int) else f"s_add_u32 m0, {slot}, {q*1024}")
            A.i(f"s_add_u32 s37, s80, {q*4*2048}")
            A.i(f"buffer_load_dwordx4 {v(5+(q//2))}, s[8:11], s37 offen lds")
        A.i(f"s_add_u32 s80, s80, {64*2048}")
    def g2x(slot):
        A.i(f"s_add_u32 m0, s33, {slot}")
        A.i(f"s_add_u32 s37, s24, {112*1024}")
        for kb in range(2):
            A.i(f"buffer_load_dwordx4 v3, s[12:15], s24 offen offset:{kb*1024} {WT} lds")
        A.i("s_add_u32 m0, m0, 2048")
        A.i("s_add_u32 s24, s24, 2048")
        for kb in range(2):
            A.i(f"buffer_load_dwordx4 v3, s[12:15], s37 offen offset:{kb*1024} {WT} lds")
    for j in range(4): g2w(G2W + j*16384)
    mark(42)
    poll(A, f"{N}_pa", 7)
    mark(43)
    for j in range(4): g2x(j*16384)
    A.i("s_waitcnt vmcnt(12)")
    mark(44)
    A.i("s_barrier                          ; G2 B0")
    A.i("s_mov_b32 s26, 0")
    def g2step(touch=True):
        A.i("s_barrier")
        A.i("s_add_u32 s35, s26, s81")
        g2w("s35"); g2x("s26")
        if pw2 and touch: w2_touch()
        A.i("s_add_u32 s26, s26, 16384")
        A.i("s_and_b32 s26, s26, 0xffff")
    A.i("s_waitcnt vmcnt(8)")
    g2step()
    A.i("s_waitcnt vmcnt(12)")
    g2step()
    A.i(f"s_mov_b32 s23, {28-D2-2}")
    A.label(f"{N}_g2l")
    A.i("s_waitcnt vmcnt(16)")
    g2step()
    A.i("s_sub_u32 s23, s23, 1")
    A.i("s_cmp_lg_u32 s23, 0")
    A.i(f"s_cbranch_scc1 {N}_g2l")
    for _ in range(D2-4):
        A.i("s_waitcnt vmcnt(16)")
        g2step(False)
    A.i("s_waitcnt lgkmcnt(0)")
    code_touch(f"{N}_ct4")
    for rem in (16, 8, 0, 0):
        A.i(f"s_waitcnt vmcnt({rem})")
        A.i("s_barrier")
    if ts and tsw >= 4:
        A.i("s_waitcnt lgkmcnt(0)")
        ts_end(A, N, P_WS, tsw)
    A.label(f"{N}_done")
    A.i("s_endpgm")
    kernel_desc(A, N, 240, 102)
    return (256, 512, 163840)
```

```python
from buildf import *
def ps(a,b): return dict(pk=a, pg=b, pm=b, ph=a, pa=a, px=max(1,a//2))
fullf('z0.s', plain=True)
fullf('v5.s')
fullf('z2.s', f=dict(psleep=ps(1,2)))
fullf('z3.s', f=dict(D1=9, D2=13))
fullf('z4.s', f=dict(E1=8))
```

```python
from asmlib import *
from bw import ts_begin, ts_end, ts_mark
from k2 import wave_reduce
LOG2E = 0x3fb8aa3b
WT = "sc0 sc1"

P_WS, P_Q = 4, 6
P_SSM, P_D, P_W1, P_W2, P_C, P_WM, P_OUT = 64, 66, 70, 72, 74, 76, 78
FL = 56
F_X, F_H2, F_ACT, F_KV = 0, 512, 640, 768
F_X1 = 576
F_BAR = 896
F_MOD = 288*1024
F_KVF = 320*1024
F_NONCE = 448*1024 + 52
SV = 83
P_K, P_V, P_SH = 96, 98, 100

PSLEEP = {}
def poll(A, tag, vaddr, vt=15, cnt=60, wide=False):
    val = f"s{SV}"
    A.i(f"s_mov_b32 s{cnt}, 0x40000")
    sl = PSLEEP.get(tag.split("_")[-1][:2], 0)
    if sl:
        A.i(f"s_branch {tag}_in")
    A.label(tag)
    if sl:
        A.i(f"s_sleep {sl}")
        A.label(f"{tag}_in")
    if wide: A.i(f"buffer_load_dwordx4 {v(vt,4)}, {v(vaddr)}, s[{FL}:{FL+3}], 0 offen {WT}")
    else:    A.i(f"buffer_load_dword {v(vt)}, {v(vaddr)}, s[{FL}:{FL+3}], 0 offen {WT}")
    A.i(f"s_sub_u32 s{cnt}, s{cnt}, 1")
    A.i(f"s_cmp_eq_u32 s{cnt}, 0")
    A.i(f"s_cbranch_scc1 {tag}_out")
    A.i("s_waitcnt vmcnt(0)")
    if wide:
        for r in range(4): A.i(f"v_xor_b32 {v(vt+r)}, {val}, {v(vt+r)}")
        A.i(f"v_or3_b32 {v(vt)}, {v(vt)}, {v(vt+1)}, {v(vt+2)}")
        A.i(f"v_or_b32 {v(vt)}, {v(vt)}, {v(vt+3)}")
        val = "0"
    A.i(f"v_cmp_ne_u32 vcc, {val}, {v(vt)}")
    A.i("s_nop 1")
    A.i(f"s_cbranch_vccnz {tag}")
    A.label(f"{tag}_out")

def poll2(A, tag, va, vb, vt, cnt=60):
    sl = PSLEEP.get(tag.split("_")[-1][:2], 0)
    A.i(f"s_mov_b32 s{cnt}, 0x40000")
    A.i(f"s_branch {tag}_in")
    A.label(tag)
    if sl: A.i(f"s_sleep {sl}")
    A.label(f"{tag}_in")
    A.i(f"buffer_load_dword {v(vt)}, {v(vb)}, s[{FL}:{FL+3}], 0 offen {WT}")
    A.i(f"s_sub_u32 s{cnt}, s{cnt}, 1")
    A.i(f"s_cmp_eq_u32 s{cnt}, 0")
    A.i(f"s_cbranch_scc1 {tag}_out")
    A.i("s_waitcnt vmcnt(0)")
    A.i(f"v_cmp_ne_u32 vcc, s{SV}, {v(vt)}")
    A.i("s_nop 1")
    A.i(f"s_cbranch_vccz {tag}_out")
    A.i(f"s_and_b32 s10, s{cnt}, 3")
    A.i(f"s_cbranch_scc1 {tag}")
    A.i(f"buffer_load_dword {v(vt+1)}, {v(va)}, s[{FL}:{FL+3}], 0 offen {WT}")
    A.i("s_mov_b64 s[8:9], vcc")
    A.i("s_waitcnt vmcnt(0)")
    A.i(f"v_cmp_ne_u32 vcc, s{SV}, {v(vt+1)}")
    A.i("s_nop 1")
    A.i("s_and_b64 vcc, vcc, s[8:9]")
    A.i(f"s_cbranch_scc1 {tag}")
    A.label(f"{tag}_out")

def poll_all(A, tag, vaddr, groups, vt=16, cnt=60, stride=65536, mask=84):
    sl = PSLEEP.get(tag.split("_")[-1][:2], 0)
    M = [f"s[{44+2*g}:{45+2*g}]" if g < 2 else f"s[{52+2*(g-2)}:{53+2*(g-2)}]" for g in range(groups)]
    A.i(f"s_mov_b32 s{cnt}, 0x40000")
    for g in range(groups):
        A.i(f"s_mov_b64 {M[g]}, -1")
        if g: A.i(f"v_add_u32 {v(vt+4+g)}, {g*stride}, {v(vaddr)}")
    A.i(f"s_branch {tag}_in")
    A.label(tag)
    if sl: A.i(f"s_sleep {sl}")
    A.label(f"{tag}_in")
    for g in range(groups):
        A.i(f"s_or_b64 exec, {M[g]}, 1")
        A.i(f"buffer_load_dword {v(vt+g)}, {v(vt+4+g) if g else v(vaddr)}, s[{FL}:{FL+3}], 0 offen {WT}")
    A.i(f"s_sub_u32 s{cnt}, s{cnt}, 1")
    A.i(f"s_cmp_eq_u32 s{cnt}, 0")
    A.i(f"s_cbranch_scc1 {tag}_out")
    A.i("s_waitcnt vmcnt(0)")
    for g in range(groups):
        A.i(f"s_or_b64 exec, {M[g]}, 1")
        A.i(f"v_cmp_ne_u32 {M[g]}, s{SV}, {v(vt+g)}")
    A.i("s_nop 1")
    A.i(f"s_or_b64 vcc, {M[0]}, {M[1]}")
    for g in range(2, groups):
        A.i(f"s_or_b64 vcc, vcc, {M[g]}")
    A.i(f"s_cbranch_scc1 {tag}")
    A.label(f"{tag}_out")
    A.i("s_mov_b64 exec, -1")

def poll_ctr(A, tag, vaddr, shift, val, vt=16, cnt=39):
    sl = PSLEEP.get(tag.split("_")[-1][:2], 0)
    A.i(f"s_mov_b32 s{cnt}, 0x40000")
    A.i(f"s_branch {tag}_in")
    A.label(tag)
    if sl: A.i(f"s_sleep {sl}")
    A.label(f"{tag}_in")
    A.i(f"buffer_load_dword {v(vt)}, {v(vaddr)}, s[{FL}:{FL+3}], 0 offen {WT}")
    A.i(f"s_sub_u32 s{cnt}, s{cnt}, 1")
    A.i(f"s_cmp_eq_u32 s{cnt}, 0")
    A.i(f"s_cbranch_scc1 {tag}_out")
    A.i("s_waitcnt vmcnt(0)")
    A.i(f"v_bfe_u32 {v(vt)}, {v(vt)}, {shift}, 8")
    A.i(f"v_cmp_ne_u32 vcc, {val}, {v(vt)}")
    A.i("s_nop 1")
    A.i(f"s_cbranch_vccnz {tag}")
    A.label(f"{tag}_out")

def gen_f(A, name="f1_kernel", ts=False, nt="nt", outf="", pw1=True, pw2=True, marks=(0,1,2,3,4,5), tsw=0, prio=0, ntk='nt', prefill='y', npf=2, wf1='', E1=2, E2=2, halo=True, D1=7, D2=8, ncode=16, psleep=dict(pk=4, pg=8, pm=8, ph=4, pa=4, px=2), onepm=True, nogemv=False, spin=None, ctouch=True, pmgate=False, earlysig=False, reuse=True, FLAGIT=8, nosend=False, xw1=False, lazyx1=False, defer=0, firsttile=True, fastkv=True, hearly=True, tlb=0):
    N = name
    NARR = 4
    PSLEEP.clear(); PSLEEP.update(psleep)
    def mark(j):
        if ts:
            for i, m in enumerate(marks):
                if m == j: ts_mark(A, i)
    WB, HC = 24320, 4160
    XO = 4*HC
    GP = 4*WB
    CNT = 161792
    G1W, G1X = 0, 86016
    LNP, LNY, LNT = 86016, 135168, 151552
    G2W, G2X = 0, 65536
    XROW = 232
    HH = 216
    SD = 104
    vWM, vCO, CR = 204, 205, 208
    P0B = 135168

    def xrow_load():
        srd(A, 8, P_Q, 4*MB)
        for hf in range(2):
            A.i(f"buffer_load_dwordx4 {v(XROW+hf*4,4)}, v3, s[8:11], s61 offen offset:{hf*1024} {nt}")

    def arrive(tag, cnt, n, soff, off, wait="vmcnt(0)", vc=14, vt=15, add=None, fast=None):
        A.i(f"v_mov_b32 {v(vt)}, 1")
        A.i(f"s_waitcnt {wait}")
        A.i("s_mov_b64 exec, 1")
        A.i(f"ds_add_rtn_u32 {v(vt)}, {v(vc)}, {v(vt)} offset:{cnt}")
        A.i("s_waitcnt lgkmcnt(0)")
        A.i(f"v_cmp_eq_u32 vcc, {n-1}, {v(vt)}")
        A.i(f"v_mov_b32 {v(vt)}, {add if add else f's{SV}'}")
        A.i("s_nop 0")
        A.i(f"s_cbranch_vccz {tag}")
        if add: A.i(f"buffer_atomic_add {v(vt)}, off, s[{FL}:{FL+3}], {soff}")
        else:
            if fast: A.i(f"buffer_store_dword {v(vt)}, off, s[{FL}:{FL+3}], {fast}")
            A.i(f"buffer_store_dword {v(vt)}, off, s[{FL}:{FL+3}], {soff} offset:{off} {WT}")
        A.label(tag)
        A.i("s_mov_b64 exec, -1")
    def code_touch(tag):
        if not ctouch: return
        A.i("s_getpc_b64 s[46:47]")
        A.label(tag)
        A.i(f"s_sub_u32 s46, s46, {tag}-{N}")
        A.i("s_subb_u32 s47, s47, 0")
        A.i("s_lshr_b32 s44, s2, 3")
        A.i("s_lshl_b32 s44, s44, 2")
        A.i("s_add_u32 s44, s44, s63")
        A.i("s_mul_i32 s44, s44, 320")
        A.i(f"s_min_u32 s44, s44, code_end-{N}-320")
        A.i("s_add_u32 s46, s46, s44")
        A.i("s_addc_u32 s47, s47, 0")
        for c in range(5):
            A.i(f"s_load_dword s45, s[46:47], {64*c}")
    def page_touch(tag):
        if not tlb: return
        A.i("s_cmp_lg_u32 s63, 3")
        A.i(f"s_cbranch_scc1 {tag}")
        srd(A, 16, P_WS, 48*MB)
        A.i(f"v_lshlrev_b32 v8, {tlb}, v2")
        n = (48*MB >> tlb) // 64 or 1
        A.i("s_mov_b32 s52, 0")
        for i in range(n):
            A.i("buffer_load_dword v9, v8, s[16:19], s52 offen")
            A.i(f"s_add_u32 s52, s52, {64 << tlb}")
        srd(A, 16, P_OUT, 4*MB)
        A.i("buffer_load_dword v9, v8, s[16:19], 0 offen")
        A.i("s_waitcnt vmcnt(0)")
        A.label(tag)
    def stream(j0, j1):
        for j in range(j0, j1):
            A.i(f"buffer_load_dwordx4 {v(SD+4*j,4)}, {v(vWM)}, s[12:15], s80 offen {nt}")
            A.i("s_add_u32 s80, s80, 12288")
    kernel_head(A, N)
    A.i("s_cmp_ge_u32 s2, 256")
    A.i(f"s_cbranch_scc1 {N}_done")
    A.i(f"s_load_dwordx4 s[{P_K}:{P_K+3}], s[0:1], {KA['k']}")
    A.i(f"s_load_dwordx2 s[{P_SH}:{P_SH+1}], s[0:1], {KA['shift']}")
    A.i(f"s_load_dwordx16 s[64:79], s[0:1], {KA['ssm']}")
    A.i(f"s_load_dwordx2 s[4:5], s[0:1], {KA['ws']}")
    A.i(f"s_load_dwordx2 s[6:7], s[0:1], {KA['q']}")
    A.i(f"s_cmp_ge_u32 s2, {ncode}")
    A.i(f"s_cbranch_scc1 {N}_nc")
    A.i("s_getpc_b64 s[8:9]")
    A.label(f"{N}_pc")
    A.i(f"s_mov_b32 s10, code_end-{N}_pc")
    A.i("s_mov_b32 s11, 0x20000")
    A.i("v_lshlrev_b32 v13, 7, v0")
    A.i(f"buffer_load_dword {v(HH)}, v13, s[8:11], 0 offen")
    A.label(f"{N}_nc")
    if ts: ts_begin(A)
    A.i(f"v_mov_b32 v14, {CNT}")
    A.i("v_mov_b32 v4, 0")
    A.i("v_mov_b32 v5, 0")
    for o in range(5): A.i(f"ds_write_b64 v14, v[4:5] offset:{8*o}")
    A.i("v_lshrrev_b32 v1, 6, v0")
    A.i("v_and_b32 v2, 63, v0              ; lane")
    A.i("v_readfirstlane_b32 s20, v1       ; wave")
    A.i("s_and_b32 s21, s2, 7")
    A.i("s_lshl_b32 s21, s21, 1")
    A.i("s_bfe_u32 s22, s2, 0x10003")
    A.i("s_add_u32 s21, s21, s22           ; cb")
    A.i("s_lshr_b32 s22, s2, 4             ; rb")
    A.i("v_and_b32 v1, 15, v0              ; cc")
    A.i("v_lshrrev_b32 v9, 4, v0           ; rg")
    A.i("s_lshl_b32 s23, s22, 18")
    A.i("s_lshl_b32 s24, s21, 7")
    A.i("s_add_u32 s23, s23, s24")
    A.i(f"s_sub_u32 s23, s23, {3*2048}")
    A.i("v_lshlrev_b32 v3, 13, v9")
    A.i("v_lshl_add_u32 v3, v1, 3, v3")
    A.i("v_add_u32 v3, s23, v3")
    A.i("v_add_u32 v4, 4096, v3")
    A.i("v_add_u32 v5, 6144, v3")
    A.i("v_add_u32 v6, 10240, v3")
    A.i("s_lshl_b32 s24, s21, 9")
    A.i("v_lshlrev_b32 v7, 5, v1")
    A.i("s_waitcnt lgkmcnt(0)")
    mark(50)
    srd(A, 12, P_K, 4*MB)
    srd(A, 16, P_V, 4*MB)
    K, V, W = 16, 32, 40
    addr = [(3,0),(3,2048),(4,0),(5,0),(5,2048),(6,0),(6,2048)]
    for j in range(3, 7):
        r,o = addr[j]
        A.i(f"buffer_load_dwordx2 {v(K+2*j,2)}, v{r}, s[12:15], 0 offen offset:{o} {ntk}")
    for j in range(4):
        r,o = addr[3+j]
        A.i(f"buffer_load_dwordx2 {v(V+2*j,2)}, v{r}, s[16:19], 0 offen offset:{o} {nt}")
    if halo: A.i("s_mov_b64 exec, 0xffff")
    for j in range(3):
        r,o = addr[j]
        A.i(f"buffer_load_dwordx2 {v(K+2*j,2)}, v{r}, s[12:15], 0 offen offset:{o} {ntk}")
    if halo: A.i("s_mov_b64 exec, -1")
    srd(A, 28, P_SH, 8192)
    A.i(f"buffer_load_dwordx4 {v(W,4)}, v7, s[28:31], s24 offen")
    A.i(f"buffer_load_dwordx4 {v(W+4,4)}, v7, s[28:31], s24 offen offset:16")
    srd(A, FL, P_WS, 512*1024, WS['flag'])
    A.i(f"s_load_dword s{SV}, s[{FL}:{FL+1}], {F_NONCE}")
    A.i("v_lshlrev_b32 v3, 4, v2           ; lane*16")
    A.i("s_and_b32 s62, s2, 7")
    A.i("s_lshl_b32 s62, s62, 5")
    A.i("s_lshr_b32 s63, s2, 3")
    A.i("s_add_u32 s62, s62, s63")
    srd(A, 32, P_WS, 4*MB, WS['kvT'])
    A.i("v_lshrrev_b32 v8, 1, v9")
    A.i("v_and_b32 v10, 7, v1")
    A.i("v_xor_b32 v8, v8, v10")
    A.i("v_lshlrev_b32 v8, 4, v8")
    A.i("v_lshl_add_u32 v8, v1, 10, v8")
    A.i("v_and_b32 v10, 1, v9")
    A.i("v_xor_b32 v10, 1, v10")
    A.i("v_lshl_add_u32 v8, v10, 3, v8")
    A.i(f"v_add_u32 v8, {P0B}, v8")
    A.i("v_lshrrev_b32 v10, 6, v0")
    A.i("v_xor_b32 v10, v10, v1")
    A.i("v_lshlrev_b32 v10, 4, v10")
    A.i("v_lshl_add_u32 v10, v9, 8, v10")
    A.i(f"v_add_u32 v10, {P0B}, v10")
    A.i("v_lshlrev_b32 v11, 4, v1")
    A.i("v_lshl_add_u32 v11, v9, 12, v11")
    A.i("s_lshl_b32 s25, s21, 18")
    A.i("s_lshl_b32 s26, s22, 8")
    A.i("s_add_u32 s25, s25, s26")
    A.i("s_add_u32 s26, s25, 0x20000")
    A.i("s_mov_b32 s27, 0xffff0000")
    A.i("s_lshl_b32 s23, s21, 4")
    A.i("s_add_u32 s23, s23, s22")
    A.i("s_lshl_b32 s23, s23, 10")

    A.i("s_lshr_b32 s39, s23, 3")
    A.i(f"s_add_u32 s39, s39, {F_KVF}")
    A.i("s_lshl_b32 s61, s62, 3")
    A.i("s_add_u32 s61, s61, s20")
    A.i("s_lshl_b32 s61, s61, 11")
    A.i("v_subrev_u32 v12, 16, v2")
    A.i("v_lshlrev_b32 v12, 2, v12")
    A.i("s_cmp_ge_u32 s20, 4")
    A.i(f"s_cbranch_scc1 {N}_noh")
    A.i("s_lshl_b32 s63, s62, 2")
    A.i("s_add_u32 s63, s63, s20           ; channel d")
    A.i("s_lshr_b32 s60, s63, 1")
    A.i("s_lshl_b32 s60, s60, 2")
    A.i(f"s_load_dword s82, s[{P_D}:{P_D+1}], s60                 ; D pair")
    A.i(f"v_mov_b32 {v(vWM)}, 0")
    A.i(f"v_mov_b32 {v(vCO)}, 0")
    mark(51)
    A.i("s_waitcnt vmcnt(0)")
    mark(52)
    if hearly:
        A.i("s_lshl_b32 s60, s63, 12")
        srd(A, 8, P_SSM, 4*MB)
        for u in range(4):
            A.i(f"buffer_load_dwordx4 {v(HH+4*u,4)}, v3, s[8:11], s60 offen offset:{1024*u} {nt}")
    A.i(f"s_branch {N}_h1")
    A.label(f"{N}_noh")
    A.i("s_sub_u32 s63, s20, 4             ; lw")
    A.i("s_lshr_b32 s36, s2, 1")
    A.i("s_and_b32 s37, s2, 1")
    A.i("s_lshl_b32 s37, s37, 2")
    A.i("s_add_u32 s37, s37, s63           ; k part 0..7")
    A.i("v_and_b32 v4, 7, v2               ; cc")
    A.i("v_lshrrev_b32 v5, 3, v2")
    A.i(f"s_mov_b32 s80, {16*12288}")
    A.i(f"v_mul_lo_u32 {v(vWM)}, v5, s80")
    A.i(f"v_lshl_add_u32 {v(vWM)}, v4, 4, {v(vWM)}")
    A.i(f"v_lshlrev_b32 {v(vCO)}, 5, v5")
    A.i(f"s_mul_i32 s80, s37, {128*12288}")
    A.i("s_lshl_b32 s81, s36, 7")
    A.i("s_add_u32 s80, s80, s81")
    A.i("s_lshl_b32 s37, s37, 8            ; c soffset")
    srd(A, 12, P_WM, 1024*12288)
    srd(A, 28, P_C, 2048)
    A.i(f"s_cmp_ge_u32 s2, {0 if nogemv else 192}")
    A.i("s_cselect_b32 s14, 0, s14")
    A.i("s_waitcnt vmcnt(0)")
    stream(0, E1)
    A.label(f"{N}_h1")
    if halo:
        for j in range(3):
            for e in range(2):
                A.i(f"ds_bpermute_b32 {v(96+2*j+e)}, v12, {v(K+2*(j+4)+e)}")
        A.i("v_cmp_gt_u32 vcc, 16, v2")
    WU = 48
    for pr in range(2):
        for e in range(2):
            ch = 2*pr + e
            for tap in range(4):
                src = W + 2*ch + tap//2
                dst = WU + (pr*4+tap)*2 + e
                if tap % 2 == 0: A.i(f"v_lshlrev_b32 {v(dst)}, 16, {v(src)}")
                else:            A.i(f"v_and_b32 {v(dst)}, s27, {v(src)}")
    if halo:
        A.i("s_waitcnt lgkmcnt(0)")
        for j in range(6):
            A.i(f"v_cndmask_b32 {v(K+j)}, {v(96+j)}, {v(K+j)}, vcc")
    KU, VU, R = 64, 80, 88
    for pr in range(2):
        for j in range(7):
            A.i(f"v_lshlrev_b32 {v(KU+2*j)}, 16, {v(K+2*j+pr)}")
            A.i(f"v_and_b32 {v(KU+2*j+1)}, s27, {v(K+2*j+pr)}")
        for j in range(4):
            A.i(f"v_lshlrev_b32 {v(VU+2*j)}, 16, {v(V+2*j+pr)}")
            A.i(f"v_and_b32 {v(VU+2*j+1)}, s27, {v(V+2*j+pr)}")
        w = lambda tap: v(WU+(pr*4+tap)*2, 2)
        for r in range(4):
            A.i(f"v_pk_mul_f32 {v(R+2*r,2)}, {v(KU+2*r,2)}, {w(3)}")
        for tap in (2,1,0):
            for r in range(4):
                A.i(f"v_pk_fma_f32 {v(R+2*r,2)}, {v(KU+2*(r+3-tap),2)}, {w(tap)}, {v(R+2*r,2)}")
        for r in range(4):
            A.i(f"v_pk_mul_f32 {v(R+2*r,2)}, {v(R+2*r,2)}, {v(VU+2*r,2)}")
        for e in range(2):
            d = 96 + (pr*2+e)*2
            A.i(f"v_cvt_pk_bf16_f32 {v(d)}, {v(R+6+e)}, {v(R+4+e)}")
            A.i(f"v_cvt_pk_bf16_f32 {v(d+1)}, {v(R+2+e)}, {v(R+e)}")
            A.i(f"ds_write_b64 v8, {v(d,2)} offset:{(2*pr+e)*256}")
    A.i("s_waitcnt lgkmcnt(0)")
    mark(53)
    A.i("s_barrier                         ; b0")
    mark(54)
    A.i("ds_read_b128 v[16:19], v10")
    A.i("ds_read_b128 v[20:23], v10 offset:8192")
    A.i(f"s_mul_i32 s{SV}, s{SV}, 0x9e3779b1")
    A.i(f"s_add_u32 s{SV}, s{SV}, 0x7f4a7c15")
    A.i("s_mov_b32 s21, s62")
    A.i("s_waitcnt lgkmcnt(1)")
    A.i(f"buffer_store_dwordx4 v[16:19], v11, s[32:35], s25 offen {WT}")
    A.i("s_waitcnt lgkmcnt(0)")
    A.i(f"buffer_store_dwordx4 v[20:23], v11, s[32:35], s26 offen {WT}")
    A.i("v_mov_b32 v12, 0")
    A.i(f"v_mov_b32 v13, s{SV}")
    A.label(f"{N}_p0end")
    mark(20)
    A.i("s_cmp_ge_u32 s20, 4")
    A.i(f"s_cbranch_scc1 {N}_L")

    NP = 4
    def gate(tag):
        A.label(tag)
        A.i("ds_read_b32 v15, v14 offset:8")
        A.i("s_waitcnt lgkmcnt(0)")
        A.i("v_cmp_ne_u32 vcc, 256, v15")
        A.i("s_nop 1")
        A.i(f"s_cbranch_vccnz {tag}")

    X, Y, M, MF, T, H = 16, 24, 32, 88, 136, 144
    XF, RS, LA = 176, 192, 196
    def unpack(dst, src):
        A.i(f"v_lshlrev_b32 {v(dst)}, 16, {v(src)}")
        A.i(f"v_and_b32 {v(dst+1)}, s27, {v(src)}")
    def stats(t):
        a, b_ = v(t,2), v(t+2,2)
        A.i(f"v_pk_add_f32 {a}, {v(XF,2)}, {v(XF+2,2)}")
        A.i(f"v_pk_mul_f32 {b_}, {v(XF,2)}, {v(XF,2)}")
        A.i(f"v_pk_fma_f32 {b_}, {v(XF+2,2)}, {v(XF+2,2)}, {b_}")
        for q in range(2, 8):
            b = XF + 2*q
            A.i(f"v_pk_add_f32 {a}, {a}, {v(b,2)}")
            A.i(f"v_pk_fma_f32 {b_}, {v(b,2)}, {v(b,2)}, {b_}")
        A.i(f"v_add_f32 {v(t+4)}, {v(t)}, {v(t+1)}")
        A.i(f"v_add_f32 {v(t+5)}, {v(t+2)}, {v(t+3)}")
        wave_reduce(A, [t+4, t+5])
        A.i("s_nop 0")
        A.i(f"v_readlane_b32 s52, {v(t+4)}, 63")
        A.i(f"v_readlane_b32 s53, {v(t+5)}, 63")
        A.i(f"v_mov_b32 {v(t+2)}, 0x3a800000        ; 1/1024")
        A.i("s_nop 0")
        A.i(f"v_mul_f32 {v(t)}, s52, {v(t+2)}           ; mean")
        A.i(f"v_mul_f32 {v(t+1)}, s53, {v(t+2)}         ; E[x^2]")
        A.i(f"v_fma_f32 {v(t+1)}, -{v(t)}, {v(t)}, {v(t+1)}     ; var")
        A.i(f"v_max_f32 {v(t+1)}, 0, {v(t+1)}")
        A.i(f"v_add_f32 {v(t+1)}, 0x3727c5ac, {v(t+1)}   ; + 1e-5")
        A.i(f"v_rsq_f32 {v(RS)}, {v(t+1)}")
        A.i("s_nop 0")
        A.i(f"v_mul_f32 {v(RS+2)}, -{v(t)}, {v(RS)}")
    def ln_pre(t):
        A.i("s_lshr_b32 s52, s20, 1")
        A.i(f"v_lshrrev_b32 {v(LA)}, 1, v2")
        A.i(f"v_xor_b32 {v(LA)}, s52, {v(LA)}")
        A.i(f"v_and_b32 {v(LA)}, 3, {v(LA)}")
        A.i(f"v_lshlrev_b32 {v(LA)}, 4, {v(LA)}")
        A.i(f"v_lshl_add_u32 {v(LA)}, v2, 7, {v(LA)}")
        A.i("s_and_b32 s52, s20, 1")
        A.i("s_lshl_b32 s52, s52, 3")
        A.i(f"s_add_u32 s52, s52, {LNY}")
        A.i(f"v_add_u32 {v(LA)}, s52, {v(LA)}")
        A.i(f"v_add_u32 {v(LA+1)}, {LNT}, v3")
        for q in range(8):
            unpack(XF + 2*q, XROW + q)
        stats(t)
    def ln_main(hi, after_b3=None):
        rs = f"{v(RS,2)}, {v(RS+2,2)} op_sel_hi:[1,0,0]"
        srd(A, 28, P_WS, 4*MB, WS['x1'])
        srd(A, 32, P_WS, 4*MB, WS['h2'])
        A.i("s_mov_b32 s27, 0xffff0000")
        for q in range(8):
            A.i(f"v_pk_fma_f32 {v(H+2*q,2)}, {v(XF+2*q,2)}, {rs}")
        A.i("s_barrier                         ; b3: modulation table ready, y on its way")
        if not hi: mark(3)
        for vec in (1, 0, 2, 4, 3):
            for hf in range(2):
                A.i(f"ds_read_b128 {v(M+(vec*2+hf)*4,4)}, {v(LA+1)} offset:{vec*2048 + hf*1024}")
        if after_b3: after_b3()
        SA, CA, GA = MF, MF+16, MF+32
        A.i("s_waitcnt lgkmcnt(6)")
        for q in range(8):
            unpack(CA+2*q, M+8+q); unpack(SA+2*q, M+q)
            A.i(f"v_pk_fma_f32 {v(H+2*q,2)}, {v(H+2*q,2)}, {v(CA+2*q,2)}, {v(SA+2*q,2)}")
        A.i("s_waitcnt lgkmcnt(4)")
        for q in range(8):
            unpack(GA+2*q, M+16+q)
            A.i(f"v_pk_mul_f32 {v(H+2*q,2)}, {v(H+2*q,2)}, {v(GA+2*q,2)}")
        A.i("s_waitcnt lgkmcnt(0)")
        SB, CB = MF, MF+16
        for q in range(8):
            unpack(CB+2*q, M+32+q); unpack(SB+2*q, M+24+q)
        if not hi:
            mark(16)
            A.i("s_waitcnt vmcnt(0)")
        A.i("s_barrier                         ; b4: y landed")
        if not hi: mark(17)
        for hf in range(2):
            for e in range(2):
                A.i(f"ds_read_b64 {v(Y+(hf*2+e)*2,2)}, {v(LA)} offset:{hf*8192 + e*64}")
        for q in range(8):
            t = T + (q % 2) * 2
            if q % 2 == 0: A.i(f"s_waitcnt lgkmcnt({3 - q//2})")
            unpack(t, Y + q)
            A.i(f"v_pk_fma_f32 {v(H+2*q,2)}, {v(H+2*q,2)}, {v(t,2)}, {v(XF+2*q,2)}")
            A.i(f"v_cvt_pk_bf16_f32 {v(X+q)}, {v(H+2*q)}, {v(H+2*q+1)}")
            unpack(XF+2*q, X+q)
        if not lazyx1:
            for hf in range(2):
                A.i(f"buffer_store_dwordx4 {v(X+hf*4,4)}, v3, s[28:31], s61 offen offset:{hf*1024} {WT}")
        stats(8)
        for q in range(8):
            A.i(f"v_pk_fma_f32 {v(H+2*q,2)}, {v(XF+2*q,2)}, {rs}")
            A.i(f"v_pk_fma_f32 {v(H+2*q,2)}, {v(H+2*q,2)}, {v(CB+2*q,2)}, {v(SB+2*q,2)}")
            A.i(f"v_cvt_pk_bf16_f32 {v(Y+q)}, {v(H+2*q)}, {v(H+2*q+1)}")
        for hf in range(2):
            A.i(f"buffer_store_dwordx4 {v(Y+hf*4,4)}, v3, s[32:35], s61 offen offset:{hf*1024} {WT}")
        A.i("s_lshl_b32 s22, s21, 10")
        A.i(f"v_mov_b32 v8, {CNT}")
    def ln_signal(tag):
        arrive(tag, 20, 8, "s22", F_H2, vc=8, vt=9)
        if lazyx1:
            srd(A, 16, P_WS, 4*MB, WS['x1'])
            for hf in range(2):
                A.i(f"buffer_store_dwordx4 {v(X+hf*4,4)}, v3, s[16:19], s61 offen offset:{hf*1024} {WT}")
            A.i("s_mov_b32 s61, s22")
    def x1_signal(tag, vc, vt, wait="vmcnt(0)"):
        if lazyx1:
            A.i(f"v_mov_b32 {v(vc)}, {CNT}")
            arrive(tag, 32, 8, "s61", F_X1, vc=vc, vt=vt, wait=wait)

    def g1_ids():
        A.i("s_and_b32 s21, s2, 1")
        A.i("s_lshl_b32 s21, s21, 3")
        A.i("s_bfe_u32 s27, s2, 0x30003")
        A.i("s_add_u32 s21, s21, s27            ; sblk")
        A.i("s_bfe_u32 s22, s2, 0x20001")
        A.i("s_lshl_b32 s22, s22, 2")
        A.i("s_lshr_b32 s27, s2, 6")
        A.i("s_add_u32 s22, s22, s27            ; fblk")
    def g2_ids():
        A.i("s_and_b32 s52, s2, 1               ; khalf")
        A.i("s_bfe_u32 s21, s2, 0x20001")
        A.i("s_lshl_b32 s21, s21, 2")
        A.i("s_bfe_u32 s27, s2, 0x20003")
        A.i("s_add_u32 s21, s21, s27            ; sblk")
        A.i("s_lshr_b32 s22, s2, 5")

    A.i("s_mov_b32 s22, s63                ; channel d")
    A.i(f"s_mul_i32 s62, s20, {WB}")
    A.i("s_lshl_b32 s24, s22, 12           ; d*4096")
    if not hearly:
        srd(A, 16, P_SSM, 4*MB)
        for u in range(4):
            A.i(f"buffer_load_dwordx4 {v(HH+4*u,4)}, v3, s[16:19], s24 offen offset:{1024*u} {nt}")
    if earlysig:
        arrive(f"{N}_ak", 16, 8, "s23", F_KV, wait="vmcnt(0)" if hearly else "vmcnt(4)", fast="s39" if fastkv else None)
        mark(21)
    Hh, XR = HH, 16
    A.i("v_mov_b32 v32, 0"); A.i("v_mov_b32 v33, 0"); A.i("v_mov_b32 v34, 0"); A.i("v_mov_b32 v35, 0")

    A.i("v_add_u32 v4, s62, v3")
    A.i(f"ds_write_b128 v4, v[32:35] offset:{XO}")
    A.i("v_min_u32 v5, 25, v2")
    A.i("v_lshlrev_b32 v5, 4, v5")
    A.i("v_add_u32 v5, s62, v5")
    A.i(f"ds_write_b128 v5, v[32:35] offset:{XO+1024}")
    A.i("v_and_b32 v6, 15, v2              ; r / i")
    A.i("v_lshrrev_b32 v7, 4, v2           ; g")
    A.i("v_and_b32 v8, 3, v6")
    A.i(f"v_mul_u32_u24 v8, {HC}, v8")
    A.i("v_lshl_add_u32 v5, v7, 4, v8")
    A.i("v_add_u32 v5, s62, v5")
    A.i("ds_write_b128 v5, v[32:35]")
    A.i("v_lshrrev_b32 v5, 2, v2")
    A.i("v_mul_u32_u24 v5, 96, v5")
    A.i("v_and_b32 v9, 3, v2")
    A.i("v_lshl_add_u32 v5, v9, 4, v5")
    A.i("v_add_u32 v5, s62, v5")
    A.i("v_lshrrev_b32 v9, 2, v6")
    A.i("v_lshlrev_b32 v10, 1, v7")
    A.i("v_sub_u32 v9, v9, v10")
    A.i("v_add_u32 v9, 7, v9")
    A.i("v_lshl_add_u32 v8, v9, 3, v8")
    A.i("v_add_u32 v8, s62, v8             ; vA")
    A.i("v_mul_u32_u24 v9, 96, v6")
    A.i("v_lshl_add_u32 v9, v7, 4, v9")
    A.i(f"s_add_u32 s25, s62, {XO + 96*14}")
    A.i("v_add_u32 v9, s25, v9             ; vB - 96")
    ACC = 48
    FS = [80, 128]
    for r in range(32):
        A.i(f"v_mov_b32 {v(ACC+r)}, 0")
    DI = 36
    A.i("v_lshlrev_b32 v10, 3, v7")
    A.i("v_add_u32 v10, 7, v10")
    A.i("v_sub_u32 v10, v10, v6")
    A.i("v_and_b32 v11, 1, v10")
    A.i("v_lshlrev_b32 v11, 4, v11")
    A.i("v_ashrrev_i32 v10, 1, v10")
    A.i("s_and_b32 s25, s22, 1")
    A.i("s_lshl_b32 s25, s25, 4")
    A.i("s_lshr_b32 s82, s82, s25")
    A.i("s_and_b32 s82, s82, 0xffff")
    A.i("v_lshlrev_b32 v11, v11, s82")
    for rt in range(2):
        for q in range(4):
            A.i(f"v_cmp_eq_u32 s[{8+2*q}:{9+2*q}], {q + 8*rt}, v10")
        for q in range(4):
            A.i(f"v_cndmask_b32 {v(DI+4*rt+q)}, 0, v11, s[{8+2*q}:{9+2*q}]")
    if not earlysig:
        arrive(f"{N}_ak", 16, 8, "s23", F_KV, wait="vmcnt(0)" if hearly else "vmcnt(4)", fast="s39" if fastkv else None)
        mark(21)
    P, TT = 96, 100
    for u in range(4):
        R = Hh + 4*u
        p = P + 2*(u % 2)
        t = TT + 12*(u % 2)
        A.i(f"s_waitcnt vmcnt({3-u})")
        if u == 0:
            A.i(f"v_mov_b32 {v(p)}, 0"); A.i(f"v_mov_b32 {v(p+1)}, 0")
        else:
            A.i(f"v_mov_b32_dpp {v(p)}, {v(R-2)} wave_ror:1 row_mask:0xf bank_mask:0xf")
            A.i(f"v_mov_b32_dpp {v(p+1)}, {v(R-1)} wave_ror:1 row_mask:0xf bank_mask:0xf")
        A.i(f"ds_write_b128 v4, {v(R,4)} offset:{3*HC + 64 + 1024*u}")
        A.i(f"v_mov_b32_dpp {v(p)}, {v(R+2)} wave_shr:1 row_mask:0xf bank_mask:0xf")
        A.i(f"v_mov_b32_dpp {v(p+1)}, {v(R+3)} wave_shr:1 row_mask:0xf bank_mask:0xf")
        A.i(f"v_alignbit_b32 {v(t+5)}, {v(R+1)}, {v(R)}, 16")
        A.i(f"v_alignbit_b32 {v(t+6)}, {v(R+2)}, {v(R+1)}, 16")
        A.i(f"v_alignbit_b32 {v(t+7)}, {v(R+3)}, {v(R+2)}, 16")
        A.i(f"v_alignbit_b32 {v(t+4)}, {v(R)}, {v(p+1)}, 16")
        A.i(f"ds_write_b128 v4, {v(t+4,4)} offset:{2*HC + 64 + 1024*u}")
        A.i(f"v_mov_b32 {v(t)}, {v(p+1)}")
        for e in range(3): A.i(f"v_mov_b32 {v(t+1+e)}, {v(R+e)}")
        A.i(f"ds_write_b128 v4, {v(t,4)} offset:{1*HC + 64 + 1024*u}")
        A.i(f"v_alignbit_b32 {v(t+8)}, {v(p+1)}, {v(p)}, 16")
        for e in range(3): A.i(f"v_mov_b32 {v(t+9+e)}, {v(t+4+e)}")
        A.i(f"ds_write_b128 v4, {v(t+8,4)} offset:{64 + 1024*u}")
    mark(23)
    A.i("s_lshr_b32 s25, s21, 4")
    A.i("s_lshl_b32 s25, s25, 14")
    A.i(f"s_add_u32 s25, s25, {F_KV}")
    A.i("v_lshlrev_b32 v10, 10, v6")
    A.i("v_add_u32 v10, s25, v10")
    srd(A, 28, P_WS, 4*MB, WS['kvT'])
    if fastkv:
        A.i("s_lshr_b32 s25, s21, 4")
        A.i("s_lshl_b32 s25, s25, 11")
        A.i(f"s_add_u32 s25, s25, {F_KVF}")
        A.i("v_lshlrev_b32 v11, 7, v6")
        A.i("v_add_u32 v11, s25, v11")
        poll2(A, f"{N}_pk", 10, 11, 12)
    else:
        poll(A, f"{N}_pk", 10)
    mark(22)
    for u in range(4):
        A.i(f"buffer_load_dwordx4 {v(XR+4*u,4)}, v3, s[28:31], s24 offen offset:{1024*u} {WT}")
    xrow_load()
    A.i("v_mov_b32 v15, 1")
    A.i("ds_add_u32 v14, v15 offset:8")
    for u in range(4):
        A.i(f"s_waitcnt vmcnt({5-u})")
        A.i(f"ds_write_b128 v5, {v(XR+4*u,4)} offset:{XO + 96*15 + 96*16*u}")
    A.i("s_waitcnt lgkmcnt(0)")
    mark(0)
    def creads(fs, par):
        out = []
        F = FS[fs]
        def ar(j):
            for rt in range(2):
                for hb in range(2):
                    out.append(f"ds_read_b64 {v(F+(j*2+rt)*4+2*hb,2)}, v8 offset:{64*(par+16*j) + 32*rt + 8*hb}")
        ar(0)
        for d in range(4):
            out.append(f"ds_read_b128 {v(F+32+4*d,4)}, v9 offset:{96*(16*d + 1 - par)}")
        for j in range(1,4): ar(j)
        return out
    def cbody(fs, side):
        F = FS[fs]
        side = list(side)
        n = 0
        for j in range(4):
            A.i("s_waitcnt lgkmcnt(12)" if n == 0 else "s_waitcnt lgkmcnt(15)")
            for d in range(4-j):
                for rt in range(2):
                    ac = ACC + ((j+d)*2+rt)*4
                    A.i(f"v_mfma_f32_16x16x32_bf16 {v(ac,4)}, {v(F+(j*2+rt)*4,4)}, {v(F+32+4*d,4)}, {v(ac,4)}")
                    if side: A.i(side.pop(0))
                    n += 1
        for x in side: A.i(x)
    for x in creads(0, 0): A.i(x)
    A.i("s_waitcnt lgkmcnt(12)")
    for d in range(4):
        for rt in range(2):
            ac = ACC + (d*2+rt)*4
            A.i(f"v_mfma_f32_16x16x32_bf16 {v(ac,4)}, {v(DI+4*rt,4)}, {v(FS[0]+32+4*d,4)}, {v(ac,4)}")
    A.i("s_mov_b32 s26, 8")
    A(".p2align 6")
    A.label(f"{N}_cv")
    cbody(0, creads(1, 1))
    A.i("v_add_u32 v8, 128, v8")
    A.i("v_subrev_u32 v9, 192, v9")
    cbody(1, creads(0, 0))
    A.i("s_sub_u32 s26, s26, 1")
    A.i("s_cmp_lg_u32 s26, 0")
    A.i(f"s_cbranch_scc1 {N}_cv")
    A.i("v_mul_u32_u24 v10, 80, v6")
    A.i("v_lshl_add_u32 v10, v7, 3, v10")
    A.i("v_add_u32 v10, s62, v10")
    srd(A, 16, P_WS, 4*MB, WS['y4'])
    A.i("s_waitcnt lgkmcnt(0)")
    for G in range(4):
        for rt in range(2):
            ac = ACC + (G*2+rt)*4
            d = 16 + (G*2+rt)*2
            A.i(f"v_cvt_pk_bf16_f32 {v(d)}, {v(ac)}, {v(ac+1)}")
            A.i(f"v_cvt_pk_bf16_f32 {v(d+1)}, {v(ac+2)}, {v(ac+3)}")
            A.i(f"ds_write_b64 v10, {v(d,2)} offset:{80*16*G + 32*rt}")
    A.i("v_lshrrev_b32 v11, 4, v0")
    A.i("v_mul_u32_u24 v11, 80, v11")
    A.i("v_lshl_add_u32 v11, v6, 2, v11")
    A.i(f"v_add_u32 v13, {3*WB}, v11")
    A.i("v_lshlrev_b32 v12, 4, v0")
    A.i("s_lshl_b32 s25, s21, 14")
    A.i("s_mov_b32 s34, 0x05040100")
    A.i("s_mov_b32 s35, 0x07060302")
    A.i("s_waitcnt lgkmcnt(0)")
    mark(1)
    A.i("v_mov_b32 v15, 1")
    A.i("ds_add_u32 v14, v15")
    A.label(f"{N}_ys")
    A.i("ds_read_b32 v15, v14")
    A.i("s_waitcnt lgkmcnt(0)")
    A.i("v_cmp_ne_u32 vcc, 256, v15")
    A.i("s_nop 1")
    A.i(f"s_cbranch_vccnz {N}_ys")
    mark(12)
    for u in range(4):
        for ch in range(4):
            if ch < 3: A.i(f"ds_read_b32 {v(48+4*u+ch)}, v11 offset:{ch*WB + 80*16*u}")
            else:      A.i(f"ds_read_b32 {v(48+4*u+ch)}, v13 offset:{80*16*u}")
    for u in range(4):
        A.i(f"s_waitcnt lgkmcnt({12-4*u})")
        s0 = 48+4*u; d = 64+4*u
        A.i(f"v_perm_b32 {v(d)}, {v(s0+1)}, {v(s0)}, s34")
        A.i(f"v_perm_b32 {v(d+1)}, {v(s0+3)}, {v(s0+2)}, s34")
        A.i(f"v_perm_b32 {v(d+2)}, {v(s0+1)}, {v(s0)}, s35")
        A.i(f"v_perm_b32 {v(d+3)}, {v(s0+3)}, {v(s0+2)}, s35")
        A.i(f"s_add_u32 s26, s25, {4096*u}")
        A.i(f"buffer_store_dwordx4 {v(d,4)}, v12, s[16:19], s26 offen {WT}")
    mark(13)
    A.i("s_lshl_b32 s22, s2, 10")
    arrive(f"{N}_ay", 28, 4, "s22", F_BAR)
    mark(2)
    A.i("s_mov_b32 s27, 0xffff0000")
    ln_pre(96)
    A.i("v_lshrrev_b32 v4, 4, v2")
    A.i("v_xor_b32 v4, v4, v2")
    A.i("v_and_b32 v4, 3, v4")
    A.i("v_lshlrev_b32 v4, 4, v4")
    A.i("v_lshrrev_b32 v5, 2, v2")
    A.i("v_lshl_add_u32 v4, v5, 14, v4")
    A.i("s_lshl_b32 s23, s21, 6")
    A.i("s_lshl_b32 s24, s20, 20")
    A.i("s_add_u32 s23, s23, s24")
    srd(A, 12, P_WS, 4*MB, WS['y4'])
    A.i("s_lshl_b32 s24, s20, 12")
    A.i(f"s_add_u32 m0, s24, {LNY}")
    A.i("s_cmp_lg_u32 s20, 0")
    A.i(f"s_cbranch_scc1 {N}_gw")
    A.i(f"v_mov_b32 v13, s{SV}")
    A.i("v_lshlrev_b32 v12, 10, v2")
    A.i(f"v_add_u32 v12, {F_BAR}, v12")
    poll_all(A, f"{N}_pg", 12, 4, cnt=39)
    A.i("v_mov_b32 v15, 1")
    A.i("ds_write_b32 v14, v15 offset:36")
    A.i(f"s_branch {N}_gx")
    A.label(f"{N}_gw")
    A.i("ds_read_b32 v15, v14 offset:36")
    A.i("s_waitcnt lgkmcnt(0)")
    A.i("v_cmp_ne_u32 vcc, 1, v15")
    A.i("s_nop 1")
    A.i(f"s_cbranch_vccnz {N}_gw")
    A.label(f"{N}_gx")
    mark(14)
    for e in range(4):
        A.i(f"buffer_load_dwordx4 v4, s[12:15], s23 offen {WT} lds")
        A.i("s_add_u32 m0, m0, 1024")
        A.i("s_add_u32 s23, s23, 0x40000")
    A.i("s_or_b32 s24, s2, s20")
    A.i("s_cmp_lg_u32 s24, 0")
    A.i(f"s_cbranch_scc1 {N}_gb")
    A.i(f"v_mov_b32 v12, {F_NONCE}")
    A.i(f"buffer_store_dword v13, v12, s[{FL}:{FL+3}], 0 offen {WT}")
    A.label(f"{N}_gb")
    ln_main(False)
    ACC = 128
    FS = [16, 60]
    vXb0, vXb1, vWb0, vWb1 = 4, 5, 6, 7
    vX0, vX1, vW0, vW1 = 104, 105, 106, 107
    A.i("s_and_b32 s28, s20, 1              ; ws")
    A.i("s_lshr_b32 s29, s20, 1             ; wf")
    A.i("v_and_b32 v110, 15, v2             ; n")
    A.i("v_lshrrev_b32 v12, 4, v2           ; g")
    A.i("v_and_b32 v13, 7, v110")
    A.i("v_xor_b32 v13, v13, v12")
    A.i("v_lshlrev_b32 v13, 4, v13")
    A.i("s_lshl_b32 s27, s28, 13")
    A.i(f"s_add_u32 s27, s27, {G1X}")
    A.i(f"v_lshl_add_u32 {v(vXb0)}, v110, 7, v13")
    A.i(f"v_add_u32 {v(vXb0)}, s27, {v(vXb0)}")
    A.i(f"v_xor_b32 {v(vXb1)}, 64, {v(vXb0)}")
    A.i("v_lshrrev_b32 v13, 2, v110")
    A.i("v_lshl_add_u32 v13, v12, 3, v13")
    A.i("v_mul_u32_u24 v13, 448, v13")
    A.i("v_and_b32 v14, 3, v2")
    A.i("v_lshl_add_u32 v13, v14, 3, v13")
    A.i("s_mul_i32 s27, s29, 224")
    A.i("v_add_u32 v13, s27, v13")
    A.i("v_and_b32 v14, 1, v12")
    A.i("v_lshlrev_b32 v14, 5, v14")
    A.i(f"v_add_u32 {v(vWb0)}, v13, v14")
    A.i(f"v_sub_u32 {v(vWb1)}, v13, v14")
    A.i("s_cmp_eq_u32 s29, 0")
    A.i(f"s_cbranch_scc1 {N}_noswap")
    A.i(f"v_swap_b32 {v(vWb0)}, {v(vWb1)}")
    A.label(f"{N}_noswap")
    for r in range(32, 112):
        A.i(f"v_mov_b32 {v(ACC+r)}, 0")
    mark(19)
    ln_signal(f"{N}_ah")
    mark(4)
    for r in range(32):
        A.i(f"v_mov_b32 {v(ACC+r)}, 0")
    g1_ids()
    srd(A, 16, P_WS, 2048*3584*2, WS['act'])
    def g1reads(fs, kk):
        out = []
        Xr, W = FS[fs], FS[fs] + 16
        vx = vX0 if kk == 0 else vX1
        def wr(t):
            for hb in range(2):
                out.append(f"ds_read_b64_tr_b16 {v(W+4*t+2*hb,2)}, {v(vW0 if t%2==0 else vW1)} offset:{(32*kk+4*hb)*448 + 32*t}")
        wr(0)
        for st in range(4):
            out.append(f"ds_read_b128 {v(Xr+4*st,4)}, {v(vx)} offset:{st*2048}")
        for t in range(1, 7): wr(t)
        return out
    def g1phase(fs, side):
        Xr, W = FS[fs], FS[fs] + 16
        side = list(side)
        for t in range(7):
            for st in range(4):
                ac = ACC + (t*4+st)*4
                A.i(f"v_mfma_f32_16x16x32_bf16 {v(ac,4)}, {v(W+4*t,4)}, {v(Xr+4*st,4)}, {v(ac,4)}")
                if side: A.i(side.pop(0))
        for x in side: A.i(x)
    A.i("s_mov_b32 s26, 0")
    A.i("s_mov_b32 s24, 0")
    A.i(f"v_mov_b32 {v(vX0)}, {v(vXb0)}")
    A.i(f"v_mov_b32 {v(vX1)}, {v(vXb1)}")
    A.i(f"v_mov_b32 {v(vW0)}, {v(vWb0)}")
    A.i(f"v_mov_b32 {v(vW1)}, {v(vWb1)}")
    A.i("s_mov_b32 s23, 16")
    x1_signal(f"{N}_ax", 8, 9)
    A.i("s_barrier                          ; G1 B0")
    mark(5)
    for x in g1reads(0, 0): A.i(x)
    A(".p2align 6")
    A.label(f"{N}_g1c")
    A.i("s_waitcnt lgkmcnt(0)")
    nxt = ["s_add_u32 s26, s26, 28672", "s_add_u32 s24, s24, 16384", "s_cmp_eq_u32 s24, 49152",
           "s_cselect_b32 s26, 0, s26", "s_cselect_b32 s24, 0, s24",
           f"v_add_u32 {v(vX0)}, s24, {v(vXb0)}", f"v_add_u32 {v(vW0)}, s26, {v(vWb0)}",
           f"v_add_u32 {v(vW1)}, s26, {v(vWb1)}", f"v_add_u32 {v(vX1)}, s24, {v(vXb1)}"]
    g1phase(0, g1reads(1, 1) + nxt)
    A.i("s_waitcnt lgkmcnt(0)")
    A.i("s_barrier")
    g1phase(1, g1reads(0, 0) + ["s_sub_u32 s23, s23, 1", "s_cmp_lg_u32 s23, 0"])
    A.i(f"s_cbranch_scc1 {N}_g1c")
    mark(6)
    A.i("s_lshl_b32 s27, s21, 3")
    A.i("s_lshl_b32 s30, s28, 2")
    A.i("s_add_u32 s27, s27, s30")
    A.i("s_mul_i32 s27, s27, 112")
    A.i("s_mul_i32 s30, s22, 7")
    A.i("s_add_u32 s27, s27, s30")
    A.i("s_lshl_b32 s27, s27, 10")
    A.i("v_and_b32 v13, 1, v12")
    A.i("v_lshrrev_b32 v14, 1, v12")
    A.i("v_lshl_or_b32 v13, v13, 1, v14     ; pi(g)")
    A.i("v_lshlrev_b32 v108, 4, v13")
    A.i("v_lshlrev_b32 v13, 8, v13")
    A.i("v_lshl_add_u32 v13, v110, 4, v13")
    A.i("v_lshlrev_b32 v14, 8, v14")
    A.i("v_lshl_add_u32 v14, v110, 4, v14")
    A.i("v_and_b32 v15, 1, v12")
    A.i(f"v_mul_u32_u24 v15, {112*1024}, v15")
    A.i("v_add_u32 v14, v15, v14")
    A.i(f"s_mov_b32 s32, 0x{LOG2E ^ 0x80000000:x}")
    A.i("s_waitcnt lgkmcnt(0)")
    def silu4(dst, ac, tmp):
        A.i(f"v_pk_mul_f32 {v(tmp,2)}, {v(ac,2)}, s[32:33] op_sel_hi:[1,0]")
        A.i(f"v_pk_mul_f32 {v(tmp+2,2)}, {v(ac+2,2)}, s[32:33] op_sel_hi:[1,0]")
        for r in range(4): A.i(f"v_exp_f32 {v(tmp+r)}, {v(tmp+r)}")
        A.i(f"v_pk_add_f32 {v(tmp,2)}, {v(tmp,2)}, 1.0 op_sel_hi:[1,0]")
        A.i(f"v_pk_add_f32 {v(tmp+2,2)}, {v(tmp+2,2)}, 1.0 op_sel_hi:[1,0]")
        for r in range(4): A.i(f"v_rcp_f32 {v(tmp+r)}, {v(tmp+r)}")
        A.i(f"v_pk_mul_f32 {v(tmp,2)}, {v(tmp,2)}, {v(ac,2)}")
        A.i(f"v_pk_mul_f32 {v(tmp+2,2)}, {v(tmp+2,2)}, {v(ac+2,2)}")
        A.i(f"v_cvt_pk_bf16_f32 {v(dst)}, {v(tmp)}, {v(tmp+1)}")
        A.i(f"v_cvt_pk_bf16_f32 {v(dst+1)}, {v(tmp+2)}, {v(tmp+3)}")
    def ebody(wf):
        pairs = [(0,0),(2,1),(4,2)] if wf == 0 else [(1,4),(3,5),(5,6)]
        single = 6 if wf == 0 else 0
        cnt = 0
        for st in range(4):
            A.i(f"s_add_u32 s30, s27, {st*112*1024}")
            for (t, blk) in pairs:
                d = 16 + (cnt % 4) * 4
                cnt += 1
                silu4(d, ACC + (t*4+st)*4, 40)
                silu4(d+2, ACC + ((t+1)*4+st)*4, 44)
                A.i("s_nop 1")
                A.i(f"v_permlane16_swap_b32 {v(d)}, {v(d+2)}")
                A.i(f"v_permlane16_swap_b32 {v(d+1)}, {v(d+3)}")
                A.i(f"buffer_store_dwordx4 {v(d,4)}, {'v13' if blk < 4 else 'v15'}, s[16:19], s30 offen offset:{(blk%4)*1024} {WT}")
            if st % 2 == 0:
                d = 32 + (st // 2) * 4
                silu4(d, ACC + (single*4+st)*4, 40)
                silu4(d+2, ACC + (single*4+st+1)*4, 44)
                A.i("s_nop 1")
                A.i(f"v_permlane16_swap_b32 {v(d)}, {v(d+2)}")
                A.i(f"v_permlane16_swap_b32 {v(d+1)}, {v(d+3)}")
                A.i(f"buffer_store_dwordx4 {v(d,4)}, v14, s[16:19], s30 offen offset:{3*1024 + wf*512} {WT}")
    A.i("v_add_u32 v15, 4096, v13")
    A.i("s_cmp_eq_u32 s29, 0")
    A.i(f"s_cbranch_scc0 {N}_epi1")
    ebody(0)
    A.i(f"s_branch {N}_epi2")
    A.label(f"{N}_epi1")
    ebody(1)
    A.label(f"{N}_epi2")
    mark(7)
    A.i("s_lshl_b32 s62, s21, 4")
    A.i("s_add_u32 s62, s62, s22")
    A.i("s_lshl_b32 s62, s62, 10")

    FS = [16, 48]
    vXb, vWb = 12, 13
    vX, vW = 4, 8
    X1, GB = 96, 112
    g2_ids()
    A.i("v_lshl_add_u32 v81, v110, 11, v108")
    A.i("s_lshl_b32 s30, s21, 1")
    A.i("s_add_u32 s30, s30, s28")
    A.i("s_lshl_b32 s30, s30, 17")
    A.i("s_lshl_b32 s31, s22, 1")
    A.i("s_add_u32 s31, s31, s29")
    A.i("s_lshl_b32 s31, s31, 1")
    A.i("s_add_u32 s31, s31, s52")
    A.i("s_lshl_b32 s31, s31, 6")
    A.i("s_add_u32 s30, s30, s31")
    A.i("s_lshl_b32 s31, s31, 1")
    A.i(f"s_add_u32 s31, s31, {5*4096}")
    A.i("v_lshrrev_b32 v14, 4, v2           ; g")
    A.i("v_lshrrev_b32 v80, 2, v110")
    A.i("v_lshl_add_u32 v82, v14, 3, v80")
    A.i("v_and_b32 v83, 1, v14")
    A.i("v_xor_b32 v83, s29, v83")
    A.i("v_lshl_or_b32 v80, v83, 2, v80")
    A.i("v_lshlrev_b32 v80, 5, v80")
    A.i("v_and_b32 v83, 3, v2")
    A.i("v_lshl_add_u32 v80, v83, 3, v80")
    A.i(f"v_lshl_add_u32 {v(vWb)}, v82, 8, v80")
    A.i("s_lshl_b32 s27, s52, 6")
    A.i(f"v_xor_b32 {v(vWb)}, s27, {v(vWb)}")
    A.i("s_lshl_b32 s27, s28, 13")
    A.i(f"s_add_u32 s27, s27, {G2X}")
    A.i(f"v_add_u32 {v(vXb)}, s27, v3")
    A.i("v_mov_b32 v83, 0")
    A.i(f"v_mov_b32 v94, s{SV}")
    A.i(f"v_mov_b32 v92, {CNT}")
    arrive(f"{N}_aa", 24, 4, "s62", F_ACT, vc=92, vt=93)
    mark(8)
    for r in range(64):
        A.i(f"v_mov_b32 {v(ACC+r)}, 0")
    def g2addr():
        out = ["s_add_u32 s26, s26, 16384", "s_and_b32 s26, s26, 0xffff",
               f"v_add_u32 {v(vW)}, s26, {v(vWb)}", f"v_add_u32 {v(vX)}, s26, {v(vXb)}"]
        for t in range(1, 4):
            out.append(f"v_xor_b32 {v(vW+t)}, {32*t}, {v(vW)}")
        return out
    def g2reads(fs, kk):
        out = []
        Xr, W = FS[fs], FS[fs] + 16
        def wr(t):
            for hb in range(2):
                out.append(f"ds_read_b64_tr_b16 {v(W+4*t+2*hb,2)}, {v(vW+t)} offset:{kk*8192 + hb*1024}")
        wr(0)
        for st in range(4):
            out.append(f"ds_read_b128 {v(Xr+4*st,4)}, {v(vX)} offset:{st*2048 + kk*1024}")
        for t in range(1, 4): wr(t)
        return out
    def g2phase(fs, side):
        Xr, W = FS[fs], FS[fs] + 16
        side = list(side)
        n = 0
        for t in range(4):
            for st in range(4):
                ac = ACC + (t*4+st)*4
                A.i(f"v_mfma_f32_16x16x32_bf16 {v(ac,4)}, {v(W+4*t,4)}, {v(Xr+4*st,4)}, {v(ac,4)}")
                n += 1
                for _ in range(1 if n <= 12 else 2):
                    if side: A.i(side.pop(0))
        for x in side: A.i(x)
    A.i("s_mov_b32 s26, 49152")
    for x in g2addr(): A.i(x)
    srd(A, 8, P_WS, 4*MB, WS['x1'])
    srd(A, 12, P_WS, 2*24576, WS['mod'])
    srd(A, 16, P_OUT, 4*MB)
    A.i("v_lshlrev_b32 v15, 1, v108")
    A.i(f"s_add_u32 s25, s31, 24576")
    A.i("s_mov_b32 s23, 28")
    A.i("s_barrier                          ; G2 B0")
    mark(9)
    for x in g2reads(0, 0): A.i(x)
    for st in range(4):
        A.i(f"s_add_u32 s{32+st}, s30, {st*16*2048}")
        A.i(f"buffer_load_dwordx4 {v(X1+4*st,4)}, v81, s[8:11], s{32+st} offen {WT}")
    for h in range(2):
        for e in range(2):
            A.i(f"buffer_load_dwordx4 {v(GB+8*h+4*e,4)}, v15, s[12:15], {'s31' if h==0 else 's25'} offen offset:{16*e} {WT}")
    srd(A, 8, P_WS, 4*MB, WS['xch'])
    A(".p2align 6")
    A.label(f"{N}_g2c")
    A.i("s_waitcnt lgkmcnt(0)")
    g2phase(0, g2reads(1, 1) + g2addr())
    A.i("s_waitcnt lgkmcnt(0)")
    A.i("s_barrier")
    g2phase(1, g2reads(0, 0) + ["s_sub_u32 s23, s23, 1", "s_cmp_lg_u32 s23, 0"])
    A.i(f"s_cbranch_scc1 {N}_g2c")
    mark(10)
    A.i("s_lshl_b32 s27, s2, 2")
    A.i("s_add_u32 s27, s27, s20")
    A.i("s_xor_b32 s36, s27, 4")
    A.i("s_lshl_b32 s53, s27, 12")
    A.i("s_lshl_b32 s54, s36, 12")
    A.i("s_lshl_b32 s63, s2, 10")
    A.i("s_lshl_b32 s27, s20, 7")
    A.i("s_add_u32 s63, s63, s27")
    A.i("s_xor_b32 s27, s63, 1024")
    A.i("v_mov_b32 v82, s27")
    A.i("s_mov_b32 s27, 0xffff0000")
    A.i("s_waitcnt vmcnt(0) lgkmcnt(0)")
    send, keep = ACC + 32, ACC
    for st in range(4):
        d, a2 = send + st*4, send + 16 + st*4
        A.i(f"v_cvt_pk_bf16_f32 {v(d)}, {v(d)}, {v(d+1)}")
        A.i(f"v_cvt_pk_bf16_f32 {v(d+1)}, {v(d+2)}, {v(d+3)}")
        A.i(f"v_cvt_pk_bf16_f32 {v(d+2)}, {v(a2)}, {v(a2+1)}")
        A.i(f"v_cvt_pk_bf16_f32 {v(d+3)}, {v(a2+2)}, {v(a2+3)}")
        A.i("s_nop 1")
        A.i(f"v_permlane16_swap_b32 {v(d)}, {v(d+2)}")
        A.i(f"v_permlane16_swap_b32 {v(d+1)}, {v(d+3)}")
        A.i(f"buffer_store_dwordx4 {v(d,4)}, v3, s[8:11], s53 offen offset:{1024*st} {WT}")
    for q in range(4):
        A.i(f"v_pk_add_f32 {v(84+2*q,2)}, {v(GB+2*q,2)}, {v(GB+8+2*q,2)}")
        A.i(f"v_cvt_pk_bf16_f32 v92, {v(84+2*q)}, {v(85+2*q)}")
        A.i(f"v_lshlrev_b32 {v(84+2*q)}, 16, v92")
        A.i(f"v_and_b32 {v(85+2*q)}, s27, v92")
    def base(st):
        p, q = keep + st*4, keep + 16 + st*4
        for r in range(4):
            A.i(f"v_permlane16_swap_b32 {v(p+r)}, {v(q+r)}")
        for hh in range(4):
            src = (p if hh < 2 else q) + 2*(hh % 2)
            t = 32 + 2*(hh % 2)
            A.i(f"v_lshlrev_b32 {v(t)}, 16, {v(X1+4*st+hh)}")
            A.i(f"v_and_b32 {v(t+1)}, s27, {v(X1+4*st+hh)}")
            A.i(f"v_pk_fma_f32 {v(src,2)}, {v(src,2)}, {v(84+2*hh,2)}, {v(t,2)}")
    base(0); base(1)
    A.i("s_waitcnt vmcnt(0)")
    mark(62)
    A.i("s_mov_b64 exec, 1")
    A.i(f"buffer_store_dword v94, off, s[{FL}:{FL+3}], s63 {WT}")
    A.i("s_mov_b64 exec, -1")
    base(2); base(3)
    poll(A, f"{N}_px", 82, vt=95)
    mark(11)
    for st in range(4):
        A.i(f"buffer_load_dwordx4 {v(16+4*st,4)}, v3, s[8:11], s54 offen offset:{1024*st} {WT}")
    for st in range(4):
        p, q = keep + st*4, keep + 16 + st*4
        A.i("s_waitcnt vmcnt(3)")
        for hh in range(4):
            src = (p if hh < 2 else q) + 2*(hh % 2)
            t = 32 + 2*(hh % 2)
            A.i(f"v_lshlrev_b32 {v(t)}, 16, {v(16+4*st+hh)}")
            A.i(f"v_and_b32 {v(t+1)}, s27, {v(16+4*st+hh)}")
            A.i(f"v_pk_fma_f32 {v(t,2)}, {v(t,2)}, {v(84+2*hh,2)}, {v(src,2)}")
            A.i(f"v_cvt_pk_bf16_f32 {v(X1+4*st+hh)}, {v(t)}, {v(t+1)}")
        A.i(f"buffer_store_dwordx4 {v(X1+4*st,4)}, v81, s[16:19], s{32+st} offen {outf}")
    A.label(f"{N}_fin")
    if ts and tsw < 4 and spin is None: ts_end(A, N, P_WS, tsw)
    if spin is not None:
        A.i("s_waitcnt vmcnt(0)")
        A.i("s_memrealtime s[42:43]")
        A.i("s_waitcnt lgkmcnt(0)")
        A.i(f"s_cmp_lg_u32 s2, {spin[1]}")
        A.i(f"s_cbranch_scc1 {N}_done")
        A.i("s_cmp_lg_u32 s20, 0")
        A.i(f"s_cbranch_scc1 {N}_done")
        src = {-1: "s40", -2: "s42"}.get(spin[0], "s84")
        A.i(f"s_sub_u32 s46, {src}, s40")
        A.i("s_min_u32 s46, s46, 10000")
        A.i("s_mul_i32 s46, s46, 2")
        A.i("s_add_u32 s46, s46, 1000")
        A.i("s_add_u32 s46, s46, s42")
        A.label(f"{N}_spin")
        A.i("s_memrealtime s[44:45]")
        A.i("s_waitcnt lgkmcnt(0)")
        A.i("s_sub_u32 s45, s46, s44")
        A.i("s_cmp_gt_i32 s45, 0")
        A.i(f"s_cbranch_scc1 {N}_spin")
    A.i("s_endpgm")

    def l_epilogue():
        pass
    def l_pre(xw):
        A.i("v_lshrrev_b32 v166, 3, v2")
        A.i("v_and_b32 v175, 7, v2")
        A.i("v_xor_b32 v175, v175, v166")
        A.i("v_lshlrev_b32 v175, 4, v175")
        A.i("v_lshl_add_u32 v175, v166, 11, v175")
        A.i("s_mul_i32 s52, s63, 448")
        A.i("v_add_u32 v162, s52, v2")
        A.i("s_movk_i32 s52, 2341")
        A.i("s_movk_i32 s53, 7168")
        for q in range(7):
            A.i(f"v_add_u32 v163, {64*q}, v162")
            A.i("v_mul_u32_u24 v164, s52, v163")
            A.i("v_lshrrev_b32 v164, 16, v164")
            A.i("v_mul_u32_u24 v165, 28, v164")
            A.i("v_sub_u32 v163, v163, v165")
            A.i("v_bfe_u32 v165, v164, 3, 1")
            A.i("v_lshlrev_b32 v165, 1, v165")
            A.i("v_xor_b32 v163, v163, v165")
            A.i("v_mul_u32_u24 v164, s53, v164")
            A.i(f"v_lshl_add_u32 {v(168+q)}, v163, 4, v164")
        pass
    A.label(f"{N}_L")
    for u in range(2):
        A.i(f"buffer_load_dwordx4 {v(CR+4*u,4)}, {v(vCO)}, s[28:31], s37 offen offset:{16*u}")
    stream(E1, E1+E2)
    arrive(f"{N}_ak2", 16, 8, "s23", F_KV, wait=f"vmcnt({2+E2})", fast="s39" if fastkv else None)
    A.i("s_cmp_ge_u32 s2, 192")
    A.i(f"s_cbranch_scc1 {N}_Lidle")
    S = 32
    A.i(f"s_mov_b32 s39, 0x{LOG2E ^ 0x80000000:x}")
    A.i(f"s_waitcnt vmcnt({E2})")
    for q in range(8):
        A.i(f"v_lshlrev_b32 {v(S+4*q)}, 16, {v(CR+q)}")
        A.i(f"v_and_b32 {v(S+4*q+2)}, s27, {v(CR+q)}")
    for q in range(8):
        x0, x1 = S+4*q, S+4*q+2
        A.i(f"v_mul_f32 v8, s39, {v(x0)}")
        A.i(f"v_mul_f32 v9, s39, {v(x1)}")
        A.i("v_exp_f32 v8, v8"); A.i("v_exp_f32 v9, v9")
        A.i("s_nop 0")
        A.i("v_add_f32 v8, 1.0, v8"); A.i("v_add_f32 v9, 1.0, v9")
        A.i("v_rcp_f32 v8, v8"); A.i("v_rcp_f32 v9, v9")
        A.i("s_nop 0")
        A.i(f"v_mul_f32 v8, v8, {v(x0)}"); A.i(f"v_mul_f32 v9, v9, {v(x1)}")
        A.i("v_cvt_pk_bf16_f32 v8, v8, v9")
        A.i(f"v_lshlrev_b32 {v(x0)}, 16, v8")
        A.i(f"v_and_b32 {v(x1)}, s27, v8")
    AC = 16
    for r in range(8): A.i(f"v_mov_b32 {v(AC+r)}, 0")
    def fma_rows(j0, j1, later):
        for j in range(j0, j1):
            A.i(f"s_waitcnt vmcnt({later(j)})")
            for q in range(4):
                t = 8 + 2*(q % 2)
                A.i(f"v_lshlrev_b32 {v(t)}, 16, {v(SD+4*j+q)}")
                A.i(f"v_and_b32 {v(t+1)}, s27, {v(SD+4*j+q)}")
                A.i(f"v_pk_fma_f32 {v(AC+2*q,2)}, {v(t,2)}, {v(S+2*j,2)}, {v(AC+2*q,2)} op_sel_hi:[1,0,1]")
    fma_rows(0, E1+E2, lambda j: min(E2, E1+E2-1-j))
    l_pre(0)
    page_touch(f"{N}_pt1")
    mark(30)
    gate(f"{N}_gk")
    mark(31)
    xrow_load()
    stream(E1+E2, 16)
    code_touch(f"{N}_ct1")
    def conv_wait(tag, need):
        A.label(tag)
        A.i("s_sleep 2")
        A.i("ds_read_b32 v15, v14")
        A.i("s_waitcnt lgkmcnt(0)")
        A.i(f"v_cmp_gt_u32 vcc, {need}, v15")
        A.i("s_nop 1")
        A.i(f"s_cbranch_vccnz {tag}")
    if defer == 2: conv_wait(f"{N}_cw", 64)
    A.i(f"s_waitcnt vmcnt({16-E1-E2})")
    ln_pre(64)
    if defer == 1: conv_wait(f"{N}_cw", 64)
    mark(32)
    if prio: A.i(f"s_setprio {prio}")
    fma_rows(E1+E2, 16, lambda j: 15-j)
    mark(33)
    A.i("s_nop 1")
    for r in range(8):
        A.i(f"v_add_f32_dpp {v(AC+r)}, {v(AC+r)}, {v(AC+r)} row_ror:8 row_mask:0xf bank_mask:0xf")
    for sw in ("v_permlane16_swap_b32", "v_permlane32_swap_b32"):
        for r in range(8): A.i(f"v_mov_b32 {v(24+r)}, {v(AC+r)}")
        for r in range(8): A.i(f"{sw} {v(AC+r)}, {v(24+r)}")
        for r in range(8): A.i(f"v_add_f32 {v(AC+r)}, {v(AC+r)}, {v(24+r)}")
    A.i("s_lshl_b32 s25, s63, 8")
    A.i(f"s_add_u32 s25, s25, {GP}")
    A.i("v_and_b32 v8, 7, v2")
    A.i("v_lshlrev_b32 v8, 5, v8")
    A.i("v_add_u32 v8, s25, v8")
    A.i(f"ds_write_b128 v8, {v(AC,4)}")
    A.i(f"ds_write_b128 v8, {v(AC+4,4)} offset:16")
    A.i(f"v_mov_b32 v9, {CNT+4}")
    A.i("v_mov_b32 v10, 1")
    A.i("s_waitcnt lgkmcnt(0)")
    A.i("ds_add_rtn_u32 v10, v9, v10")
    A.i("s_waitcnt lgkmcnt(0)")
    A.i("v_cmp_le_u32 vcc, 192, v10")
    A.i("s_nop 1")
    A.i(f"s_cbranch_vccz {N}_Lj")
    A.i("v_lshlrev_b32 v8, 2, v2")
    A.i(f"v_add_u32 v9, {GP}, v8")
    for p in range(4):
        A.i(f"ds_read_b32 {v(16+p)}, v9 offset:{256*p}")
    srd(A, 16, P_WS, 2*24576, WS['mod'])
    A.i("s_and_b32 s25, s2, 1")
    A.i("s_mul_i32 s25, s25, 24576")
    A.i("s_lshl_b32 s26, s36, 8")
    A.i("s_add_u32 s25, s25, s26")
    A.i("s_waitcnt lgkmcnt(0)")
    A.i("v_add_f32 v16, v16, v17")
    A.i("v_add_f32 v18, v18, v19")
    A.i("v_add_f32 v16, v16, v18")
    A.i(f"buffer_store_dword v16, v8, s[16:19], s25 offen {WT}")
    A.i("s_lshl_b32 s25, s2, 7")
    A.i(f"s_add_u32 s25, s25, {F_MOD}")
    A.i("s_waitcnt vmcnt(0)")
    A.i("s_mov_b64 exec, 1")
    A.i(f"buffer_store_dword v13, off, s[{FL}:{FL+3}], s25 {WT}")
    A.i("s_mov_b64 exec, -1")
    A.i(f"s_branch {N}_Lj")
    A.label(f"{N}_Lidle")
    l_pre(0)
    page_touch(f"{N}_pt2")
    gate(f"{N}_gk2")
    xrow_load()
    code_touch(f"{N}_ct2")
    A.i("s_waitcnt vmcnt(0)")
    ln_pre(64)
    if pw1:
        srd(A, 12, P_W1, D1*64*7168)
        A.i("s_sub_u32 s30, s2, 192")
        A.i("s_lshl_b32 s30, s30, 2")
        A.i("s_add_u32 s30, s30, s63")
        A.i(f"s_mul_i32 s30, s30, {D1*14*128}")
        A.i("v_lshlrev_b32 v11, 7, v2")
        n = D1*14
        for b in range(0, n, 64):
            if n - b < 64: A.i(f"v_min_u32 v11, {(n-b-1)*128}, v11")
            A.i("buffer_load_dword v12, v11, s[12:15], s30 offen")
            A.i("s_add_u32 s30, s30, 8192")
    A.label(f"{N}_Lj")
    if prio: A.i("s_setprio 0")
    A.i("s_waitcnt lgkmcnt(0)")
    mark(34)
    A.i("v_lshlrev_b32 v4, 7, v2")
    A.i(f"v_add_u32 v4, {F_MOD}, v4")
    srd(A, 16, P_WS, 2*24576, WS['mod'])
    A.i("v_and_b32 v7, 0xff, v0")
    A.i("v_lshlrev_b32 v6, 3, v7")
    A.i(f"v_add_u32 v6, {LNT}, v6")
    A.i("v_lshlrev_b32 v7, 4, v7")
    A.i("s_bfe_u32 s80, s2, 0x20001")
    A.i("s_lshl_b32 s80, s80, 2")
    A.i("s_lshr_b32 s22, s2, 6")
    A.i("s_add_u32 s80, s80, s22")
    A.i("s_mul_i32 s80, s80, 448            ; W soffset")
    A.i("s_mul_i32 s81, s63, 7168")
    srd(A, 8, P_W1, 1024*7168)
    def g1w(slot):
        for q in range(7):
            A.i(f"s_add_u32 m0, s81, {slot + q*1024}" if isinstance(slot, int) else f"s_add_u32 m0, {slot}, {q*1024}")
            A.i("s_nop 0")
            A.i(f"buffer_load_dwordx4 {v(168+q)}, s[8:11], s80 offen lds")
        A.i(f"s_add_u32 s80, s80, {64*7168}")
    if prefill == 'y':
        A.label(f"{N}_pfy")
        A.i("ds_read_b32 v15, v14 offset:28")
        A.i("s_waitcnt lgkmcnt(0)")
        A.i("v_cmp_ne_u32 vcc, 4, v15")
        A.i("s_sleep 1")
        A.i(f"s_cbranch_vccnz {N}_pfy")
        for j in range(npf): g1w(G1W + j*28672)
    if onepm:
        A.i("s_cmp_lg_u32 s63, 0")
        A.i(f"s_cbranch_scc1 {N}_pmw")
        if pmgate:
            A.label(f"{N}_pmg")
            A.i("ds_read_b32 v15, v14 offset:28")
            A.i("s_waitcnt lgkmcnt(0)")
            A.i("v_cmp_ne_u32 vcc, 4, v15")
            A.i("s_sleep 1")
            A.i(f"s_cbranch_vccnz {N}_pmg")
        poll_all(A, f"{N}_pm", 4, 3, cnt=39, stride=8192)
        A.i("v_mov_b32 v15, 1")
        A.i("ds_write_b32 v14, v15 offset:12")
        A.label(f"{N}_pmw")
        A.i("ds_read_b32 v15, v14 offset:12")
        A.i("s_waitcnt lgkmcnt(0)")
        A.i("v_cmp_ne_u32 vcc, 1, v15")
        A.i("s_sleep 1")
        A.i(f"s_cbranch_vccnz {N}_pmw")
    else:
        poll_ctr(A, f"{N}_pm", 4, 8, 12)
    mark(35)
    for r in range(5):
        for h in range(2):
            A.i(f"s_mov_b32 s22, {4096*r + 24576*h}")
            A.i(f"buffer_load_dwordx4 {v(32+8*r+4*h,4)}, v7, s[16:19], s22 offen {WT}")
    for r in range(5):
        b = 32 + 8*r
        A.i(f"s_waitcnt vmcnt({2*(4-r)})")
        A.i(f"v_pk_add_f32 {v(b,2)}, {v(b,2)}, {v(b+4,2)}")
        A.i(f"v_pk_add_f32 {v(b+2,2)}, {v(b+2,2)}, {v(b+6,2)}")
        A.i(f"v_cvt_pk_bf16_f32 {v(b+4)}, {v(b)}, {v(b+1)}")
        A.i(f"v_cvt_pk_bf16_f32 {v(b+5)}, {v(b+2)}, {v(b+3)}")
        if r in (1, 4):
            unpack(b, b+4); unpack(b+2, b+5)
            A.i(f"v_pk_add_f32 {v(b,2)}, {v(b,2)}, 1.0 op_sel_hi:[1,0]")
            A.i(f"v_pk_add_f32 {v(b+2,2)}, {v(b+2,2)}, 1.0 op_sel_hi:[1,0]")
            A.i(f"v_cvt_pk_bf16_f32 {v(b+4)}, {v(b)}, {v(b+1)}")
            A.i(f"v_cvt_pk_bf16_f32 {v(b+5)}, {v(b+2)}, {v(b+3)}")
        A.i(f"ds_write_b64 v6, {v(b+4,2)} offset:{2048*r}")
    def pf():
        if prefill == 'b3':
            for j in range(npf): g1w(G1W + j*28672)
    A.i("s_waitcnt lgkmcnt(0)")
    mark(36)
    ln_main(True, pf)
    mark(37)
    ln_signal(f"{N}_ah2")
    mark(38)
    if prefill == 'sig':
        for j in range(npf): g1w(G1W + j*28672)
    g1_ids()
    A.i("s_lshl_b32 s24, s21, 4")
    A.i("s_lshl_b32 s27, s63, 2")
    A.i("s_add_u32 s24, s24, s27")
    A.i("v_and_b32 v4, 3, v2")
    A.i("v_add_u32 v4, s24, v4")
    A.i("v_lshlrev_b32 v4, 10, v4")
    A.i(f"v_add_u32 v4, {F_H2}, v4")
    A.i("s_lshl_b32 s24, s24, 14")
    A.i("s_lshl_b32 s33, s63, 12")
    A.i(f"s_add_u32 s33, s33, {G1X}")
    srd(A, 12, P_WS, 4*MB, WS['h2'])
    A.i("s_lshl_b32 s82, s2, 2")
    A.i("s_add_u32 s82, s82, s63           ; wave 0..1023")
    if xw1:
        A.i("s_lshr_b32 s38, s2, 3")
        A.i("s_lshl_b32 s38, s38, 1")
        A.i("s_lshr_b32 s39, s63, 1")
        A.i("s_add_u32 s38, s38, s39")
        A.i("s_mul_i32 s38, s38, 7168")
        A.i("s_bfe_u32 s39, s2, 0x20001")
        A.i("s_lshl_b32 s39, s39, 1")
        A.i("s_and_b32 s53, s63, 1")
        A.i("s_add_u32 s39, s39, s53")
        A.i("s_mul_i32 s39, s39, 896")
        A.i("s_add_u32 s38, s38, s39")
    else:
        A.i("s_mul_i32 s38, s82, 448")
    A.i(f"s_add_u32 s38, s38, {D1*64*7168}")
    A.i(f"s_add_u32 s38, s38, s{P_W1}")
    A.i(f"s_addc_u32 s39, s{P_W1+1}, 0")
    A.i("s_and_b32 s54, s82, 511")
    A.i("s_lshl_b32 s54, s54, 8")
    A.i("s_lshr_b32 s55, s82, 9")
    A.i(f"s_mul_i32 s55, s55, {1792*2048}")
    A.i("s_add_u32 s54, s54, s55")
    A.i(f"s_add_u32 s54, s54, s{P_W2}")
    A.i(f"s_addc_u32 s55, s{P_W2+1}, 0")
    def w2_touch():
        for c in range(4):
            A.i(f"s_load_dword s{44+c}, s[54:55], {c*64}")
        A.i(f"s_add_u32 s54, s54, {64*2048}")
        A.i("s_addc_u32 s55, s55, 0")
    NL1 = 11
    poll(A, f"{N}_ph", 4)
    mark(39)
    def g1x(slot):
        for q in range(4):
            A.i(f"s_add_u32 m0, s33, {slot + q*1024}" if isinstance(slot, int) else f"s_add_u32 m0, {slot}, {q*1024}")
            A.i(f"s_add_u32 s37, s24, {q*8*2048}")
            A.i(f"buffer_load_dwordx4 v175, s[12:15], s37 offen {WT} lds")
        A.i("s_add_u32 s24, s24, 128")
    pend = []
    for j in range(3):
        if j >= npf: g1w(G1W + j*28672)
        g1x(j*16384)
        pend.append(4 + (7 if j >= npf else 0))
    x1_signal(f"{N}_ax2", 8, 9, wait="vmcnt(63)")
    mark(40)
    A.i(f"s_waitcnt vmcnt({pend[1]+pend[2]})")
    mark(41)
    A.i("s_barrier                          ; G1 B0")
    A.i("s_mov_b32 s26, 0")
    A.i("s_mov_b32 s25, 0")
    A.i("s_mov_b32 s23, 13")
    A.i(f"s_waitcnt vmcnt({pend[2]})")
    A.i(f"s_branch {N}_g1l2")
    A.label(f"{N}_g1l")
    A.i(f"s_waitcnt vmcnt({NL1})")
    A.label(f"{N}_g1l2")
    A.i("s_barrier")
    A.i("s_add_u32 s35, s26, s81")
    A.i("s_add_u32 s36, s25, s33")
    g1w("s35"); g1x("s36")
    if pw1:
        A.i(f"s_cmp_le_u32 s23, {13-(16-D1)}")
        A.i(f"s_cbranch_scc1 {N}_t1")
        for c in range(14 if xw1 else 7):
            A.i(f"s_load_dword s{44+(c%4)}, s[38:39], {c*64}")
        A.i(f"s_add_u32 s38, s38, {64*7168}")
        A.i("s_addc_u32 s39, s39, 0")
        A.label(f"{N}_t1")
    if pw2:
        A.i(f"s_cmp_gt_u32 s23, {D2}")
        A.i(f"s_cbranch_scc1 {N}_t2")
        w2_touch()
        A.label(f"{N}_t2")
    A.i("s_add_u32 s26, s26, 28672")
    A.i("s_add_u32 s25, s25, 16384")
    A.i("s_cmp_eq_u32 s25, 49152")
    A.i("s_cselect_b32 s26, 0, s26")
    A.i("s_cselect_b32 s25, 0, s25")
    A.i("s_sub_u32 s23, s23, 1")
    A.i("s_cmp_lg_u32 s23, 0")
    A.i(f"s_cbranch_scc1 {N}_g1l")
    A.i("s_waitcnt lgkmcnt(0)")
    code_touch(f"{N}_ct3")
    g2_ids()
    A.i("v_lshrrev_b32 v4, 4, v2")
    A.i("v_lshlrev_b32 v5, 1, v4")
    A.i("v_and_b32 v6, 15, v2")
    A.i("v_xor_b32 v5, v5, v6")
    A.i("v_lshlrev_b32 v5, 4, v5")
    A.i("v_lshl_add_u32 v5, v4, 11, v5")
    A.i("v_xor_b32 v6, 128, v5")
    A.i("s_lshl_b32 s24, s21, 3")
    A.i("s_lshl_b32 s27, s63, 1")
    A.i("s_add_u32 s24, s24, s27")
    A.i(f"s_mul_i32 s24, s24, {112*1024}")
    A.i(f"s_mul_i32 s27, s52, {56*1024}")
    A.i("s_add_u32 s24, s24, s27            ; X soffset")
    A.i("s_lshl_b32 s80, s22, 8")
    A.i("s_lshl_b32 s27, s63, 15")
    A.i("s_add_u32 s80, s80, s27")
    A.i(f"s_mul_i32 s27, s52, {1792*2048}")
    A.i("s_add_u32 s80, s80, s27            ; W soffset")
    A.i("s_lshl_b32 s81, s63, 12")
    A.i(f"s_add_u32 s33, s81, {G2X}")
    A.i("s_lshl_b32 s27, s21, 4")
    A.i("s_lshl_b32 s30, s52, 3")
    A.i("s_add_u32 s27, s27, s30")
    A.i("v_and_b32 v7, 7, v2")
    A.i("v_add_u32 v7, s27, v7")
    A.i("v_lshlrev_b32 v7, 10, v7")
    A.i(f"v_add_u32 v7, {F_ACT}, v7")
    if lazyx1:
        A.i("s_lshl_b32 s27, s21, 4")
        A.i("v_and_b32 v8, 15, v2")
        A.i("v_add_u32 v8, s27, v8")
        A.i("v_lshlrev_b32 v8, 10, v8")
        A.i(f"v_add_u32 v8, {F_X1}, v8")
        A.i("v_cmp_gt_u32 vcc, 32, v2")
        A.i("s_nop 1")
        A.i("v_cndmask_b32 v7, v8, v7, vcc")
    for rem in (NL1, 0, 0):
        A.i(f"s_waitcnt vmcnt({rem})")
        A.i("s_barrier")
    srd(A, 8, P_W2, 3584*2048)
    srd(A, 12, P_WS, 2048*3584*2, WS['act'])
    def g2w(slot):
        for q in range(4):
            A.i(f"s_add_u32 m0, s81, {slot + q*1024}" if isinstance(slot, int) else f"s_add_u32 m0, {slot}, {q*1024}")
            A.i(f"s_add_u32 s37, s80, {q*4*2048}")
            A.i(f"buffer_load_dwordx4 {v(5+(q//2))}, s[8:11], s37 offen lds")
        A.i(f"s_add_u32 s80, s80, {64*2048}")
    def g2x(slot):
        A.i(f"s_add_u32 m0, s33, {slot}")
        A.i(f"s_add_u32 s37, s24, {112*1024}")
        for kb in range(2):
            A.i(f"buffer_load_dwordx4 v3, s[12:15], s24 offen offset:{kb*1024} {WT} lds")
        A.i("s_add_u32 m0, m0, 2048")
        A.i("s_add_u32 s24, s24, 2048")
        for kb in range(2):
            A.i(f"buffer_load_dwordx4 v3, s[12:15], s37 offen offset:{kb*1024} {WT} lds")
    for j in range(4): g2w(G2W + j*16384)
    mark(42)
    if firsttile:
        A.i("v_and_b32 v8, 1, v2")
        A.i("v_lshlrev_b32 v8, 10, v8")
        A.i("v_readfirstlane_b32 s27, v7")
        A.i("s_nop 1")
        A.i("v_add_u32 v8, s27, v8")
        poll(A, f"{N}_pa0", 8)
    else:
        poll(A, f"{N}_pa", 7)
    mark(43)
    for j in range(4): g2x(j*16384)
    A.i("s_waitcnt vmcnt(12)")
    mark(44)
    A.i("s_barrier                          ; G2 B0")
    if firsttile: poll(A, f"{N}_pa", 7)
    A.i("s_mov_b32 s26, 0")
    def g2step(touch=True):
        A.i("s_barrier")
        A.i("s_add_u32 s35, s26, s81")
        g2w("s35"); g2x("s26")
        if pw2 and touch: w2_touch()
        A.i("s_add_u32 s26, s26, 16384")
        A.i("s_and_b32 s26, s26, 0xffff")
    A.i("s_waitcnt vmcnt(8)")
    g2step()
    A.i("s_waitcnt vmcnt(12)")
    g2step()
    A.i(f"s_mov_b32 s23, {28-D2-2}")
    A.label(f"{N}_g2l")
    A.i("s_waitcnt vmcnt(16)")
    g2step()
    A.i("s_sub_u32 s23, s23, 1")
    A.i("s_cmp_lg_u32 s23, 0")
    A.i(f"s_cbranch_scc1 {N}_g2l")
    for _ in range(D2-4):
        A.i("s_waitcnt vmcnt(16)")
        g2step(False)
    A.i("s_waitcnt lgkmcnt(0)")
    code_touch(f"{N}_ct4")
    for rem in (16, 8, 0, 0):
        A.i(f"s_waitcnt vmcnt({rem})")
        A.i("s_barrier")
    if ts and tsw >= 4:
        A.i("s_waitcnt lgkmcnt(0)")
        ts_end(A, N, P_WS, tsw)
    A.label(f"{N}_done")
    A.i("s_endpgm")
    kernel_desc(A, N, 240, 102)
    return (256, 512, 163840)
```

```python
from asmlib import *
from bw import ts_begin, ts_end, ts_mark

def stamp(A, idx, tmp=90):
    pass

LOG2E = 0x3fb8aa3b

def gen_g1(A, name="g1_kernel", mf=True, rd=True, ld=True, ntw=True, ntx=False, epi=True, ts=False, nslot=3, ldx=True, ldw=True, fl='', stf='', big=False):
    SLOT = 45056
    NL = (4 if ldx else 0) + (7 if ldw else 0)
    XB, WB = 0, 16384
    kernel_head(A, name)
    A.i("s_cmp_ge_u32 s2, 256")
    A.i(f"s_cbranch_scc1 {name}_done")
    A.i(f"s_load_dwordx2 s[4:5], s[0:1], {KA['ws']}")
    A.i(f"s_load_dwordx2 s[6:7], s[0:1], {KA['w1']}")
    if ts:
        ts_begin(A)
    A.i("v_lshrrev_b32 v1, 6, v0")
    A.i("v_and_b32 v2, 63, v0               ; lane")
    A.i("v_readfirstlane_b32 s20, v1")
    A.i("s_and_b32 s21, s2, 1")
    A.i("s_lshl_b32 s21, s21, 3")
    A.i("s_bfe_u32 s27, s2, 0x30003         ; (id>>3)&7")
    A.i("s_add_u32 s21, s21, s27            ; sblk")
    A.i("s_bfe_u32 s22, s2, 0x20001         ; (id>>1)&3")
    A.i("s_lshl_b32 s22, s22, 2")
    A.i("s_lshr_b32 s27, s2, 6")
    A.i("s_add_u32 s22, s22, s27            ; fblk")
    A.i("s_waitcnt lgkmcnt(0)")
    srd(A, 8, 4, 4*MB, WS['h2'])
    srd(A, 12, 6, 1024*3584*2)
    srd(A, 16, 4, 2048*3584*2, WS['act'])
    A.i("s_cmp_ge_u32 s20, 4")
    A.i(f"s_cbranch_scc1 {name}_loader")

    ACC = 128
    FS = [16, 60]
    vXb0, vXb1, vWb0, vWb1 = 4, 5, 6, 7
    vX0, vX1, vW0, vW1 = 8, 9, 10, 11
    A.i("s_and_b32 s28, s20, 1              ; ws")
    A.i("s_lshr_b32 s29, s20, 1             ; wf")
    A.i("v_and_b32 v3, 15, v2               ; n")
    A.i("v_lshrrev_b32 v12, 4, v2           ; g")
    A.i("v_and_b32 v13, 7, v3")
    A.i("v_xor_b32 v13, v13, v12            ; g ^ (n&7)")
    A.i("v_lshlrev_b32 v13, 4, v13")
    A.i("s_lshl_b32 s27, s28, 13            ; ws*64*128")
    A.i(f"v_lshl_add_u32 {v(vXb0)}, v3, 7, v13")
    A.i(f"v_add_u32 {v(vXb0)}, s27, {v(vXb0)}")
    A.i(f"v_xor_b32 {v(vXb1)}, 64, {v(vXb0)}")
    A.i("v_lshrrev_b32 v13, 2, v3           ; r")
    A.i("v_lshl_add_u32 v13, v12, 3, v13    ; 8g+r")
    A.i("v_mul_u32_u24 v13, 448, v13")
    A.i("v_and_b32 v14, 3, v2               ; c")
    A.i("v_lshl_add_u32 v13, v14, 3, v13    ; + c*8")
    A.i("s_mul_i32 s27, s29, 224")
    A.i("v_add_u32 v13, s27, v13")
    A.i("v_and_b32 v14, 1, v12")
    A.i("v_lshlrev_b32 v14, 5, v14          ; (g&1)*32")
    A.i(f"v_add_u32 {v(vWb0)}, v13, v14")
    A.i(f"v_sub_u32 {v(vWb1)}, v13, v14")
    A.i("s_cmp_eq_u32 s29, 0")
    A.i(f"s_cbranch_scc1 {name}_noswap")
    A.i(f"v_swap_b32 {v(vWb0)}, {v(vWb1)}")
    A.label(f"{name}_noswap")
    for r in range(112):
        A.i(f"v_mov_b32 {v(ACC+r)}, 0")

    def reads(fs, kk, force=False):
        out = []
        if not rd or (rd == 'once' and not force):
            return out
        X, W = FS[fs], FS[fs] + 16
        vx = vX0 if kk == 0 else vX1
        def wr(t):
            for hb in range(2):
                out.append(f"ds_read_b64_tr_b16 {v(W+4*t+2*hb,2)}, {v(vW0 if t%2==0 else vW1)} offset:{WB + (32*kk+4*hb)*448 + 32*t}")
        wr(0)
        for st in range(4):
            out.append(f"ds_read_b128 {v(X+4*st,4)}, {v(vx)} offset:{XB + st*2048}")
        for t in range(1, 7):
            wr(t)
        return out

    def phase(fs, side):
        X, W = FS[fs], FS[fs] + 16
        side = list(side)
        n = 0
        for t in range(7):
            for st in range(4):
                if mf:
                    ac = ACC + (t*4+st)*4
                    if big:
                        if (t*4+st) % 2 == 0:
                            a16 = ACC + ((t*4+st)//4)*16
                            A.i(f"v_mfma_f32_32x32x16_bf16 {v(a16,16)}, {v(W+4*t,4)}, {v(X+4*st,4)}, {v(a16,16)}")
                    else:
                        A.i(f"v_mfma_f32_16x16x32_bf16 {v(ac,4)}, {v(W+4*t,4)}, {v(X+4*st,4)}, {v(ac,4)}")
                if side:
                    A.i(side.pop(0))
                n += 1
        for x in side:
            A.i(x)

    A.i("s_mov_b32 s26, 0")
    A.i(f"v_mov_b32 {v(vX0)}, {v(vXb0)}")
    A.i(f"v_mov_b32 {v(vX1)}, {v(vXb1)}")
    A.i(f"v_mov_b32 {v(vW0)}, {v(vWb0)}")
    A.i(f"v_mov_b32 {v(vW1)}, {v(vWb1)}")
    A.i("s_mov_b32 s23, 16")
    if ts: ts_mark(A, 0)
    A.i("s_barrier                          ; B0")
    if ts: ts_mark(A, 1)
    for x in reads(0, 0, True):
        A.i(x)
    if rd == 'once':
        for x in reads(1, 1, True): A.i(x)
    A(".p2align 6")
    A.label(f"{name}_cloop")
    A.i("s_waitcnt lgkmcnt(0)")
    nxt = [f"s_add_u32 s26, s26, {SLOT}", f"s_cmp_eq_u32 s26, {SLOT*nslot}", "s_cselect_b32 s26, 0, s26",
           f"v_add_u32 {v(vX0)}, s26, {v(vXb0)}"]
    phase(0, reads(1, 1) + nxt + [f"v_add_u32 {v(vW0)}, s26, {v(vWb0)}", f"v_add_u32 {v(vW1)}, s26, {v(vWb1)}",
                                  f"v_add_u32 {v(vX1)}, s26, {v(vXb1)}"])
    A.i("s_waitcnt lgkmcnt(0)")
    A.i("s_barrier")
    phase(1, reads(0, 0) + ["s_sub_u32 s23, s23, 1", "s_cmp_lg_u32 s23, 0"])
    A.i(f"s_cbranch_scc1 {name}_cloop")
    A.i("s_waitcnt lgkmcnt(0)")

    if ts: ts_mark(A, 2)
    if epi:
        A.i("s_lshl_b32 s27, s21, 3")
        A.i("s_lshl_b32 s30, s28, 2")
        A.i("s_add_u32 s27, s27, s30")
        A.i("s_mul_i32 s27, s27, 112")
        A.i("s_mul_i32 s30, s22, 7")
        A.i("s_add_u32 s27, s27, s30")
        A.i("s_lshl_b32 s27, s27, 10")
        A.i("v_and_b32 v13, 1, v12")
        A.i("v_lshrrev_b32 v14, 1, v12")
        A.i("v_lshl_or_b32 v13, v13, 1, v14     ; pi(g)")
        A.i("v_lshlrev_b32 v13, 8, v13")
        A.i("v_lshl_add_u32 v13, v3, 4, v13")
        A.i("v_lshlrev_b32 v14, 8, v14")
        A.i("v_lshl_add_u32 v14, v3, 4, v14")
        A.i("v_and_b32 v15, 1, v12")
        A.i("v_lshl_add_u32 v14, v15, 3, v14")
        A.i(f"s_mov_b32 s31, 0x{LOG2E ^ 0x80000000:x}")
        A.i("s_mov_b32 s32, s31")
        A.i("s_nop 7")
        def silu4(dst, ac, tmp):
            A.i(f"v_pk_mul_f32 {v(tmp,2)}, {v(ac,2)}, s[32:33] op_sel_hi:[1,0]")
            A.i(f"v_pk_mul_f32 {v(tmp+2,2)}, {v(ac+2,2)}, s[32:33] op_sel_hi:[1,0]")
            for r in range(4): A.i(f"v_exp_f32 {v(tmp+r)}, {v(tmp+r)}")
            A.i(f"v_pk_add_f32 {v(tmp,2)}, {v(tmp,2)}, 1.0 op_sel_hi:[1,0]")
            A.i(f"v_pk_add_f32 {v(tmp+2,2)}, {v(tmp+2,2)}, 1.0 op_sel_hi:[1,0]")
            for r in range(4): A.i(f"v_rcp_f32 {v(tmp+r)}, {v(tmp+r)}")
            A.i("s_nop 0")
            A.i(f"v_pk_mul_f32 {v(tmp,2)}, {v(tmp,2)}, {v(ac,2)}")
            A.i(f"v_pk_mul_f32 {v(tmp+2,2)}, {v(tmp+2,2)}, {v(ac+2,2)}")
            A.i(f"v_cvt_pk_bf16_f32 {v(dst)}, {v(tmp)}, {v(tmp+1)}")
            A.i(f"v_cvt_pk_bf16_f32 {v(dst+1)}, {v(tmp+2)}, {v(tmp+3)}")
        def body(wf):
            pairs = [(0,0),(2,1),(4,2)] if wf == 0 else [(1,4),(3,5),(5,6)]
            single = 6 if wf == 0 else 0
            cnt = 0
            for st in range(4):
                A.i(f"s_add_u32 s30, s27, {st*112*1024}")
                for (t, blk) in pairs:
                    d = 16 + (cnt % 4) * 4
                    cnt += 1
                    silu4(d, ACC + (t*4+st)*4, 40)
                    silu4(d+2, ACC + ((t+1)*4+st)*4, 44)
                    A.i("s_nop 1")
                    A.i(f"v_permlane16_swap_b32 {v(d)}, {v(d+2)}")
                    A.i(f"v_permlane16_swap_b32 {v(d+1)}, {v(d+3)}")
                    A.i(f"buffer_store_dwordx4 {v(d,4)}, v13, s[16:19], s30 offen offset:{blk*1024} {stf}" if blk < 4 else
                        f"buffer_store_dwordx4 {v(d,4)}, v15, s[16:19], s30 offen offset:{(blk-4)*1024} {stf}")
                d = 32 + (st % 2) * 2
                silu4(d, ACC + (single*4+st)*4, 40)
                A.i(f"buffer_store_dwordx2 {v(d,2)}, v14, s[16:19], s30 offen offset:{3*1024 + wf*512} {stf}")
        A.i("v_add_u32 v15, 4096, v13")
        A.i("s_cmp_eq_u32 s29, 0")
        A.i(f"s_cbranch_scc0 {name}_epi1")
        body(0)
        A.i(f"s_branch {name}_fin")
        A.label(f"{name}_epi1")
        body(1)
    A.label(f"{name}_fin")
    if ts: ts_mark(A, 3)
    if ts:
        ts_end(A, name)
    A.i("s_endpgm")

    A.label(f"{name}_loader")
    A.i("s_sub_u32 s20, s20, 4              ; lw")
    A.i("v_lshrrev_b32 v3, 3, v2")
    A.i("v_and_b32 v4, 7, v2")
    A.i("v_xor_b32 v4, v4, v3")
    A.i("v_lshlrev_b32 v4, 4, v4")
    A.i("v_lshl_add_u32 v4, v3, 11, v4      ; vXoff")
    A.i("s_mul_i32 s27, s20, 448            ; lw*7*64")
    A.i("v_add_u32 v5, s27, v2              ; p for q=0")
    A.i("s_movk_i32 s30, 2341")
    A.i("s_movk_i32 s31, 7168")
    for q in range(7):
        A.i(f"v_add_u32 v6, {64*q}, v5")
        A.i("v_mul_lo_u32 v7, v6, s30")
        A.i("v_lshrrev_b32 v7, 16, v7          ; row")
        A.i("v_mul_u32_u24 v15, 28, v7")
        A.i("v_sub_u32 v6, v6, v15             ; chunk")
        A.i("v_bfe_u32 v15, v7, 3, 1")
        A.i("v_lshlrev_b32 v15, 1, v15")
        A.i("v_xor_b32 v6, v6, v15")
        A.i("v_mul_lo_u32 v7, v7, s31")
        A.i(f"v_lshl_add_u32 {v(8+q)}, v6, 4, v7")
    A.i("s_lshl_b32 s24, s21, 18            ; sblk*128*2048")
    A.i("s_lshl_b32 s27, s20, 16            ; lw*4*8*2048")
    A.i("s_add_u32 s24, s24, s27")
    A.i("s_mul_i32 s25, s22, 448")
    A.i("s_lshl_b32 s33, s20, 12")
    A.i("s_mul_i32 s34, s20, 7168")
    A.i(f"s_add_u32 s34, s34, {WB}")
    A.i("s_mov_b32 s26, 0")
    def issue():
        if ld:
            A.i("s_add_u32 s35, s26, s33")
            A.i("s_add_u32 s36, s26, s34")
            for q in range(7):
                A.i(f"s_add_u32 m0, s36, {q*1024}")
                if q < 4:
                    A.i(f"s_add_u32 s37, s24, {q*8*2048}")
                else:
                    A.i("s_nop 0")
                if ldw: A.i(f"buffer_load_dwordx4 {v(8+q)}, s[12:15], s25 offen{' nt' if ntw else ''} {fl} lds")
                if q < 4 and ldx:
                    A.i(f"s_add_u32 m0, s35, {q*1024}")
                    A.i("s_nop 0")
                    A.i(f"buffer_load_dwordx4 v4, s[8:11], s37 offen{' nt' if ntx else ''} lds")
        A.i("s_add_u32 s24, s24, 128")
        A.i(f"s_add_u32 s25, s25, {64*7168}")
        A.i(f"s_add_u32 s26, s26, {SLOT}")
        A.i(f"s_cmp_eq_u32 s26, {SLOT*nslot}")
        A.i("s_cselect_b32 s26, 0, s26")
    for _ in range(nslot):
        issue()
    A.i(f"s_waitcnt vmcnt({NL*(nslot-1)})")
    A.i("s_barrier                          ; B0")
    A.i(f"s_mov_b32 s23, {16-nslot}")
    A.label(f"{name}_lloop")
    A.i(f"s_waitcnt vmcnt({NL*(nslot-2)})")
    A.i("s_barrier")
    issue()
    A.i("s_sub_u32 s23, s23, 1")
    A.i("s_cmp_lg_u32 s23, 0")
    A.i(f"s_cbranch_scc1 {name}_lloop")
    for j in range(16-nslot, 16):
        rem = max(0, 15 - (j+1))
        A.i(f"s_waitcnt vmcnt({NL*rem})")
        A.i("s_barrier")
    A.label(f"{name}_done")
    A.i("s_endpgm")
    kernel_desc(A, name, 240, 64, 240)
    return (256, 512, SLOT*nslot)
```

```python
from asmlib import *
from bw import ts_begin, ts_end, ts_mark
from k2 import wave_reduce
LOG2E = 0x3fb8aa3b
WT = "sc0 sc1"

P_WS, P_Q = 4, 6
P_SSM, P_D, P_W1, P_W2, P_C, P_WM, P_OUT = 64, 66, 70, 72, 74, 76, 78
FL = 56
F_X, F_H2, F_ACT, F_KV = 0, 512, 640, 768
F_X1 = 576
F_BAR = 896
F_MOD = 288*1024
F_KVF = 320*1024
F_NONCE = 448*1024 + 52
SV = 83
P_K, P_V, P_SH = 96, 98, 100

PSLEEP = {}
def poll(A, tag, vaddr, vt=15, cnt=60, wide=False):
    val = f"s{SV}"
    A.i(f"s_mov_b32 s{cnt}, 0x40000")
    sl = PSLEEP.get(tag.split("_")[-1][:2], 0)
    if sl:
        A.i(f"s_branch {tag}_in")
    A.label(tag)
    if sl:
        A.i(f"s_sleep {sl}")
        A.label(f"{tag}_in")
    if wide: A.i(f"buffer_load_dwordx4 {v(vt,4)}, {v(vaddr)}, s[{FL}:{FL+3}], 0 offen {WT}")
    else:    A.i(f"buffer_load_dword {v(vt)}, {v(vaddr)}, s[{FL}:{FL+3}], 0 offen {WT}")
    A.i(f"s_sub_u32 s{cnt}, s{cnt}, 1")
    A.i(f"s_cmp_eq_u32 s{cnt}, 0")
    A.i(f"s_cbranch_scc1 {tag}_out")
    A.i("s_waitcnt vmcnt(0)")
    if wide:
        for r in range(4): A.i(f"v_xor_b32 {v(vt+r)}, {val}, {v(vt+r)}")
        A.i(f"v_or3_b32 {v(vt)}, {v(vt)}, {v(vt+1)}, {v(vt+2)}")
        A.i(f"v_or_b32 {v(vt)}, {v(vt)}, {v(vt+3)}")
        val = "0"
    A.i(f"v_cmp_ne_u32 vcc, {val}, {v(vt)}")
    A.i("s_nop 1")
    A.i(f"s_cbranch_vccnz {tag}")
    A.label(f"{tag}_out")

def poll2(A, tag, va, vb, vt, cnt=60):
    sl = PSLEEP.get(tag.split("_")[-1][:2], 0)
    A.i(f"s_mov_b32 s{cnt}, 0x40000")
    A.i(f"s_branch {tag}_in")
    A.label(tag)
    if sl: A.i(f"s_sleep {sl}")
    A.label(f"{tag}_in")
    A.i(f"buffer_load_dword {v(vt)}, {v(vb)}, s[{FL}:{FL+3}], 0 offen {WT}")
    A.i(f"s_sub_u32 s{cnt}, s{cnt}, 1")
    A.i(f"s_cmp_eq_u32 s{cnt}, 0")
    A.i(f"s_cbranch_scc1 {tag}_out")
    A.i("s_waitcnt vmcnt(0)")
    A.i(f"v_cmp_ne_u32 vcc, s{SV}, {v(vt)}")
    A.i("s_nop 1")
    A.i(f"s_cbranch_vccz {tag}_out")
    A.i(f"s_and_b32 s10, s{cnt}, 3")
    A.i(f"s_cbranch_scc1 {tag}")
    A.i(f"buffer_load_dword {v(vt+1)}, {v(va)}, s[{FL}:{FL+3}], 0 offen {WT}")
    A.i("s_mov_b64 s[8:9], vcc")
    A.i("s_waitcnt vmcnt(0)")
    A.i(f"v_cmp_ne_u32 vcc, s{SV}, {v(vt+1)}")
    A.i("s_nop 1")
    A.i("s_and_b64 vcc, vcc, s[8:9]")
    A.i(f"s_cbranch_scc1 {tag}")
    A.label(f"{tag}_out")

def poll_all(A, tag, vaddr, groups, vt=16, cnt=60, stride=65536, mask=84):
    sl = PSLEEP.get(tag.split("_")[-1][:2], 0)
    M = [f"s[{44+2*g}:{45+2*g}]" if g < 2 else f"s[{52+2*(g-2)}:{53+2*(g-2)}]" for g in range(groups)]
    A.i(f"s_mov_b32 s{cnt}, 0x40000")
    for g in range(groups):
        A.i(f"s_mov_b64 {M[g]}, -1")
        if g: A.i(f"v_add_u32 {v(vt+4+g)}, {g*stride}, {v(vaddr)}")
    A.i(f"s_branch {tag}_in")
    A.label(tag)
    if sl: A.i(f"s_sleep {sl}")
    A.label(f"{tag}_in")
    for g in range(groups):
        A.i(f"s_or_b64 exec, {M[g]}, 1")
        A.i(f"buffer_load_dword {v(vt+g)}, {v(vt+4+g) if g else v(vaddr)}, s[{FL}:{FL+3}], 0 offen {WT}")
    A.i(f"s_sub_u32 s{cnt}, s{cnt}, 1")
    A.i(f"s_cmp_eq_u32 s{cnt}, 0")
    A.i(f"s_cbranch_scc1 {tag}_out")
    A.i("s_waitcnt vmcnt(0)")
    for g in range(groups):
        A.i(f"s_or_b64 exec, {M[g]}, 1")
        A.i(f"v_cmp_ne_u32 {M[g]}, s{SV}, {v(vt+g)}")
    A.i("s_nop 1")
    A.i(f"s_or_b64 vcc, {M[0]}, {M[1]}")
    for g in range(2, groups):
        A.i(f"s_or_b64 vcc, vcc, {M[g]}")
    A.i(f"s_cbranch_scc1 {tag}")
    A.label(f"{tag}_out")
    A.i("s_mov_b64 exec, -1")

def poll_ctr(A, tag, vaddr, shift, val, vt=16, cnt=39):
    sl = PSLEEP.get(tag.split("_")[-1][:2], 0)
    A.i(f"s_mov_b32 s{cnt}, 0x40000")
    A.i(f"s_branch {tag}_in")
    A.label(tag)
    if sl: A.i(f"s_sleep {sl}")
    A.label(f"{tag}_in")
    A.i(f"buffer_load_dword {v(vt)}, {v(vaddr)}, s[{FL}:{FL+3}], 0 offen {WT}")
    A.i(f"s_sub_u32 s{cnt}, s{cnt}, 1")
    A.i(f"s_cmp_eq_u32 s{cnt}, 0")
    A.i(f"s_cbranch_scc1 {tag}_out")
    A.i("s_waitcnt vmcnt(0)")
    A.i(f"v_bfe_u32 {v(vt)}, {v(vt)}, {shift}, 8")
    A.i(f"v_cmp_ne_u32 vcc, {val}, {v(vt)}")
    A.i("s_nop 1")
    A.i(f"s_cbranch_vccnz {tag}")
    A.label(f"{tag}_out")

def gen_f(A, name="f1_kernel", ts=False, nt="nt", outf="", pw1=True, pw2=True, marks=(0,1,2,3,4,5), tsw=0, prio=0, ntk='nt', prefill='y', npf=2, wf1='', E1=2, E2=2, halo=True, D1=7, D2=8, ncode=16, psleep=dict(pk=4, pg=8, pm=8, ph=4, pa=4, px=2), onepm=True, nogemv=False, spin=None, ctouch=True, pmgate=False, earlysig=False, reuse=True, FLAGIT=8, nosend=False, xw1=False, lazyx1=False, defer=0, firsttile=True, fastkv=True, hearly=True, tlb=0):
    N = name
    NARR = 4
    PSLEEP.clear(); PSLEEP.update(psleep)
    def mark(j):
        if ts:
            for i, m in enumerate(marks):
                if m == j: ts_mark(A, i)
    WB, HC = 24320, 4160
    XO = 4*HC
    GP = 4*WB
    CNT = 161792
    G1W, G1X = 0, 86016
    LNP, LNY, LNT = 86016, 135168, 151552
    G2W, G2X = 0, 65536
    XROW = 232
    HH = 216
    SD = 104
    vWM, vCO, CR = 204, 205, 208
    P0B = 135168

    def xrow_load():
        srd(A, 8, P_Q, 4*MB)
        for hf in range(2):
            A.i(f"buffer_load_dwordx4 {v(XROW+hf*4,4)}, v3, s[8:11], s61 offen offset:{hf*1024} {nt}")

    def arrive(tag, cnt, n, soff, off, wait="vmcnt(0)", vc=14, vt=15, add=None, fast=None):
        A.i(f"v_mov_b32 {v(vt)}, 1")
        A.i(f"s_waitcnt {wait}")
        A.i("s_mov_b64 exec, 1")
        A.i(f"ds_add_rtn_u32 {v(vt)}, {v(vc)}, {v(vt)} offset:{cnt}")
        A.i("s_waitcnt lgkmcnt(0)")
        A.i(f"v_cmp_eq_u32 vcc, {n-1}, {v(vt)}")
        A.i(f"v_mov_b32 {v(vt)}, {add if add else f's{SV}'}")
        A.i("s_nop 0")
        A.i(f"s_cbranch_vccz {tag}")
        if add: A.i(f"buffer_atomic_add {v(vt)}, off, s[{FL}:{FL+3}], {soff}")
        else:
            if fast: A.i(f"buffer_store_dword {v(vt)}, off, s[{FL}:{FL+3}], {fast}")
            A.i(f"buffer_store_dword {v(vt)}, off, s[{FL}:{FL+3}], {soff} offset:{off} {WT}")
        A.label(tag)
        A.i("s_mov_b64 exec, -1")
    def code_touch(tag):
        if not ctouch: return
        A.i("s_getpc_b64 s[46:47]")
        A.label(tag)
        A.i(f"s_sub_u32 s46, s46, {tag}-{N}")
        A.i("s_subb_u32 s47, s47, 0")
        A.i("s_lshr_b32 s44, s2, 3")
        A.i("s_lshl_b32 s44, s44, 2")
        A.i("s_add_u32 s44, s44, s63")
        A.i("s_mul_i32 s44, s44, 320")
        A.i(f"s_min_u32 s44, s44, code_end-{N}-320")
        A.i("s_add_u32 s46, s46, s44")
        A.i("s_addc_u32 s47, s47, 0")
        for c in range(5):
            A.i(f"s_load_dword s45, s[46:47], {64*c}")
    def page_touch(tag):
        if not tlb: return
        A.i("s_cmp_lg_u32 s63, 3")
        A.i(f"s_cbranch_scc1 {tag}")
        srd(A, 16, P_WS, 48*MB)
        A.i(f"v_lshlrev_b32 v8, {tlb}, v2")
        n = (48*MB >> tlb) // 64 or 1
        A.i("s_mov_b32 s52, 0")
        for i in range(n):
            A.i("buffer_load_dword v9, v8, s[16:19], s52 offen")
            A.i(f"s_add_u32 s52, s52, {64 << tlb}")
        srd(A, 16, P_OUT, 4*MB)
        A.i("buffer_load_dword v9, v8, s[16:19], 0 offen")
        A.i("s_waitcnt vmcnt(0)")
        A.label(tag)
    def stream(j0, j1):
        for j in range(j0, j1):
            A.i(f"buffer_load_dwordx4 {v(SD+4*j,4)}, {v(vWM)}, s[12:15], s80 offen {nt}")
            A.i("s_add_u32 s80, s80, 12288")
    kernel_head(A, N)
    A.i("s_cmp_ge_u32 s2, 256")
    A.i(f"s_cbranch_scc1 {N}_done")
    A.i(f"s_load_dwordx4 s[{P_K}:{P_K+3}], s[0:1], {KA['k']}")
    A.i(f"s_load_dwordx2 s[{P_SH}:{P_SH+1}], s[0:1], {KA['shift']}")
    A.i(f"s_load_dwordx16 s[64:79], s[0:1], {KA['ssm']}")
    A.i(f"s_load_dwordx2 s[4:5], s[0:1], {KA['ws']}")
    A.i(f"s_load_dwordx2 s[6:7], s[0:1], {KA['q']}")
    A.i(f"s_cmp_ge_u32 s2, {ncode}")
    A.i(f"s_cbranch_scc1 {N}_nc")
    A.i("s_getpc_b64 s[8:9]")
    A.label(f"{N}_pc")
    A.i(f"s_mov_b32 s10, code_end-{N}_pc")
    A.i("s_mov_b32 s11, 0x20000")
    A.i("v_lshlrev_b32 v13, 7, v0")
    A.i(f"buffer_load_dword {v(HH)}, v13, s[8:11], 0 offen")
    A.label(f"{N}_nc")
    if ts: ts_begin(A)
    A.i(f"v_mov_b32 v14, {CNT}")
    A.i("v_mov_b32 v4, 0")
    A.i("v_mov_b32 v5, 0")
    for o in range(5): A.i(f"ds_write_b64 v14, v[4:5] offset:{8*o}")
    A.i("v_lshrrev_b32 v1, 6, v0")
    A.i("v_and_b32 v2, 63, v0              ; lane")
    A.i("v_readfirstlane_b32 s20, v1       ; wave")
    A.i("s_and_b32 s21, s2, 7")
    A.i("s_lshl_b32 s21, s21, 1")
    A.i("s_bfe_u32 s22, s2, 0x10003")
    A.i("s_add_u32 s21, s21, s22           ; cb")
    A.i("s_lshr_b32 s22, s2, 4             ; rb")
    A.i("v_and_b32 v1, 15, v0              ; cc")
    A.i("v_lshrrev_b32 v9, 4, v0           ; rg")
    A.i("s_lshl_b32 s23, s22, 18")
    A.i("s_lshl_b32 s24, s21, 7")
    A.i("s_add_u32 s23, s23, s24")
    A.i(f"s_sub_u32 s23, s23, {3*2048}")
    A.i("v_lshlrev_b32 v3, 13, v9")
    A.i("v_lshl_add_u32 v3, v1, 3, v3")
    A.i("v_add_u32 v3, s23, v3")
    A.i("v_add_u32 v4, 4096, v3")
    A.i("v_add_u32 v5, 6144, v3")
    A.i("v_add_u32 v6, 10240, v3")
    A.i("s_lshl_b32 s24, s21, 9")
    A.i("v_lshlrev_b32 v7, 5, v1")
    A.i("s_waitcnt lgkmcnt(0)")
    mark(50)
    srd(A, 12, P_K, 4*MB)
    srd(A, 16, P_V, 4*MB)
    K, V, W = 16, 32, 40
    addr = [(3,0),(3,2048),(4,0),(5,0),(5,2048),(6,0),(6,2048)]
    for j in range(3, 7):
        r,o = addr[j]
        A.i(f"buffer_load_dwordx2 {v(K+2*j,2)}, v{r}, s[12:15], 0 offen offset:{o} {ntk}")
    for j in range(4):
        r,o = addr[3+j]
        A.i(f"buffer_load_dwordx2 {v(V+2*j,2)}, v{r}, s[16:19], 0 offen offset:{o} {nt}")
    if halo: A.i("s_mov_b64 exec, 0xffff")
    for j in range(3):
        r,o = addr[j]
        A.i(f"buffer_load_dwordx2 {v(K+2*j,2)}, v{r}, s[12:15], 0 offen offset:{o} {ntk}")
    if halo: A.i("s_mov_b64 exec, -1")
    srd(A, 28, P_SH, 8192)
    A.i(f"buffer_load_dwordx4 {v(W,4)}, v7, s[28:31], s24 offen")
    A.i(f"buffer_load_dwordx4 {v(W+4,4)}, v7, s[28:31], s24 offen offset:16")
    srd(A, FL, P_WS, 512*1024, WS['flag'])
    A.i(f"s_load_dword s{SV}, s[{FL}:{FL+1}], {F_NONCE}")
    A.i("v_lshlrev_b32 v3, 4, v2           ; lane*16")
    A.i("s_and_b32 s62, s2, 7")
    A.i("s_lshl_b32 s62, s62, 5")
    A.i("s_lshr_b32 s63, s2, 3")
    A.i("s_add_u32 s62, s62, s63")
    srd(A, 32, P_WS, 4*MB, WS['kvT'])
    A.i("v_lshrrev_b32 v8, 1, v9")
    A.i("v_and_b32 v10, 7, v1")
    A.i("v_xor_b32 v8, v8, v10")
    A.i("v_lshlrev_b32 v8, 4, v8")
    A.i("v_lshl_add_u32 v8, v1, 10, v8")
    A.i("v_and_b32 v10, 1, v9")
    A.i("v_xor_b32 v10, 1, v10")
    A.i("v_lshl_add_u32 v8, v10, 3, v8")
    A.i(f"v_add_u32 v8, {P0B}, v8")
    A.i("v_lshrrev_b32 v10, 6, v0")
    A.i("v_xor_b32 v10, v10, v1")
    A.i("v_lshlrev_b32 v10, 4, v10")
    A.i("v_lshl_add_u32 v10, v9, 8, v10")
    A.i(f"v_add_u32 v10, {P0B}, v10")
    A.i("v_lshlrev_b32 v11, 4, v1")
    A.i("v_lshl_add_u32 v11, v9, 12, v11")
    A.i("s_lshl_b32 s25, s21, 18")
    A.i("s_lshl_b32 s26, s22, 8")
    A.i("s_add_u32 s25, s25, s26")
    A.i("s_add_u32 s26, s25, 0x20000")
    A.i("s_mov_b32 s27, 0xffff0000")
    A.i("s_lshl_b32 s23, s21, 4")
    A.i("s_add_u32 s23, s23, s22")
    A.i("s_lshl_b32 s23, s23, 10")

    A.i("s_lshr_b32 s39, s23, 3")
    A.i(f"s_add_u32 s39, s39, {F_KVF}")
    A.i("s_lshl_b32 s61, s62, 3")
    A.i("s_add_u32 s61, s61, s20")
    A.i("s_lshl_b32 s61, s61, 11")
    A.i("v_subrev_u32 v12, 16, v2")
    A.i("v_lshlrev_b32 v12, 2, v12")
    A.i("s_cmp_ge_u32 s20, 4")
    A.i(f"s_cbranch_scc1 {N}_noh")
    A.i("s_lshl_b32 s63, s62, 2")
    A.i("s_add_u32 s63, s63, s20           ; channel d")
    A.i("s_lshr_b32 s60, s63, 1")
    A.i("s_lshl_b32 s60, s60, 2")
    A.i(f"s_load_dword s82, s[{P_D}:{P_D+1}], s60                 ; D pair")
    A.i(f"v_mov_b32 {v(vWM)}, 0")
    A.i(f"v_mov_b32 {v(vCO)}, 0")
    mark(51)
    A.i("s_waitcnt vmcnt(0)")
    mark(52)
    if hearly:
        A.i("s_lshl_b32 s60, s63, 12")
        srd(A, 8, P_SSM, 4*MB)
        for u in range(4):
            A.i(f"buffer_load_dwordx4 {v(HH+4*u,4)}, v3, s[8:11], s60 offen offset:{1024*u} {nt}")
    A.i(f"s_branch {N}_h1")
    A.label(f"{N}_noh")
    A.i("s_sub_u32 s63, s20, 4             ; lw")
    A.i("s_lshr_b32 s36, s2, 1")
    A.i("s_and_b32 s37, s2, 1")
    A.i("s_lshl_b32 s37, s37, 2")
    A.i("s_add_u32 s37, s37, s63           ; k part 0..7")
    A.i("v_and_b32 v4, 7, v2               ; cc")
    A.i("v_lshrrev_b32 v5, 3, v2")
    A.i(f"s_mov_b32 s80, {16*12288}")
    A.i(f"v_mul_lo_u32 {v(vWM)}, v5, s80")
    A.i(f"v_lshl_add_u32 {v(vWM)}, v4, 4, {v(vWM)}")
    A.i(f"v_lshlrev_b32 {v(vCO)}, 5, v5")
    A.i(f"s_mul_i32 s80, s37, {128*12288}")
    A.i("s_lshl_b32 s81, s36, 7")
    A.i("s_add_u32 s80, s80, s81")
    A.i("s_lshl_b32 s37, s37, 8            ; c soffset")
    srd(A, 12, P_WM, 1024*12288)
    srd(A, 28, P_C, 2048)
    A.i(f"s_cmp_ge_u32 s2, {0 if nogemv else 192}")
    A.i("s_cselect_b32 s14, 0, s14")
    A.i("s_waitcnt vmcnt(0)")
    stream(0, E1)
    A.label(f"{N}_h1")
    if halo:
        for j in range(3):
            for e in range(2):
                A.i(f"ds_bpermute_b32 {v(96+2*j+e)}, v12, {v(K+2*(j+4)+e)}")
        A.i("v_cmp_gt_u32 vcc, 16, v2")
    WU = 48
    for pr in range(2):
        for e in range(2):
            ch = 2*pr + e
            for tap in range(4):
                src = W + 2*ch + tap//2
                dst = WU + (pr*4+tap)*2 + e
                if tap % 2 == 0: A.i(f"v_lshlrev_b32 {v(dst)}, 16, {v(src)}")
                else:            A.i(f"v_and_b32 {v(dst)}, s27, {v(src)}")
    if halo:
        A.i("s_waitcnt lgkmcnt(0)")
        for j in range(6):
            A.i(f"v_cndmask_b32 {v(K+j)}, {v(96+j)}, {v(K+j)}, vcc")
    KU, VU, R = 64, 80, 88
    for pr in range(2):
        for j in range(7):
            A.i(f"v_lshlrev_b32 {v(KU+2*j)}, 16, {v(K+2*j+pr)}")
            A.i(f"v_and_b32 {v(KU+2*j+1)}, s27, {v(K+2*j+pr)}")
        for j in range(4):
            A.i(f"v_lshlrev_b32 {v(VU+2*j)}, 16, {v(V+2*j+pr)}")
            A.i(f"v_and_b32 {v(VU+2*j+1)}, s27, {v(V+2*j+pr)}")
        w = lambda tap: v(WU+(pr*4+tap)*2, 2)
        for r in range(4):
            A.i(f"v_pk_mul_f32 {v(R+2*r,2)}, {v(KU+2*r,2)}, {w(3)}")
        for tap in (2,1,0):
            for r in range(4):
                A.i(f"v_pk_fma_f32 {v(R+2*r,2)}, {v(KU+2*(r+3-tap),2)}, {w(tap)}, {v(R+2*r,2)}")
        for r in range(4):
            A.i(f"v_pk_mul_f32 {v(R+2*r,2)}, {v(R+2*r,2)}, {v(VU+2*r,2)}")
        for e in range(2):
            d = 96 + (pr*2+e)*2
            A.i(f"v_cvt_pk_bf16_f32 {v(d)}, {v(R+6+e)}, {v(R+4+e)}")
            A.i(f"v_cvt_pk_bf16_f32 {v(d+1)}, {v(R+2+e)}, {v(R+e)}")
            A.i(f"ds_write_b64 v8, {v(d,2)} offset:{(2*pr+e)*256}")
    A.i("s_waitcnt lgkmcnt(0)")
    mark(53)
    A.i("s_barrier                         ; b0")
    mark(54)
    A.i("ds_read_b128 v[16:19], v10")
    A.i("ds_read_b128 v[20:23], v10 offset:8192")
    A.i(f"s_mul_i32 s{SV}, s{SV}, 0x9e3779b1")
    A.i(f"s_add_u32 s{SV}, s{SV}, 0x7f4a7c15")
    A.i("s_mov_b32 s21, s62")
    A.i("s_waitcnt lgkmcnt(1)")
    A.i(f"buffer_store_dwordx4 v[16:19], v11, s[32:35], s25 offen {WT}")
    A.i("s_waitcnt lgkmcnt(0)")
    A.i(f"buffer_store_dwordx4 v[20:23], v11, s[32:35], s26 offen {WT}")
    A.i("v_mov_b32 v12, 0")
    A.i(f"v_mov_b32 v13, s{SV}")
    A.label(f"{N}_p0end")
    mark(20)
    A.i("s_cmp_ge_u32 s20, 4")
    A.i(f"s_cbranch_scc1 {N}_L")

    NP = 4
    def gate(tag):
        A.label(tag)
        A.i("ds_read_b32 v15, v14 offset:8")
        A.i("s_waitcnt lgkmcnt(0)")
        A.i("v_cmp_ne_u32 vcc, 256, v15")
        A.i("s_nop 1")
        A.i(f"s_cbranch_vccnz {tag}")

    X, Y, M, MF, T, H = 16, 24, 32, 88, 136, 144
    XF, RS, LA = 176, 192, 196
    def unpack(dst, src):
        A.i(f"v_lshlrev_b32 {v(dst)}, 16, {v(src)}")
        A.i(f"v_and_b32 {v(dst+1)}, s27, {v(src)}")
    def stats(t):
        a, b_ = v(t,2), v(t+2,2)
        A.i(f"v_pk_add_f32 {a}, {v(XF,2)}, {v(XF+2,2)}")
        A.i(f"v_pk_mul_f32 {b_}, {v(XF,2)}, {v(XF,2)}")
        A.i(f"v_pk_fma_f32 {b_}, {v(XF+2,2)}, {v(XF+2,2)}, {b_}")
        for q in range(2, 8):
            b = XF + 2*q
            A.i(f"v_pk_add_f32 {a}, {a}, {v(b,2)}")
            A.i(f"v_pk_fma_f32 {b_}, {v(b,2)}, {v(b,2)}, {b_}")
        A.i(f"v_add_f32 {v(t+4)}, {v(t)}, {v(t+1)}")
        A.i(f"v_add_f32 {v(t+5)}, {v(t+2)}, {v(t+3)}")
        wave_reduce(A, [t+4, t+5])
        A.i("s_nop 0")
        A.i(f"v_readlane_b32 s52, {v(t+4)}, 63")
        A.i(f"v_readlane_b32 s53, {v(t+5)}, 63")
        A.i(f"v_mov_b32 {v(t+2)}, 0x3a800000        ; 1/1024")
        A.i("s_nop 0")
        A.i(f"v_mul_f32 {v(t)}, s52, {v(t+2)}           ; mean")
        A.i(f"v_mul_f32 {v(t+1)}, s53, {v(t+2)}         ; E[x^2]")
        A.i(f"v_fma_f32 {v(t+1)}, -{v(t)}, {v(t)}, {v(t+1)}     ; var")
        A.i(f"v_max_f32 {v(t+1)}, 0, {v(t+1)}")
        A.i(f"v_add_f32 {v(t+1)}, 0x3727c5ac, {v(t+1)}   ; + 1e-5")
        A.i(f"v_rsq_f32 {v(RS)}, {v(t+1)}")
        A.i("s_nop 0")
        A.i(f"v_mul_f32 {v(RS+2)}, -{v(t)}, {v(RS)}")
    def ln_pre(t):
        A.i("s_lshr_b32 s52, s20, 1")
        A.i(f"v_lshrrev_b32 {v(LA)}, 1, v2")
        A.i(f"v_xor_b32 {v(LA)}, s52, {v(LA)}")
        A.i(f"v_and_b32 {v(LA)}, 3, {v(LA)}")
        A.i(f"v_lshlrev_b32 {v(LA)}, 4, {v(LA)}")
        A.i(f"v_lshl_add_u32 {v(LA)}, v2, 7, {v(LA)}")
        A.i("s_and_b32 s52, s20, 1")
        A.i("s_lshl_b32 s52, s52, 3")
        A.i(f"s_add_u32 s52, s52, {LNY}")
        A.i(f"v_add_u32 {v(LA)}, s52, {v(LA)}")
        A.i(f"v_add_u32 {v(LA+1)}, {LNT}, v3")
        for q in range(8):
            unpack(XF + 2*q, XROW + q)
        stats(t)
    def ln_main(hi, after_b3=None):
        rs = f"{v(RS,2)}, {v(RS+2,2)} op_sel_hi:[1,0,0]"
        srd(A, 28, P_WS, 4*MB, WS['x1'])
        srd(A, 32, P_WS, 4*MB, WS['h2'])
        A.i("s_mov_b32 s27, 0xffff0000")
        for q in range(8):
            A.i(f"v_pk_fma_f32 {v(H+2*q,2)}, {v(XF+2*q,2)}, {rs}")
        A.i("s_barrier                         ; b3: modulation table ready, y on its way")
        if not hi: mark(3)
        for vec in (1, 0, 2, 4, 3):
            for hf in range(2):
                A.i(f"ds_read_b128 {v(M+(vec*2+hf)*4,4)}, {v(LA+1)} offset:{vec*2048 + hf*1024}")
        if after_b3: after_b3()
        SA, CA, GA = MF, MF+16, MF+32
        A.i("s_waitcnt lgkmcnt(6)")
        for q in range(8):
            unpack(CA+2*q, M+8+q); unpack(SA+2*q, M+q)
            A.i(f"v_pk_fma_f32 {v(H+2*q,2)}, {v(H+2*q,2)}, {v(CA+2*q,2)}, {v(SA+2*q,2)}")
        A.i("s_waitcnt lgkmcnt(4)")
        for q in range(8):
            unpack(GA+2*q, M+16+q)
            A.i(f"v_pk_mul_f32 {v(H+2*q,2)}, {v(H+2*q,2)}, {v(GA+2*q,2)}")
        A.i("s_waitcnt lgkmcnt(0)")
        SB, CB = MF, MF+16
        for q in range(8):
            unpack(CB+2*q, M+32+q); unpack(SB+2*q, M+24+q)
        if not hi:
            mark(16)
            A.i("s_waitcnt vmcnt(0)")
        A.i("s_barrier                         ; b4: y landed")
        if not hi: mark(17)
        for hf in range(2):
            for e in range(2):
                A.i(f"ds_read_b64 {v(Y+(hf*2+e)*2,2)}, {v(LA)} offset:{hf*8192 + e*64}")
        for q in range(8):
            t = T + (q % 2) * 2
            if q % 2 == 0: A.i(f"s_waitcnt lgkmcnt({3 - q//2})")
            unpack(t, Y + q)
            A.i(f"v_pk_fma_f32 {v(H+2*q,2)}, {v(H+2*q,2)}, {v(t,2)}, {v(XF+2*q,2)}")
            A.i(f"v_cvt_pk_bf16_f32 {v(X+q)}, {v(H+2*q)}, {v(H+2*q+1)}")
            unpack(XF+2*q, X+q)
        if not lazyx1:
            for hf in range(2):
                A.i(f"buffer_store_dwordx4 {v(X+hf*4,4)}, v3, s[28:31], s61 offen offset:{hf*1024} {WT}")
        stats(8)
        for q in range(8):
            A.i(f"v_pk_fma_f32 {v(H+2*q,2)}, {v(XF+2*q,2)}, {rs}")
            A.i(f"v_pk_fma_f32 {v(H+2*q,2)}, {v(H+2*q,2)}, {v(CB+2*q,2)}, {v(SB+2*q,2)}")
            A.i(f"v_cvt_pk_bf16_f32 {v(Y+q)}, {v(H+2*q)}, {v(H+2*q+1)}")
        for hf in range(2):
            A.i(f"buffer_store_dwordx4 {v(Y+hf*4,4)}, v3, s[32:35], s61 offen offset:{hf*1024} {WT}")
        A.i("s_lshl_b32 s22, s21, 10")
        A.i(f"v_mov_b32 v8, {CNT}")
    def ln_signal(tag):
        arrive(tag, 20, 8, "s22", F_H2, vc=8, vt=9)
        if lazyx1:
            srd(A, 16, P_WS, 4*MB, WS['x1'])
            for hf in range(2):
                A.i(f"buffer_store_dwordx4 {v(X+hf*4,4)}, v3, s[16:19], s61 offen offset:{hf*1024} {WT}")
            A.i("s_mov_b32 s61, s22")
    def x1_signal(tag, vc, vt, wait="vmcnt(0)"):
        if lazyx1:
            A.i(f"v_mov_b32 {v(vc)}, {CNT}")
            arrive(tag, 32, 8, "s61", F_X1, vc=vc, vt=vt, wait=wait)

    def g1_ids():
        A.i("s_and_b32 s21, s2, 1")
        A.i("s_lshl_b32 s21, s21, 3")
        A.i("s_bfe_u32 s27, s2, 0x30003")
        A.i("s_add_u32 s21, s21, s27            ; sblk")
        A.i("s_bfe_u32 s22, s2, 0x20001")
        A.i("s_lshl_b32 s22, s22, 2")
        A.i("s_lshr_b32 s27, s2, 6")
        A.i("s_add_u32 s22, s22, s27            ; fblk")
    def g2_ids():
        A.i("s_lshr_b32 s52, s22, 3             ; khalf")
        A.i("s_and_b32 s22, s22, 7")
    def blkidx(dst, c, j7, tmp):
        A.i(f"s_sub_u32 {tmp}, {c}, 6")
        A.i(f"s_cmp_ge_i32 {tmp}, {j7}")
        A.i(f"s_cselect_b32 {tmp}, {c}, {tmp}")
        A.i(f"s_add_u32 {dst}, {c}, {j7}")
        A.i(f"s_cmp_lt_u32 {c}, 6")
        A.i(f"s_cselect_b32 {dst}, {dst}, {tmp}")

    A.i("s_mov_b32 s22, s63                ; channel d")
    A.i(f"s_mul_i32 s62, s20, {WB}")
    A.i("s_lshl_b32 s24, s22, 12           ; d*4096")
    if not hearly:
        srd(A, 16, P_SSM, 4*MB)
        for u in range(4):
            A.i(f"buffer_load_dwordx4 {v(HH+4*u,4)}, v3, s[16:19], s24 offen offset:{1024*u} {nt}")
    if earlysig:
        arrive(f"{N}_ak", 16, 8, "s23", F_KV, wait="vmcnt(0)" if hearly else "vmcnt(4)", fast="s39" if fastkv else None)
        mark(21)
    Hh, XR = HH, 16
    A.i("v_mov_b32 v32, 0"); A.i("v_mov_b32 v33, 0"); A.i("v_mov_b32 v34, 0"); A.i("v_mov_b32 v35, 0")

    A.i("v_add_u32 v4, s62, v3")
    A.i(f"ds_write_b128 v4, v[32:35] offset:{XO}")
    A.i("v_min_u32 v5, 25, v2")
    A.i("v_lshlrev_b32 v5, 4, v5")
    A.i("v_add_u32 v5, s62, v5")
    A.i(f"ds_write_b128 v5, v[32:35] offset:{XO+1024}")
    A.i("v_and_b32 v6, 15, v2              ; r / i")
    A.i("v_lshrrev_b32 v7, 4, v2           ; g")
    A.i("v_and_b32 v8, 3, v6")
    A.i(f"v_mul_u32_u24 v8, {HC}, v8")
    A.i("v_lshl_add_u32 v5, v7, 4, v8")
    A.i("v_add_u32 v5, s62, v5")
    A.i("ds_write_b128 v5, v[32:35]")
    A.i("v_lshrrev_b32 v5, 2, v2")
    A.i("v_mul_u32_u24 v5, 96, v5")
    A.i("v_and_b32 v9, 3, v2")
    A.i("v_lshl_add_u32 v5, v9, 4, v5")
    A.i("v_add_u32 v5, s62, v5")
    A.i("v_lshrrev_b32 v9, 2, v6")
    A.i("v_lshlrev_b32 v10, 1, v7")
    A.i("v_sub_u32 v9, v9, v10")
    A.i("v_add_u32 v9, 7, v9")
    A.i("v_lshl_add_u32 v8, v9, 3, v8")
    A.i("v_add_u32 v8, s62, v8             ; vA")
    A.i("v_mul_u32_u24 v9, 96, v6")
    A.i("v_lshl_add_u32 v9, v7, 4, v9")
    A.i(f"s_add_u32 s25, s62, {XO + 96*14}")
    A.i("v_add_u32 v9, s25, v9             ; vB - 96")
    ACC = 48
    FS = [80, 128]
    for r in range(32):
        A.i(f"v_mov_b32 {v(ACC+r)}, 0")
    DI = 36
    A.i("v_lshlrev_b32 v10, 3, v7")
    A.i("v_add_u32 v10, 7, v10")
    A.i("v_sub_u32 v10, v10, v6")
    A.i("v_and_b32 v11, 1, v10")
    A.i("v_lshlrev_b32 v11, 4, v11")
    A.i("v_ashrrev_i32 v10, 1, v10")
    A.i("s_and_b32 s25, s22, 1")
    A.i("s_lshl_b32 s25, s25, 4")
    A.i("s_lshr_b32 s82, s82, s25")
    A.i("s_and_b32 s82, s82, 0xffff")
    A.i("v_lshlrev_b32 v11, v11, s82")
    for rt in range(2):
        for q in range(4):
            A.i(f"v_cmp_eq_u32 s[{8+2*q}:{9+2*q}], {q + 8*rt}, v10")
        for q in range(4):
            A.i(f"v_cndmask_b32 {v(DI+4*rt+q)}, 0, v11, s[{8+2*q}:{9+2*q}]")
    if not earlysig:
        arrive(f"{N}_ak", 16, 8, "s23", F_KV, wait="vmcnt(0)" if hearly else "vmcnt(4)", fast="s39" if fastkv else None)
        mark(21)
    P, TT = 96, 100
    for u in range(4):
        R = Hh + 4*u
        p = P + 2*(u % 2)
        t = TT + 12*(u % 2)
        A.i(f"s_waitcnt vmcnt({3-u})")
        if u == 0:
            A.i(f"v_mov_b32 {v(p)}, 0"); A.i(f"v_mov_b32 {v(p+1)}, 0")
        else:
            A.i(f"v_mov_b32_dpp {v(p)}, {v(R-2)} wave_ror:1 row_mask:0xf bank_mask:0xf")
            A.i(f"v_mov_b32_dpp {v(p+1)}, {v(R-1)} wave_ror:1 row_mask:0xf bank_mask:0xf")
        A.i(f"ds_write_b128 v4, {v(R,4)} offset:{3*HC + 64 + 1024*u}")
        A.i(f"v_mov_b32_dpp {v(p)}, {v(R+2)} wave_shr:1 row_mask:0xf bank_mask:0xf")
        A.i(f"v_mov_b32_dpp {v(p+1)}, {v(R+3)} wave_shr:1 row_mask:0xf bank_mask:0xf")
        A.i(f"v_alignbit_b32 {v(t+5)}, {v(R+1)}, {v(R)}, 16")
        A.i(f"v_alignbit_b32 {v(t+6)}, {v(R+2)}, {v(R+1)}, 16")
        A.i(f"v_alignbit_b32 {v(t+7)}, {v(R+3)}, {v(R+2)}, 16")
        A.i(f"v_alignbit_b32 {v(t+4)}, {v(R)}, {v(p+1)}, 16")
        A.i(f"ds_write_b128 v4, {v(t+4,4)} offset:{2*HC + 64 + 1024*u}")
        A.i(f"v_mov_b32 {v(t)}, {v(p+1)}")
        for e in range(3): A.i(f"v_mov_b32 {v(t+1+e)}, {v(R+e)}")
        A.i(f"ds_write_b128 v4, {v(t,4)} offset:{1*HC + 64 + 1024*u}")
        A.i(f"v_alignbit_b32 {v(t+8)}, {v(p+1)}, {v(p)}, 16")
        for e in range(3): A.i(f"v_mov_b32 {v(t+9+e)}, {v(t+4+e)}")
        A.i(f"ds_write_b128 v4, {v(t+8,4)} offset:{64 + 1024*u}")
    mark(23)
    A.i("s_lshr_b32 s25, s21, 4")
    A.i("s_lshl_b32 s25, s25, 14")
    A.i(f"s_add_u32 s25, s25, {F_KV}")
    A.i("v_lshlrev_b32 v10, 10, v6")
    A.i("v_add_u32 v10, s25, v10")
    srd(A, 28, P_WS, 4*MB, WS['kvT'])
    if fastkv:
        A.i("s_lshr_b32 s25, s21, 4")
        A.i("s_lshl_b32 s25, s25, 11")
        A.i(f"s_add_u32 s25, s25, {F_KVF}")
        A.i("v_lshlrev_b32 v11, 7, v6")
        A.i("v_add_u32 v11, s25, v11")
        poll2(A, f"{N}_pk", 10, 11, 12)
    else:
        poll(A, f"{N}_pk", 10)
    mark(22)
    for u in range(4):
        A.i(f"buffer_load_dwordx4 {v(XR+4*u,4)}, v3, s[28:31], s24 offen offset:{1024*u} {WT}")
    xrow_load()
    A.i("v_mov_b32 v15, 1")
    A.i("ds_add_u32 v14, v15 offset:8")
    for u in range(4):
        A.i(f"s_waitcnt vmcnt({5-u})")
        A.i(f"ds_write_b128 v5, {v(XR+4*u,4)} offset:{XO + 96*15 + 96*16*u}")
    A.i("s_waitcnt lgkmcnt(0)")
    mark(0)
    def creads(fs, par):
        out = []
        F = FS[fs]
        def ar(j):
            for rt in range(2):
                for hb in range(2):
                    out.append(f"ds_read_b64 {v(F+(j*2+rt)*4+2*hb,2)}, v8 offset:{64*(par+16*j) + 32*rt + 8*hb}")
        ar(0)
        for d in range(4):
            out.append(f"ds_read_b128 {v(F+32+4*d,4)}, v9 offset:{96*(16*d + 1 - par)}")
        for j in range(1,4): ar(j)
        return out
    def cbody(fs, side):
        F = FS[fs]
        side = list(side)
        n = 0
        for j in range(4):
            A.i("s_waitcnt lgkmcnt(12)" if n == 0 else "s_waitcnt lgkmcnt(15)")
            for d in range(4-j):
                for rt in range(2):
                    ac = ACC + ((j+d)*2+rt)*4
                    A.i(f"v_mfma_f32_16x16x32_bf16 {v(ac,4)}, {v(F+(j*2+rt)*4,4)}, {v(F+32+4*d,4)}, {v(ac,4)}")
                    if side: A.i(side.pop(0))
                    n += 1
        for x in side: A.i(x)
    for x in creads(0, 0): A.i(x)
    A.i("s_waitcnt lgkmcnt(12)")
    for d in range(4):
        for rt in range(2):
            ac = ACC + (d*2+rt)*4
            A.i(f"v_mfma_f32_16x16x32_bf16 {v(ac,4)}, {v(DI+4*rt,4)}, {v(FS[0]+32+4*d,4)}, {v(ac,4)}")
    A.i("s_mov_b32 s26, 8")
    A(".p2align 6")
    A.label(f"{N}_cv")
    cbody(0, creads(1, 1))
    A.i("v_add_u32 v8, 128, v8")
    A.i("v_subrev_u32 v9, 192, v9")
    cbody(1, creads(0, 0))
    A.i("s_sub_u32 s26, s26, 1")
    A.i("s_cmp_lg_u32 s26, 0")
    A.i(f"s_cbranch_scc1 {N}_cv")
    A.i("v_mul_u32_u24 v10, 80, v6")
    A.i("v_lshl_add_u32 v10, v7, 3, v10")
    A.i("v_add_u32 v10, s62, v10")
    srd(A, 16, P_WS, 4*MB, WS['y4'])
    A.i("s_waitcnt lgkmcnt(0)")
    for G in range(4):
        for rt in range(2):
            ac = ACC + (G*2+rt)*4
            d = 16 + (G*2+rt)*2
            A.i(f"v_cvt_pk_bf16_f32 {v(d)}, {v(ac)}, {v(ac+1)}")
            A.i(f"v_cvt_pk_bf16_f32 {v(d+1)}, {v(ac+2)}, {v(ac+3)}")
            A.i(f"ds_write_b64 v10, {v(d,2)} offset:{80*16*G + 32*rt}")
    A.i("v_lshrrev_b32 v11, 4, v0")
    A.i("v_mul_u32_u24 v11, 80, v11")
    A.i("v_lshl_add_u32 v11, v6, 2, v11")
    A.i(f"v_add_u32 v13, {3*WB}, v11")
    A.i("v_lshlrev_b32 v12, 4, v0")
    A.i("s_lshl_b32 s25, s21, 14")
    A.i("s_mov_b32 s34, 0x05040100")
    A.i("s_mov_b32 s35, 0x07060302")
    A.i("s_waitcnt lgkmcnt(0)")
    mark(1)
    A.i("v_mov_b32 v15, 1")
    A.i("ds_add_u32 v14, v15")
    A.label(f"{N}_ys")
    A.i("ds_read_b32 v15, v14")
    A.i("s_waitcnt lgkmcnt(0)")
    A.i("v_cmp_ne_u32 vcc, 256, v15")
    A.i("s_nop 1")
    A.i(f"s_cbranch_vccnz {N}_ys")
    mark(12)
    for u in range(4):
        for ch in range(4):
            if ch < 3: A.i(f"ds_read_b32 {v(48+4*u+ch)}, v11 offset:{ch*WB + 80*16*u}")
            else:      A.i(f"ds_read_b32 {v(48+4*u+ch)}, v13 offset:{80*16*u}")
    for u in range(4):
        A.i(f"s_waitcnt lgkmcnt({12-4*u})")
        s0 = 48+4*u; d = 64+4*u
        A.i(f"v_perm_b32 {v(d)}, {v(s0+1)}, {v(s0)}, s34")
        A.i(f"v_perm_b32 {v(d+1)}, {v(s0+3)}, {v(s0+2)}, s34")
        A.i(f"v_perm_b32 {v(d+2)}, {v(s0+1)}, {v(s0)}, s35")
        A.i(f"v_perm_b32 {v(d+3)}, {v(s0+3)}, {v(s0+2)}, s35")
        A.i(f"s_add_u32 s26, s25, {4096*u}")
        A.i(f"buffer_store_dwordx4 {v(d,4)}, v12, s[16:19], s26 offen {WT}")
    mark(13)
    A.i("s_lshl_b32 s22, s2, 10")
    arrive(f"{N}_ay", 28, 4, "s22", F_BAR)
    mark(2)
    A.i("s_mov_b32 s27, 0xffff0000")
    ln_pre(96)
    A.i("v_lshrrev_b32 v4, 4, v2")
    A.i("v_xor_b32 v4, v4, v2")
    A.i("v_and_b32 v4, 3, v4")
    A.i("v_lshlrev_b32 v4, 4, v4")
    A.i("v_lshrrev_b32 v5, 2, v2")
    A.i("v_lshl_add_u32 v4, v5, 14, v4")
    A.i("s_lshl_b32 s23, s21, 6")
    A.i("s_lshl_b32 s24, s20, 20")
    A.i("s_add_u32 s23, s23, s24")
    srd(A, 12, P_WS, 4*MB, WS['y4'])
    A.i("s_lshl_b32 s24, s20, 12")
    A.i(f"s_add_u32 m0, s24, {LNY}")
    A.i("s_cmp_lg_u32 s20, 0")
    A.i(f"s_cbranch_scc1 {N}_gw")
    A.i(f"v_mov_b32 v13, s{SV}")
    A.i("v_lshlrev_b32 v12, 10, v2")
    A.i(f"v_add_u32 v12, {F_BAR}, v12")
    poll_all(A, f"{N}_pg", 12, 4, cnt=39)
    A.i("v_mov_b32 v15, 1")
    A.i("ds_write_b32 v14, v15 offset:36")
    A.i(f"s_branch {N}_gx")
    A.label(f"{N}_gw")
    A.i("ds_read_b32 v15, v14 offset:36")
    A.i("s_waitcnt lgkmcnt(0)")
    A.i("v_cmp_ne_u32 vcc, 1, v15")
    A.i("s_nop 1")
    A.i(f"s_cbranch_vccnz {N}_gw")
    A.label(f"{N}_gx")
    mark(14)
    for e in range(4):
        A.i(f"buffer_load_dwordx4 v4, s[12:15], s23 offen {WT} lds")
        A.i("s_add_u32 m0, m0, 1024")
        A.i("s_add_u32 s23, s23, 0x40000")
    A.i("s_or_b32 s24, s2, s20")
    A.i("s_cmp_lg_u32 s24, 0")
    A.i(f"s_cbranch_scc1 {N}_gb")
    A.i(f"v_mov_b32 v12, {F_NONCE}")
    A.i(f"buffer_store_dword v13, v12, s[{FL}:{FL+3}], 0 offen {WT}")
    A.label(f"{N}_gb")
    ln_main(False)
    ACC = 128
    FS = [16, 60]
    vXb0, vXb1, vWb0, vWb1 = 4, 5, 6, 7
    vX0, vX1, vW0, vW1 = 104, 105, 106, 107
    A.i("s_and_b32 s28, s20, 1              ; ws")
    A.i("s_lshr_b32 s29, s20, 1             ; wf")
    A.i("v_and_b32 v110, 15, v2             ; n")
    A.i("v_lshrrev_b32 v12, 4, v2           ; g")
    A.i("v_and_b32 v13, 7, v110")
    A.i("v_xor_b32 v13, v13, v12")
    A.i("v_lshlrev_b32 v13, 4, v13")
    A.i("s_lshl_b32 s27, s28, 13")
    A.i(f"s_add_u32 s27, s27, {G1X}")
    A.i(f"v_lshl_add_u32 {v(vXb0)}, v110, 7, v13")
    A.i(f"v_add_u32 {v(vXb0)}, s27, {v(vXb0)}")
    A.i(f"v_xor_b32 {v(vXb1)}, 64, {v(vXb0)}")
    A.i("v_lshrrev_b32 v13, 2, v110")
    A.i("v_lshl_add_u32 v13, v12, 3, v13")
    A.i("v_mul_u32_u24 v13, 448, v13")
    A.i("v_and_b32 v14, 3, v2")
    A.i("v_lshl_add_u32 v13, v14, 3, v13")
    A.i("s_mul_i32 s27, s29, 224")
    A.i("v_add_u32 v13, s27, v13")
    A.i("v_and_b32 v14, 1, v12")
    A.i("v_lshlrev_b32 v14, 5, v14")
    A.i(f"v_add_u32 {v(vWb0)}, v13, v14")
    A.i(f"v_sub_u32 {v(vWb1)}, v13, v14")
    A.i("s_cmp_eq_u32 s29, 0")
    A.i(f"s_cbranch_scc1 {N}_noswap")
    A.i(f"v_swap_b32 {v(vWb0)}, {v(vWb1)}")
    A.label(f"{N}_noswap")
    for r in range(32, 112):
        A.i(f"v_mov_b32 {v(ACC+r)}, 0")
    mark(19)
    ln_signal(f"{N}_ah")
    mark(4)
    for r in range(32):
        A.i(f"v_mov_b32 {v(ACC+r)}, 0")
    g1_ids()
    srd(A, 16, P_WS, 2048*3584*2, WS['act'])
    def g1reads(fs, kk):
        out = []
        Xr, W = FS[fs], FS[fs] + 16
        vx = vX0 if kk == 0 else vX1
        def wr(t):
            for hb in range(2):
                out.append(f"ds_read_b64_tr_b16 {v(W+4*t+2*hb,2)}, {v(vW0 if t%2==0 else vW1)} offset:{(32*kk+4*hb)*448 + 32*t}")
        wr(0)
        for st in range(4):
            out.append(f"ds_read_b128 {v(Xr+4*st,4)}, {v(vx)} offset:{st*2048}")
        for t in range(1, 7): wr(t)
        return out
    def g1phase(fs, side):
        Xr, W = FS[fs], FS[fs] + 16
        side = list(side)
        for t in range(7):
            for st in range(4):
                ac = ACC + (t*4+st)*4
                A.i(f"v_mfma_f32_16x16x32_bf16 {v(ac,4)}, {v(W+4*t,4)}, {v(Xr+4*st,4)}, {v(ac,4)}")
                if side: A.i(side.pop(0))
        for x in side: A.i(x)
    A.i("s_mov_b32 s26, 0")
    A.i("s_mov_b32 s24, 0")
    A.i(f"v_mov_b32 {v(vX0)}, {v(vXb0)}")
    A.i(f"v_mov_b32 {v(vX1)}, {v(vXb1)}")
    A.i(f"v_mov_b32 {v(vW0)}, {v(vWb0)}")
    A.i(f"v_mov_b32 {v(vW1)}, {v(vWb1)}")
    A.i("s_mov_b32 s23, 16")
    x1_signal(f"{N}_ax", 8, 9)
    A.i("s_barrier                          ; G1 B0")
    mark(5)
    for x in g1reads(0, 0): A.i(x)
    A(".p2align 6")
    A.label(f"{N}_g1c")
    A.i("s_waitcnt lgkmcnt(0)")
    nxt = ["s_add_u32 s26, s26, 28672", "s_add_u32 s24, s24, 16384", "s_cmp_eq_u32 s24, 49152",
           "s_cselect_b32 s26, 0, s26", "s_cselect_b32 s24, 0, s24",
           f"v_add_u32 {v(vX0)}, s24, {v(vXb0)}", f"v_add_u32 {v(vW0)}, s26, {v(vWb0)}",
           f"v_add_u32 {v(vW1)}, s26, {v(vWb1)}", f"v_add_u32 {v(vX1)}, s24, {v(vXb1)}"]
    g1phase(0, g1reads(1, 1) + nxt)
    A.i("s_waitcnt lgkmcnt(0)")
    A.i("s_barrier")
    g1phase(1, g1reads(0, 0) + ["s_sub_u32 s23, s23, 1", "s_cmp_lg_u32 s23, 0"])
    A.i(f"s_cbranch_scc1 {N}_g1c")
    mark(6)
    A.i("s_lshl_b32 s27, s21, 3")
    A.i("s_lshl_b32 s30, s28, 2")
    A.i("s_add_u32 s27, s27, s30")
    A.i("s_mul_i32 s27, s27, 112")
    A.i("s_mul_i32 s30, s22, 7")
    A.i("s_add_u32 s27, s27, s30")
    A.i("s_lshl_b32 s27, s27, 10")
    A.i("v_and_b32 v13, 1, v12")
    A.i("v_lshrrev_b32 v14, 1, v12")
    A.i("v_lshl_or_b32 v13, v13, 1, v14     ; pi(g)")
    A.i("v_lshlrev_b32 v108, 4, v13")
    A.i("v_lshlrev_b32 v13, 8, v13")
    A.i("v_lshl_add_u32 v13, v110, 4, v13")
    A.i("v_lshlrev_b32 v14, 8, v14")
    A.i("v_lshl_add_u32 v14, v110, 4, v14")
    A.i("v_and_b32 v15, 1, v12")
    A.i(f"v_mul_u32_u24 v15, {112*1024}, v15")
    A.i("v_add_u32 v14, v15, v14")
    A.i("s_lshl_b32 s30, s28, 13")
    A.i(f"s_add_u32 s30, s30, {G2X}")
    A.i("v_add_u32 v10, s30, v13")
    A.i("v_lshrrev_b32 v11, 1, v12")
    A.i("v_lshlrev_b32 v11, 8, v11")
    A.i("v_lshl_add_u32 v11, v110, 4, v11")
    A.i("v_and_b32 v9, 1, v12")
    A.i("v_lshl_add_u32 v11, v9, 11, v11")
    A.i("v_add_u32 v11, s30, v11")
    A.i(f"s_mov_b32 s32, 0x{LOG2E ^ 0x80000000:x}")
    A.i("s_waitcnt lgkmcnt(0)")
    def silu4(dst, ac, tmp):
        A.i(f"v_pk_mul_f32 {v(tmp,2)}, {v(ac,2)}, s[32:33] op_sel_hi:[1,0]")
        A.i(f"v_pk_mul_f32 {v(tmp+2,2)}, {v(ac+2,2)}, s[32:33] op_sel_hi:[1,0]")
        for r in range(4): A.i(f"v_exp_f32 {v(tmp+r)}, {v(tmp+r)}")
        A.i(f"v_pk_add_f32 {v(tmp,2)}, {v(tmp,2)}, 1.0 op_sel_hi:[1,0]")
        A.i(f"v_pk_add_f32 {v(tmp+2,2)}, {v(tmp+2,2)}, 1.0 op_sel_hi:[1,0]")
        for r in range(4): A.i(f"v_rcp_f32 {v(tmp+r)}, {v(tmp+r)}")
        A.i(f"v_pk_mul_f32 {v(tmp,2)}, {v(tmp,2)}, {v(ac,2)}")
        A.i(f"v_pk_mul_f32 {v(tmp+2,2)}, {v(tmp+2,2)}, {v(ac+2,2)}")
        A.i(f"v_cvt_pk_bf16_f32 {v(dst)}, {v(tmp)}, {v(tmp+1)}")
        A.i(f"v_cvt_pk_bf16_f32 {v(dst+1)}, {v(tmp+2)}, {v(tmp+3)}")
    def ebody(wf):
        pairs = [(0,0),(2,1),(4,2)] if wf == 0 else [(1,4),(3,5),(5,6)]
        single = 6 if wf == 0 else 0
        cnt = 0
        for st in range(4):
            A.i(f"s_add_u32 s30, s27, {st*112*1024}")
            for (t, blk) in pairs:
                d = 16 + (cnt % 4) * 4
                cnt += 1
                silu4(d, ACC + (t*4+st)*4, 40)
                silu4(d+2, ACC + ((t+1)*4+st)*4, 44)
                A.i("s_nop 1")
                A.i(f"v_permlane16_swap_b32 {v(d)}, {v(d+2)}")
                A.i(f"v_permlane16_swap_b32 {v(d+1)}, {v(d+3)}")
                A.i(f"buffer_store_dwordx4 {v(d,4)}, {'v13' if blk < 4 else 'v15'}, s[16:19], s30 offen offset:{(blk%4)*1024} {WT}")
                if blk < 6: A.i(f"ds_write_b128 v10, {v(d,4)} offset:{(blk//2)*16384 + st*2048 + (blk%2)*1024}")
            if st % 2 == 0:
                d = 32 + (st // 2) * 4
                silu4(d, ACC + (single*4+st)*4, 40)
                silu4(d+2, ACC + (single*4+st+1)*4, 44)
                A.i("s_nop 1")
                A.i(f"v_permlane16_swap_b32 {v(d)}, {v(d+2)}")
                A.i(f"v_permlane16_swap_b32 {v(d+1)}, {v(d+3)}")
                A.i(f"buffer_store_dwordx4 {v(d,4)}, v14, s[16:19], s30 offen offset:{3*1024 + wf*512} {WT}")
                A.i(f"ds_write_b128 v11, {v(d,4)} offset:{16384 + 1024 + st*2048 + wf*512}")
    A.i("v_add_u32 v15, 4096, v13")
    A.i("s_cmp_eq_u32 s29, 0")
    A.i(f"s_cbranch_scc0 {N}_epi1")
    ebody(0)
    A.i(f"s_branch {N}_epi2")
    A.label(f"{N}_epi1")
    ebody(1)
    A.label(f"{N}_epi2")
    mark(7)
    A.i("s_lshl_b32 s62, s21, 4")
    A.i("s_add_u32 s62, s62, s22")
    A.i("s_lshl_b32 s62, s62, 10")

    FS = [16, 48]
    vXb, vWb = 12, 13
    vX, vW = 4, 8
    X1, GB = 96, 112
    g2_ids()
    A.i("v_lshl_add_u32 v81, v110, 11, v108")
    A.i("s_lshl_b32 s30, s21, 1")
    A.i("s_add_u32 s30, s30, s28")
    A.i("s_lshl_b32 s30, s30, 17")
    A.i("s_lshl_b32 s31, s22, 1")
    A.i("s_add_u32 s31, s31, s29")
    A.i("s_lshl_b32 s31, s31, 1")
    A.i("s_add_u32 s31, s31, s52")
    A.i("s_lshl_b32 s31, s31, 6")
    A.i("s_add_u32 s30, s30, s31")
    A.i("s_lshl_b32 s31, s31, 1")
    A.i(f"s_add_u32 s31, s31, {5*4096}")
    A.i("v_lshrrev_b32 v14, 4, v2           ; g")
    A.i("v_lshrrev_b32 v80, 2, v110")
    A.i("v_lshl_add_u32 v82, v14, 3, v80")
    A.i("v_and_b32 v83, 1, v14")
    A.i("v_xor_b32 v83, s29, v83")
    A.i("v_lshl_or_b32 v80, v83, 2, v80")
    A.i("v_lshlrev_b32 v80, 5, v80")
    A.i("v_and_b32 v83, 3, v2")
    A.i("v_lshl_add_u32 v80, v83, 3, v80")
    A.i(f"v_lshl_add_u32 {v(vWb)}, v82, 8, v80")
    A.i("s_lshl_b32 s27, s52, 6")
    A.i(f"v_xor_b32 {v(vWb)}, s27, {v(vWb)}")
    A.i("s_lshl_b32 s27, s28, 13")
    A.i(f"s_add_u32 s27, s27, {G2X}")
    A.i(f"v_add_u32 {v(vXb)}, s27, v3")
    A.i("v_mov_b32 v83, 0")
    A.i(f"v_mov_b32 v94, s{SV}")
    A.i(f"v_mov_b32 v92, {CNT}")
    def g2addr():
        out = ["s_add_u32 s26, s26, 16384", "s_and_b32 s26, s26, 0xffff",
               f"v_add_u32 {v(vW)}, s26, {v(vWb)}", f"v_add_u32 {v(vX)}, s26, {v(vXb)}"]
        for t in range(1, 4):
            out.append(f"v_xor_b32 {v(vW+t)}, {32*t}, {v(vW)}")
        return out
    def g2reads(fs, kk):
        out = []
        Xr, W = FS[fs], FS[fs] + 16
        def wr(t):
            for hb in range(2):
                out.append(f"ds_read_b64_tr_b16 {v(W+4*t+2*hb,2)}, {v(vW+t)} offset:{kk*8192 + hb*1024}")
        wr(0)
        for st in range(4):
            out.append(f"ds_read_b128 {v(Xr+4*st,4)}, {v(vX)} offset:{st*2048 + kk*1024}")
        for t in range(1, 4): wr(t)
        return out
    def g2phase(fs, side):
        Xr, W = FS[fs], FS[fs] + 16
        side = list(side)
        n = 0
        for t in range(4):
            for st in range(4):
                ac = ACC + (t*4+st)*4
                A.i(f"v_mfma_f32_16x16x32_bf16 {v(ac,4)}, {v(W+4*t,4)}, {v(Xr+4*st,4)}, {v(ac,4)}")
                n += 1
                for _ in range(1 if n <= 12 else 2):
                    if side: A.i(side.pop(0))
        for x in side: A.i(x)
    A.i("s_mov_b32 s26, 49152")
    for x in g2addr(): A.i(x)
    srd(A, 8, P_WS, 4*MB, WS['x1'])
    srd(A, 12, P_WS, 2*24576, WS['mod'])
    srd(A, 16, P_OUT, 4*MB)
    A.i("v_lshlrev_b32 v15, 1, v108")
    A.i(f"s_add_u32 s25, s31, 24576")
    A.i("s_mov_b32 s23, 28")
    A.i("s_waitcnt lgkmcnt(0)")
    A.i("s_barrier                          ; G2 B0")
    mark(9)
    for x in g2reads(0, 0): A.i(x)
    for r in range(64):
        A.i(f"v_mov_b32 {v(ACC+r)}, 0")
    arrive(f"{N}_aa", 24, 4, "s62", F_ACT, vc=92, vt=93)
    mark(8)
    for st in range(4):
        A.i(f"s_add_u32 s{32+st}, s30, {st*16*2048}")
        A.i(f"buffer_load_dwordx4 {v(X1+4*st,4)}, v81, s[8:11], s{32+st} offen {WT}")
    for h in range(2):
        for e in range(2):
            A.i(f"buffer_load_dwordx4 {v(GB+8*h+4*e,4)}, v15, s[12:15], {'s31' if h==0 else 's25'} offen offset:{16*e} {WT}")
    srd(A, 8, P_WS, 4*MB, WS['xch'])
    A(".p2align 6")
    A.label(f"{N}_g2c")
    A.i("s_waitcnt lgkmcnt(0)")
    g2phase(0, g2reads(1, 1) + g2addr())
    A.i("s_waitcnt lgkmcnt(0)")
    A.i("s_barrier")
    g2phase(1, g2reads(0, 0) + ["s_sub_u32 s23, s23, 1", "s_cmp_lg_u32 s23, 0"])
    A.i(f"s_cbranch_scc1 {N}_g2c")
    mark(10)
    A.i("s_lshl_b32 s27, s2, 2")
    A.i("s_add_u32 s27, s27, s20")
    A.i("s_xor_b32 s36, s27, 16")
    A.i("s_lshl_b32 s53, s27, 12")
    A.i("s_lshl_b32 s54, s36, 12")
    A.i("s_lshl_b32 s63, s2, 10")
    A.i("s_lshl_b32 s27, s20, 7")
    A.i("s_add_u32 s63, s63, s27")
    A.i("s_xor_b32 s27, s63, 4096")
    A.i("v_mov_b32 v82, s27")
    A.i("s_mov_b32 s27, 0xffff0000")
    A.i("s_waitcnt vmcnt(0) lgkmcnt(0)")
    send, keep = ACC + 32, ACC
    for st in range(4):
        d, a2 = send + st*4, send + 16 + st*4
        A.i(f"v_cvt_pk_bf16_f32 {v(d)}, {v(d)}, {v(d+1)}")
        A.i(f"v_cvt_pk_bf16_f32 {v(d+1)}, {v(d+2)}, {v(d+3)}")
        A.i(f"v_cvt_pk_bf16_f32 {v(d+2)}, {v(a2)}, {v(a2+1)}")
        A.i(f"v_cvt_pk_bf16_f32 {v(d+3)}, {v(a2+2)}, {v(a2+3)}")
        A.i("s_nop 1")
        A.i(f"v_permlane16_swap_b32 {v(d)}, {v(d+2)}")
        A.i(f"v_permlane16_swap_b32 {v(d+1)}, {v(d+3)}")
        A.i(f"buffer_store_dwordx4 {v(d,4)}, v3, s[8:11], s53 offen offset:{1024*st} {WT}")
    for q in range(4):
        A.i(f"v_pk_add_f32 {v(84+2*q,2)}, {v(GB+2*q,2)}, {v(GB+8+2*q,2)}")
        A.i(f"v_cvt_pk_bf16_f32 v92, {v(84+2*q)}, {v(85+2*q)}")
        A.i(f"v_lshlrev_b32 {v(84+2*q)}, 16, v92")
        A.i(f"v_and_b32 {v(85+2*q)}, s27, v92")
    def base(st):
        p, q = keep + st*4, keep + 16 + st*4
        for r in range(4):
            A.i(f"v_permlane16_swap_b32 {v(p+r)}, {v(q+r)}")
        for hh in range(4):
            src = (p if hh < 2 else q) + 2*(hh % 2)
            t = 32 + 2*(hh % 2)
            A.i(f"v_lshlrev_b32 {v(t)}, 16, {v(X1+4*st+hh)}")
            A.i(f"v_and_b32 {v(t+1)}, s27, {v(X1+4*st+hh)}")
            A.i(f"v_pk_fma_f32 {v(src,2)}, {v(src,2)}, {v(84+2*hh,2)}, {v(t,2)}")
    base(0); base(1)
    A.i("s_waitcnt vmcnt(0)")
    mark(62)
    A.i("s_mov_b64 exec, 1")
    A.i(f"buffer_store_dword v94, off, s[{FL}:{FL+3}], s63 {WT}")
    A.i("s_mov_b64 exec, -1")
    base(2); base(3)
    poll(A, f"{N}_px", 82, vt=95)
    mark(11)
    for st in range(4):
        A.i(f"buffer_load_dwordx4 {v(16+4*st,4)}, v3, s[8:11], s54 offen offset:{1024*st} {WT}")
    for st in range(4):
        p, q = keep + st*4, keep + 16 + st*4
        A.i("s_waitcnt vmcnt(3)")
        for hh in range(4):
            src = (p if hh < 2 else q) + 2*(hh % 2)
            t = 32 + 2*(hh % 2)
            A.i(f"v_lshlrev_b32 {v(t)}, 16, {v(16+4*st+hh)}")
            A.i(f"v_and_b32 {v(t+1)}, s27, {v(16+4*st+hh)}")
            A.i(f"v_pk_fma_f32 {v(t,2)}, {v(t,2)}, {v(84+2*hh,2)}, {v(src,2)}")
            A.i(f"v_cvt_pk_bf16_f32 {v(X1+4*st+hh)}, {v(t)}, {v(t+1)}")
        A.i(f"buffer_store_dwordx4 {v(X1+4*st,4)}, v81, s[16:19], s{32+st} offen {outf}")
    A.label(f"{N}_fin")
    if ts and tsw < 4 and spin is None: ts_end(A, N, P_WS, tsw)
    if spin is not None:
        A.i("s_waitcnt vmcnt(0)")
        A.i("s_memrealtime s[42:43]")
        A.i("s_waitcnt lgkmcnt(0)")
        A.i(f"s_cmp_lg_u32 s2, {spin[1]}")
        A.i(f"s_cbranch_scc1 {N}_done")
        A.i("s_cmp_lg_u32 s20, 0")
        A.i(f"s_cbranch_scc1 {N}_done")
        src = {-1: "s40", -2: "s42"}.get(spin[0], "s84")
        A.i(f"s_sub_u32 s46, {src}, s40")
        A.i("s_min_u32 s46, s46, 10000")
        A.i("s_mul_i32 s46, s46, 2")
        A.i("s_add_u32 s46, s46, 1000")
        A.i("s_add_u32 s46, s46, s42")
        A.label(f"{N}_spin")
        A.i("s_memrealtime s[44:45]")
        A.i("s_waitcnt lgkmcnt(0)")
        A.i("s_sub_u32 s45, s46, s44")
        A.i("s_cmp_gt_i32 s45, 0")
        A.i(f"s_cbranch_scc1 {N}_spin")
    A.i("s_endpgm")

    def l_epilogue():
        pass
    def l_pre(xw):
        A.i("v_lshrrev_b32 v166, 3, v2")
        A.i("v_and_b32 v175, 7, v2")
        A.i("v_xor_b32 v175, v175, v166")
        A.i("v_lshlrev_b32 v175, 4, v175")
        A.i("v_lshl_add_u32 v175, v166, 11, v175")
        A.i("s_mul_i32 s52, s63, 448")
        A.i("v_add_u32 v162, s52, v2")
        A.i("s_movk_i32 s52, 2341")
        A.i("s_movk_i32 s53, 7168")
        for q in range(7):
            A.i(f"v_add_u32 v163, {64*q}, v162")
            A.i("v_mul_u32_u24 v164, s52, v163")
            A.i("v_lshrrev_b32 v164, 16, v164")
            A.i("v_mul_u32_u24 v165, 28, v164")
            A.i("v_sub_u32 v163, v163, v165")
            A.i("v_bfe_u32 v165, v164, 3, 1")
            A.i("v_lshlrev_b32 v165, 1, v165")
            A.i("v_xor_b32 v163, v163, v165")
            A.i("v_mul_u32_u24 v164, s53, v164")
            A.i(f"v_lshl_add_u32 {v(168+q)}, v163, 4, v164")
        pass
    A.label(f"{N}_L")
    for u in range(2):
        A.i(f"buffer_load_dwordx4 {v(CR+4*u,4)}, {v(vCO)}, s[28:31], s37 offen offset:{16*u}")
    stream(E1, E1+E2)
    arrive(f"{N}_ak2", 16, 8, "s23", F_KV, wait=f"vmcnt({2+E2})", fast="s39" if fastkv else None)
    A.i("s_cmp_ge_u32 s2, 192")
    A.i(f"s_cbranch_scc1 {N}_Lidle")
    S = 32
    A.i(f"s_mov_b32 s39, 0x{LOG2E ^ 0x80000000:x}")
    A.i(f"s_waitcnt vmcnt({E2})")
    for q in range(8):
        A.i(f"v_lshlrev_b32 {v(S+4*q)}, 16, {v(CR+q)}")
        A.i(f"v_and_b32 {v(S+4*q+2)}, s27, {v(CR+q)}")
    for q in range(8):
        x0, x1 = S+4*q, S+4*q+2
        A.i(f"v_mul_f32 v8, s39, {v(x0)}")
        A.i(f"v_mul_f32 v9, s39, {v(x1)}")
        A.i("v_exp_f32 v8, v8"); A.i("v_exp_f32 v9, v9")
        A.i("s_nop 0")
        A.i("v_add_f32 v8, 1.0, v8"); A.i("v_add_f32 v9, 1.0, v9")
        A.i("v_rcp_f32 v8, v8"); A.i("v_rcp_f32 v9, v9")
        A.i("s_nop 0")
        A.i(f"v_mul_f32 v8, v8, {v(x0)}"); A.i(f"v_mul_f32 v9, v9, {v(x1)}")
        A.i("v_cvt_pk_bf16_f32 v8, v8, v9")
        A.i(f"v_lshlrev_b32 {v(x0)}, 16, v8")
        A.i(f"v_and_b32 {v(x1)}, s27, v8")
    AC = 16
    for r in range(8): A.i(f"v_mov_b32 {v(AC+r)}, 0")
    def fma_rows(j0, j1, later):
        for j in range(j0, j1):
            A.i(f"s_waitcnt vmcnt({later(j)})")
            for q in range(4):
                t = 8 + 2*(q % 2)
                A.i(f"v_lshlrev_b32 {v(t)}, 16, {v(SD+4*j+q)}")
                A.i(f"v_and_b32 {v(t+1)}, s27, {v(SD+4*j+q)}")
                A.i(f"v_pk_fma_f32 {v(AC+2*q,2)}, {v(t,2)}, {v(S+2*j,2)}, {v(AC+2*q,2)} op_sel_hi:[1,0,1]")
    fma_rows(0, E1+E2, lambda j: min(E2, E1+E2-1-j))
    l_pre(0)
    page_touch(f"{N}_pt1")
    mark(30)
    gate(f"{N}_gk")
    mark(31)
    xrow_load()
    stream(E1+E2, 16)
    code_touch(f"{N}_ct1")
    def conv_wait(tag, need):
        A.label(tag)
        A.i("s_sleep 2")
        A.i("ds_read_b32 v15, v14")
        A.i("s_waitcnt lgkmcnt(0)")
        A.i(f"v_cmp_gt_u32 vcc, {need}, v15")
        A.i("s_nop 1")
        A.i(f"s_cbranch_vccnz {tag}")
    if defer == 2: conv_wait(f"{N}_cw", 64)
    A.i(f"s_waitcnt vmcnt({16-E1-E2})")
    ln_pre(64)
    if defer == 1: conv_wait(f"{N}_cw", 64)
    mark(32)
    if prio: A.i(f"s_setprio {prio}")
    fma_rows(E1+E2, 16, lambda j: 15-j)
    mark(33)
    A.i("s_nop 1")
    for r in range(8):
        A.i(f"v_add_f32_dpp {v(AC+r)}, {v(AC+r)}, {v(AC+r)} row_ror:8 row_mask:0xf bank_mask:0xf")
    for sw in ("v_permlane16_swap_b32", "v_permlane32_swap_b32"):
        for r in range(8): A.i(f"v_mov_b32 {v(24+r)}, {v(AC+r)}")
        for r in range(8): A.i(f"{sw} {v(AC+r)}, {v(24+r)}")
        for r in range(8): A.i(f"v_add_f32 {v(AC+r)}, {v(AC+r)}, {v(24+r)}")
    A.i("s_lshl_b32 s25, s63, 8")
    A.i(f"s_add_u32 s25, s25, {GP}")
    A.i("v_and_b32 v8, 7, v2")
    A.i("v_lshlrev_b32 v8, 5, v8")
    A.i("v_add_u32 v8, s25, v8")
    A.i(f"ds_write_b128 v8, {v(AC,4)}")
    A.i(f"ds_write_b128 v8, {v(AC+4,4)} offset:16")
    A.i(f"v_mov_b32 v9, {CNT+4}")
    A.i("v_mov_b32 v10, 1")
    A.i("s_waitcnt lgkmcnt(0)")
    A.i("ds_add_rtn_u32 v10, v9, v10")
    A.i("s_waitcnt lgkmcnt(0)")
    A.i("v_cmp_le_u32 vcc, 192, v10")
    A.i("s_nop 1")
    A.i(f"s_cbranch_vccz {N}_Lj")
    A.i("v_lshlrev_b32 v8, 2, v2")
    A.i(f"v_add_u32 v9, {GP}, v8")
    for p in range(4):
        A.i(f"ds_read_b32 {v(16+p)}, v9 offset:{256*p}")
    srd(A, 16, P_WS, 2*24576, WS['mod'])
    A.i("s_and_b32 s25, s2, 1")
    A.i("s_mul_i32 s25, s25, 24576")
    A.i("s_lshl_b32 s26, s36, 8")
    A.i("s_add_u32 s25, s25, s26")
    A.i("s_waitcnt lgkmcnt(0)")
    A.i("v_add_f32 v16, v16, v17")
    A.i("v_add_f32 v18, v18, v19")
    A.i("v_add_f32 v16, v16, v18")
    A.i(f"buffer_store_dword v16, v8, s[16:19], s25 offen {WT}")
    A.i("s_lshl_b32 s25, s2, 7")
    A.i(f"s_add_u32 s25, s25, {F_MOD}")
    A.i("s_waitcnt vmcnt(0)")
    A.i("s_mov_b64 exec, 1")
    A.i(f"buffer_store_dword v13, off, s[{FL}:{FL+3}], s25 {WT}")
    A.i("s_mov_b64 exec, -1")
    A.i(f"s_branch {N}_Lj")
    A.label(f"{N}_Lidle")
    l_pre(0)
    page_touch(f"{N}_pt2")
    gate(f"{N}_gk2")
    xrow_load()
    code_touch(f"{N}_ct2")
    A.i("s_waitcnt vmcnt(0)")
    ln_pre(64)
    if pw1:
        srd(A, 12, P_W1, D1*64*7168)
        A.i("s_sub_u32 s30, s2, 192")
        A.i("s_lshl_b32 s30, s30, 2")
        A.i("s_add_u32 s30, s30, s63")
        A.i(f"s_mul_i32 s30, s30, {D1*14*128}")
        A.i("v_lshlrev_b32 v11, 7, v2")
        n = D1*14
        for b in range(0, n, 64):
            if n - b < 64: A.i(f"v_min_u32 v11, {(n-b-1)*128}, v11")
            A.i("buffer_load_dword v12, v11, s[12:15], s30 offen")
            A.i("s_add_u32 s30, s30, 8192")
    A.label(f"{N}_Lj")
    if prio: A.i("s_setprio 0")
    A.i("s_waitcnt lgkmcnt(0)")
    mark(34)
    A.i("v_lshlrev_b32 v4, 7, v2")
    A.i(f"v_add_u32 v4, {F_MOD}, v4")
    srd(A, 16, P_WS, 2*24576, WS['mod'])
    A.i("v_and_b32 v7, 0xff, v0")
    A.i("v_lshlrev_b32 v6, 3, v7")
    A.i(f"v_add_u32 v6, {LNT}, v6")
    A.i("v_lshlrev_b32 v7, 4, v7")
    A.i("s_bfe_u32 s80, s2, 0x20001")
    A.i("s_lshl_b32 s80, s80, 2")
    A.i("s_lshr_b32 s22, s2, 6")
    A.i("s_add_u32 s80, s80, s22")
    A.i("s_mul_i32 s80, s80, 448            ; W soffset")
    A.i("s_mul_i32 s81, s63, 7168")
    srd(A, 8, P_W1, 1024*7168)
    def g1w(slot):
        for q in range(7):
            A.i(f"s_add_u32 m0, s81, {slot + q*1024}" if isinstance(slot, int) else f"s_add_u32 m0, {slot}, {q*1024}")
            A.i("s_nop 0")
            A.i(f"buffer_load_dwordx4 {v(168+q)}, s[8:11], s80 offen lds")
        A.i(f"s_add_u32 s80, s80, {64*7168}")
    if prefill == 'y':
        A.label(f"{N}_pfy")
        A.i("ds_read_b32 v15, v14 offset:28")
        A.i("s_waitcnt lgkmcnt(0)")
        A.i("v_cmp_ne_u32 vcc, 4, v15")
        A.i("s_sleep 1")
        A.i(f"s_cbranch_vccnz {N}_pfy")
        for j in range(npf): g1w(G1W + j*28672)
    if onepm:
        A.i("s_cmp_lg_u32 s63, 0")
        A.i(f"s_cbranch_scc1 {N}_pmw")
        if pmgate:
            A.label(f"{N}_pmg")
            A.i("ds_read_b32 v15, v14 offset:28")
            A.i("s_waitcnt lgkmcnt(0)")
            A.i("v_cmp_ne_u32 vcc, 4, v15")
            A.i("s_sleep 1")
            A.i(f"s_cbranch_vccnz {N}_pmg")
        poll_all(A, f"{N}_pm", 4, 3, cnt=39, stride=8192)
        A.i("v_mov_b32 v15, 1")
        A.i("ds_write_b32 v14, v15 offset:12")
        A.label(f"{N}_pmw")
        A.i("ds_read_b32 v15, v14 offset:12")
        A.i("s_waitcnt lgkmcnt(0)")
        A.i("v_cmp_ne_u32 vcc, 1, v15")
        A.i("s_sleep 1")
        A.i(f"s_cbranch_vccnz {N}_pmw")
    else:
        poll_ctr(A, f"{N}_pm", 4, 8, 12)
    mark(35)
    for r in range(5):
        for h in range(2):
            A.i(f"s_mov_b32 s22, {4096*r + 24576*h}")
            A.i(f"buffer_load_dwordx4 {v(32+8*r+4*h,4)}, v7, s[16:19], s22 offen {WT}")
    for r in range(5):
        b = 32 + 8*r
        A.i(f"s_waitcnt vmcnt({2*(4-r)})")
        A.i(f"v_pk_add_f32 {v(b,2)}, {v(b,2)}, {v(b+4,2)}")
        A.i(f"v_pk_add_f32 {v(b+2,2)}, {v(b+2,2)}, {v(b+6,2)}")
        A.i(f"v_cvt_pk_bf16_f32 {v(b+4)}, {v(b)}, {v(b+1)}")
        A.i(f"v_cvt_pk_bf16_f32 {v(b+5)}, {v(b+2)}, {v(b+3)}")
        if r in (1, 4):
            unpack(b, b+4); unpack(b+2, b+5)
            A.i(f"v_pk_add_f32 {v(b,2)}, {v(b,2)}, 1.0 op_sel_hi:[1,0]")
            A.i(f"v_pk_add_f32 {v(b+2,2)}, {v(b+2,2)}, 1.0 op_sel_hi:[1,0]")
            A.i(f"v_cvt_pk_bf16_f32 {v(b+4)}, {v(b)}, {v(b+1)}")
            A.i(f"v_cvt_pk_bf16_f32 {v(b+5)}, {v(b+2)}, {v(b+3)}")
        A.i(f"ds_write_b64 v6, {v(b+4,2)} offset:{2048*r}")
    def pf():
        if prefill == 'b3':
            for j in range(npf): g1w(G1W + j*28672)
    A.i("s_waitcnt lgkmcnt(0)")
    mark(36)
    ln_main(True, pf)
    mark(37)
    ln_signal(f"{N}_ah2")
    mark(38)
    if prefill == 'sig':
        for j in range(npf): g1w(G1W + j*28672)
    g1_ids()
    A.i("s_lshl_b32 s24, s21, 4")
    A.i("s_lshl_b32 s27, s63, 2")
    A.i("s_add_u32 s24, s24, s27")
    A.i("v_and_b32 v4, 3, v2")
    A.i("v_add_u32 v4, s24, v4")
    A.i("v_lshlrev_b32 v4, 10, v4")
    A.i(f"v_add_u32 v4, {F_H2}, v4")
    A.i("s_lshl_b32 s24, s24, 14")
    A.i("s_lshl_b32 s33, s63, 12")
    A.i(f"s_add_u32 s33, s33, {G1X}")
    srd(A, 12, P_WS, 4*MB, WS['h2'])
    A.i("s_lshl_b32 s82, s2, 2")
    A.i("s_add_u32 s82, s82, s63           ; wave 0..1023")
    if xw1:
        A.i("s_lshr_b32 s38, s2, 3")
        A.i("s_lshl_b32 s38, s38, 1")
        A.i("s_lshr_b32 s39, s63, 1")
        A.i("s_add_u32 s38, s38, s39")
        A.i("s_mul_i32 s38, s38, 7168")
        A.i("s_bfe_u32 s39, s2, 0x20001")
        A.i("s_lshl_b32 s39, s39, 1")
        A.i("s_and_b32 s53, s63, 1")
        A.i("s_add_u32 s39, s39, s53")
        A.i("s_mul_i32 s39, s39, 896")
        A.i("s_add_u32 s38, s38, s39")
    else:
        A.i("s_mul_i32 s38, s82, 448")
    A.i(f"s_add_u32 s38, s38, {D1*64*7168}")
    A.i(f"s_add_u32 s38, s38, s{P_W1}")
    A.i(f"s_addc_u32 s39, s{P_W1+1}, 0")
    A.i("s_lshl_b32 s82, s21, 2")
    A.i("s_add_u32 s82, s82, s63           ; q")
    A.i("s_and_b32 s54, s82, 31")
    A.i("s_lshl_b32 s54, s54, 11")
    A.i("s_and_b32 s61, s22, 7")
    A.i("s_lshl_b32 s55, s61, 8")
    A.i("s_add_u32 s54, s54, s55")
    A.i("s_lshr_b32 s55, s22, 3")
    A.i(f"s_mul_i32 s55, s55, {1792*2048}")
    A.i("s_add_u32 s54, s54, s55")
    A.i(f"s_add_u32 s54, s54, s{P_W2}")
    A.i(f"s_addc_u32 s55, s{P_W2+1}, 0")
    A.i("s_mul_i32 s61, s61, 7")
    A.i("s_lshr_b32 s82, s82, 5")
    def w2_touch():
        blkidx("s62", "s82", "s61", "s53")
        A.i("s_lshl_b32 s62, s62, 16")
        for c in range(4):
            A.i(f"s_load_dword s{44+c}, s[54:55], s62")
            if c < 3: A.i("s_add_u32 s62, s62, 64")
        A.i("s_add_u32 s82, s82, 2")
    NL1 = 11
    poll(A, f"{N}_ph", 4)
    mark(39)
    def g1x(slot):
        for q in range(4):
            A.i(f"s_add_u32 m0, s33, {slot + q*1024}" if isinstance(slot, int) else f"s_add_u32 m0, {slot}, {q*1024}")
            A.i(f"s_add_u32 s37, s24, {q*8*2048}")
            A.i(f"buffer_load_dwordx4 v175, s[12:15], s37 offen {WT} lds")
        A.i("s_add_u32 s24, s24, 128")
    pend = []
    for j in range(3):
        if j >= npf: g1w(G1W + j*28672)
        g1x(j*16384)
        pend.append(4 + (7 if j >= npf else 0))
    x1_signal(f"{N}_ax2", 8, 9, wait="vmcnt(63)")
    mark(40)
    A.i(f"s_waitcnt vmcnt({pend[1]+pend[2]})")
    mark(41)
    A.i("s_barrier                          ; G1 B0")
    A.i("s_mov_b32 s26, 0")
    A.i("s_mov_b32 s25, 0")
    A.i("s_mov_b32 s23, 13")
    A.i(f"s_waitcnt vmcnt({pend[2]})")
    A.i(f"s_branch {N}_g1l2")
    A.label(f"{N}_g1l")
    A.i(f"s_waitcnt vmcnt({NL1})")
    A.label(f"{N}_g1l2")
    A.i("s_barrier")
    A.i("s_add_u32 s35, s26, s81")
    A.i("s_add_u32 s36, s25, s33")
    g1w("s35"); g1x("s36")
    if pw1:
        A.i(f"s_cmp_le_u32 s23, {13-(16-D1)}")
        A.i(f"s_cbranch_scc1 {N}_t1")
        for c in range(14 if xw1 else 7):
            A.i(f"s_load_dword s{44+(c%4)}, s[38:39], {c*64}")
        A.i(f"s_add_u32 s38, s38, {64*7168}")
        A.i("s_addc_u32 s39, s39, 0")
        A.label(f"{N}_t1")
    if pw2:
        A.i(f"s_cmp_gt_u32 s23, {D2}")
        A.i(f"s_cbranch_scc1 {N}_t2")
        w2_touch()
        A.label(f"{N}_t2")
    A.i("s_add_u32 s26, s26, 28672")
    A.i("s_add_u32 s25, s25, 16384")
    A.i("s_cmp_eq_u32 s25, 49152")
    A.i("s_cselect_b32 s26, 0, s26")
    A.i("s_cselect_b32 s25, 0, s25")
    A.i("s_sub_u32 s23, s23, 1")
    A.i("s_cmp_lg_u32 s23, 0")
    A.i(f"s_cbranch_scc1 {N}_g1l")
    A.i("s_waitcnt lgkmcnt(0)")
    code_touch(f"{N}_ct3")
    g2_ids()
    A.i("v_lshrrev_b32 v4, 4, v2")
    A.i("v_lshlrev_b32 v5, 1, v4")
    A.i("v_and_b32 v6, 15, v2")
    A.i("v_xor_b32 v5, v5, v6")
    A.i("v_lshlrev_b32 v5, 4, v5")
    A.i("v_lshl_add_u32 v5, v4, 11, v5")
    A.i("v_xor_b32 v6, 128, v5")
    A.i("s_lshl_b32 s24, s21, 3")
    A.i("s_lshl_b32 s27, s63, 1")
    A.i("s_add_u32 s24, s24, s27")
    A.i(f"s_mul_i32 s24, s24, {112*1024}")
    A.i(f"s_mul_i32 s27, s52, {56*1024}")
    A.i("s_add_u32 s24, s24, s27            ; X base")
    A.i("s_lshl_b32 s80, s22, 8")
    A.i("s_and_b32 s27, s63, 1")
    A.i("s_lshl_b32 s27, s27, 15")
    A.i("s_add_u32 s80, s80, s27")
    A.i(f"s_mul_i32 s27, s52, {1792*2048}")
    A.i("s_add_u32 s80, s80, s27            ; W base")
    A.i("s_lshr_b32 s28, s63, 1")
    A.i("s_mov_b32 s29, 6")
    A.i("s_lshl_b32 s81, s63, 12")
    A.i(f"s_add_u32 s33, s81, {G2X}")
    A.i("s_lshl_b32 s27, s21, 4")
    A.i("s_lshl_b32 s30, s52, 3")
    A.i("s_add_u32 s27, s27, s30")
    A.i("v_and_b32 v7, 7, v2")
    A.i("v_add_u32 v7, s27, v7")
    A.i("v_lshlrev_b32 v7, 10, v7")
    A.i(f"v_add_u32 v7, {F_ACT}, v7")
    if lazyx1:
        A.i("s_lshl_b32 s27, s21, 4")
        A.i("v_and_b32 v8, 15, v2")
        A.i("v_add_u32 v8, s27, v8")
        A.i("v_lshlrev_b32 v8, 10, v8")
        A.i(f"v_add_u32 v8, {F_X1}, v8")
        A.i("v_cmp_gt_u32 vcc, 32, v2")
        A.i("s_nop 1")
        A.i("v_cndmask_b32 v7, v8, v7, vcc")
    for rem in (NL1, 0, 0):
        A.i(f"s_waitcnt vmcnt({rem})")
        A.i("s_barrier")
    srd(A, 8, P_W2, 3584*2048)
    srd(A, 12, P_WS, 2048*3584*2, WS['act'])
    def g2w(slot):
        blkidx("s30", "s28", "s61", "s31")
        A.i("s_lshl_b32 s30, s30, 16")
        A.i("s_add_u32 s30, s30, s80")
        for q in range(4):
            A.i(f"s_add_u32 m0, s81, {slot + q*1024}" if isinstance(slot, int) else f"s_add_u32 m0, {slot}, {q*1024}")
            A.i(f"s_add_u32 s37, s30, {q*4*2048}")
            A.i(f"buffer_load_dwordx4 {v(5+(q//2))}, s[8:11], s37 offen lds")
        A.i("s_add_u32 s28, s28, 2")
    def g2x(slot):
        A.i(f"s_add_u32 m0, s33, {slot}")
        for kb in range(2):
            A.i("s_sub_u32 s31, s29, 6")
            A.i("s_cmp_ge_u32 s31, s61")
            A.i("s_cselect_b32 s30, s29, s31")
            A.i("s_lshl_b32 s30, s30, 10")
            A.i("s_add_u32 s30, s30, s24")
            A.i(f"s_add_u32 s37, s30, {112*1024}")
            A.i(f"buffer_load_dwordx4 v3, s[12:15], s30 offen {WT} lds")
            A.i("s_add_u32 m0, m0, 2048")
            A.i("s_add_u32 s29, s29, 1")
            A.i(f"buffer_load_dwordx4 v3, s[12:15], s37 offen {WT} lds")
            if kb == 0: A.i("s_sub_u32 m0, m0, 1024")
    for j in range(4): g2w(G2W + j*16384)
    A.i("v_and_b32 v8, 1, v2")
    A.i("v_lshlrev_b32 v8, 10, v8")
    A.i("v_readfirstlane_b32 s27, v7")
    A.i("s_nop 1")
    A.i("v_add_u32 v8, s27, v8")
    for rem in (12, 8, 4):
        A.i(f"s_waitcnt vmcnt({rem})")
        A.i("s_barrier")
    mark(42)
    poll(A, f"{N}_pa0", 8)
    mark(43)
    g2x(3*16384)
    A.i("s_mov_b32 s26, 0")
    def g2step(touch=True, bar=True):
        if bar: A.i("s_barrier")
        A.i("s_add_u32 s35, s26, s81")
        g2w("s35"); g2x("s26")
        if pw2 and touch: w2_touch()
        A.i("s_add_u32 s26, s26, 16384")
        A.i("s_and_b32 s26, s26, 0xffff")
    g2step(bar=False)
    g2step(bar=False)
    A.i("s_waitcnt vmcnt(16)")
    mark(44)
    A.i("s_barrier                          ; B3")
    poll(A, f"{N}_pa", 7)
    g2step(bar=False)
    A.i(f"s_mov_b32 s23, {28-D2-3}")
    A.label(f"{N}_g2l")
    A.i("s_waitcnt vmcnt(16)")
    g2step()
    A.i("s_sub_u32 s23, s23, 1")
    A.i("s_cmp_lg_u32 s23, 0")
    A.i(f"s_cbranch_scc1 {N}_g2l")
    A.i(f"s_mov_b32 s23, {D2-4}")
    A.label(f"{N}_g2m")
    A.i("s_waitcnt vmcnt(16)")
    g2step(False)
    A.i("s_sub_u32 s23, s23, 1")
    A.i("s_cmp_lg_u32 s23, 0")
    A.i(f"s_cbranch_scc1 {N}_g2m")
    A.i("s_waitcnt lgkmcnt(0)")
    code_touch(f"{N}_ct4")
    for rem in (16, 8, 0, 0):
        A.i(f"s_waitcnt vmcnt({rem})")
        A.i("s_barrier")
    if ts and tsw >= 4:
        A.i("s_waitcnt lgkmcnt(0)")
        ts_end(A, N, P_WS, tsw)
    A.label(f"{N}_done")
    A.i("s_endpgm")
    kernel_desc(A, N, 240, 102)
    return (256, 512, 163840)
```

```python
from asmlib import *
from bw import ts_begin, ts_end, ts_mark
from k2 import wave_reduce
LOG2E = 0x3fb8aa3b
WT = "sc0 sc1"

P_WS, P_Q = 4, 6
P_SSM, P_D, P_W1, P_W2, P_C, P_WM, P_OUT = 64, 66, 70, 72, 74, 76, 78
FL = 56
F_X, F_H2, F_ACT, F_KV = 0, 512, 640, 768
F_X1 = 576
F_BAR = 896
F_MOD = 288*1024
F_KVF = 320*1024
F_NONCE = 448*1024 + 52
SV = 83
P_K, P_V, P_SH = 96, 98, 100

PSLEEP = {}
def poll(A, tag, vaddr, vt=15, cnt=60, wide=False):
    val = f"s{SV}"
    A.i(f"s_mov_b32 s{cnt}, 0x40000")
    sl = PSLEEP.get(tag.split("_")[-1][:2], 0)
    if sl:
        A.i(f"s_branch {tag}_in")
    A.label(tag)
    if sl:
        A.i(f"s_sleep {sl}")
        A.label(f"{tag}_in")
    if wide: A.i(f"buffer_load_dwordx4 {v(vt,4)}, {v(vaddr)}, s[{FL}:{FL+3}], 0 offen {WT}")
    else:    A.i(f"buffer_load_dword {v(vt)}, {v(vaddr)}, s[{FL}:{FL+3}], 0 offen {WT}")
    A.i(f"s_sub_u32 s{cnt}, s{cnt}, 1")
    A.i(f"s_cmp_eq_u32 s{cnt}, 0")
    A.i(f"s_cbranch_scc1 {tag}_out")
    A.i("s_waitcnt vmcnt(0)")
    if wide:
        for r in range(4): A.i(f"v_xor_b32 {v(vt+r)}, {val}, {v(vt+r)}")
        A.i(f"v_or3_b32 {v(vt)}, {v(vt)}, {v(vt+1)}, {v(vt+2)}")
        A.i(f"v_or_b32 {v(vt)}, {v(vt)}, {v(vt+3)}")
        val = "0"
    A.i(f"v_cmp_ne_u32 vcc, {val}, {v(vt)}")
    A.i("s_nop 1")
    A.i(f"s_cbranch_vccnz {tag}")
    A.label(f"{tag}_out")

def poll2(A, tag, va, vb, vt, cnt=60):
    sl = PSLEEP.get(tag.split("_")[-1][:2], 0)
    A.i(f"s_mov_b32 s{cnt}, 0x40000")
    A.i(f"s_branch {tag}_in")
    A.label(tag)
    if sl: A.i(f"s_sleep {sl}")
    A.label(f"{tag}_in")
    A.i(f"buffer_load_dword {v(vt)}, {v(vb)}, s[{FL}:{FL+3}], 0 offen {WT}")
    A.i(f"s_sub_u32 s{cnt}, s{cnt}, 1")
    A.i(f"s_cmp_eq_u32 s{cnt}, 0")
    A.i(f"s_cbranch_scc1 {tag}_out")
    A.i("s_waitcnt vmcnt(0)")
    A.i(f"v_cmp_ne_u32 vcc, s{SV}, {v(vt)}")
    A.i("s_nop 1")
    A.i(f"s_cbranch_vccz {tag}_out")
    A.i(f"s_and_b32 s10, s{cnt}, 3")
    A.i(f"s_cbranch_scc1 {tag}")
    A.i(f"buffer_load_dword {v(vt+1)}, {v(va)}, s[{FL}:{FL+3}], 0 offen {WT}")
    A.i("s_mov_b64 s[8:9], vcc")
    A.i("s_waitcnt vmcnt(0)")
    A.i(f"v_cmp_ne_u32 vcc, s{SV}, {v(vt+1)}")
    A.i("s_nop 1")
    A.i("s_and_b64 vcc, vcc, s[8:9]")
    A.i(f"s_cbranch_scc1 {tag}")
    A.label(f"{tag}_out")

def poll_all(A, tag, vaddr, groups, vt=16, cnt=60, stride=65536, mask=84):
    sl = PSLEEP.get(tag.split("_")[-1][:2], 0)
    M = [f"s[{44+2*g}:{45+2*g}]" if g < 2 else f"s[{52+2*(g-2)}:{53+2*(g-2)}]" for g in range(groups)]
    A.i(f"s_mov_b32 s{cnt}, 0x40000")
    for g in range(groups):
        A.i(f"s_mov_b64 {M[g]}, -1")
        if g: A.i(f"v_add_u32 {v(vt+4+g)}, {g*stride}, {v(vaddr)}")
    A.i(f"s_branch {tag}_in")
    A.label(tag)
    if sl: A.i(f"s_sleep {sl}")
    A.label(f"{tag}_in")
    for g in range(groups):
        A.i(f"s_or_b64 exec, {M[g]}, 1")
        A.i(f"buffer_load_dword {v(vt+g)}, {v(vt+4+g) if g else v(vaddr)}, s[{FL}:{FL+3}], 0 offen {WT}")
    A.i(f"s_sub_u32 s{cnt}, s{cnt}, 1")
    A.i(f"s_cmp_eq_u32 s{cnt}, 0")
    A.i(f"s_cbranch_scc1 {tag}_out")
    A.i("s_waitcnt vmcnt(0)")
    for g in range(groups):
        A.i(f"s_or_b64 exec, {M[g]}, 1")
        A.i(f"v_cmp_ne_u32 {M[g]}, s{SV}, {v(vt+g)}")
    A.i("s_nop 1")
    A.i(f"s_or_b64 vcc, {M[0]}, {M[1]}")
    for g in range(2, groups):
        A.i(f"s_or_b64 vcc, vcc, {M[g]}")
    A.i(f"s_cbranch_scc1 {tag}")
    A.label(f"{tag}_out")
    A.i("s_mov_b64 exec, -1")

def poll_ctr(A, tag, vaddr, shift, val, vt=16, cnt=39):
    sl = PSLEEP.get(tag.split("_")[-1][:2], 0)
    A.i(f"s_mov_b32 s{cnt}, 0x40000")
    A.i(f"s_branch {tag}_in")
    A.label(tag)
    if sl: A.i(f"s_sleep {sl}")
    A.label(f"{tag}_in")
    A.i(f"buffer_load_dword {v(vt)}, {v(vaddr)}, s[{FL}:{FL+3}], 0 offen {WT}")
    A.i(f"s_sub_u32 s{cnt}, s{cnt}, 1")
    A.i(f"s_cmp_eq_u32 s{cnt}, 0")
    A.i(f"s_cbranch_scc1 {tag}_out")
    A.i("s_waitcnt vmcnt(0)")
    A.i(f"v_bfe_u32 {v(vt)}, {v(vt)}, {shift}, 8")
    A.i(f"v_cmp_ne_u32 vcc, {val}, {v(vt)}")
    A.i("s_nop 1")
    A.i(f"s_cbranch_vccnz {tag}")
    A.label(f"{tag}_out")

def gen_f(A, name="f1_kernel", ts=False, nt="nt", outf="", pw1=True, pw2=True, marks=(0,1,2,3,4,5), tsw=0, prio=0, ntk='nt', prefill='y', npf=2, wf1='', E1=2, E2=2, halo=True, D1=7, D2=8, ncode=16, psleep=dict(pk=4, pg=8, pm=8, ph=4, pa=4, px=2), onepm=True, nogemv=False, spin=None, ctouch=True, pmgate=False, earlysig=False, reuse=True, FLAGIT=8, nosend=False, xw1=False, lazyx1=False, defer=0, firsttile=True, fastkv=True, hearly=True, m48=False, actst=WT, actld=WT, tlb=0):
    N = name
    NARR = 4
    PSLEEP.clear(); PSLEEP.update(psleep)
    def mark(j):
        if ts:
            for i, m in enumerate(marks):
                if m == j: ts_mark(A, i)
    WB, HC = 24320, 4160
    XO = 4*HC
    GP = 4*WB
    CNT = 161792
    G1W, G1X = 0, 86016
    LNP, LNY, LNT = 86016, 135168, 151552
    G2W, G2X = 0, 65536
    XROW = 232
    HH = 216
    SD = 104
    vWM, vCO, CR = 204, 205, 208
    P0B = 135168

    def xrow_load():
        srd(A, 8, P_Q, 4*MB)
        for hf in range(2):
            A.i(f"buffer_load_dwordx4 {v(XROW+hf*4,4)}, v3, s[8:11], s61 offen offset:{hf*1024} {nt}")

    def arrive(tag, cnt, n, soff, off, wait="vmcnt(0)", vc=14, vt=15, add=None, fast=None):
        A.i(f"v_mov_b32 {v(vt)}, 1")
        A.i(f"s_waitcnt {wait}")
        A.i("s_mov_b64 exec, 1")
        A.i(f"ds_add_rtn_u32 {v(vt)}, {v(vc)}, {v(vt)} offset:{cnt}")
        A.i("s_waitcnt lgkmcnt(0)")
        A.i(f"v_cmp_eq_u32 vcc, {n-1}, {v(vt)}")
        A.i(f"v_mov_b32 {v(vt)}, {add if add else f's{SV}'}")
        A.i("s_nop 0")
        A.i(f"s_cbranch_vccz {tag}")
        if add: A.i(f"buffer_atomic_add {v(vt)}, off, s[{FL}:{FL+3}], {soff}")
        else:
            if fast: A.i(f"buffer_store_dword {v(vt)}, off, s[{FL}:{FL+3}], {fast}")
            A.i(f"buffer_store_dword {v(vt)}, off, s[{FL}:{FL+3}], {soff} offset:{off} {WT}")
        A.label(tag)
        A.i("s_mov_b64 exec, -1")
    def code_touch(tag):
        if not ctouch: return
        A.i("s_getpc_b64 s[46:47]")
        A.label(tag)
        A.i(f"s_sub_u32 s46, s46, {tag}-{N}")
        A.i("s_subb_u32 s47, s47, 0")
        A.i("s_lshr_b32 s44, s2, 3")
        A.i("s_lshl_b32 s44, s44, 2")
        A.i("s_add_u32 s44, s44, s63")
        A.i("s_mul_i32 s44, s44, 320")
        A.i(f"s_min_u32 s44, s44, code_end-{N}-320")
        A.i("s_add_u32 s46, s46, s44")
        A.i("s_addc_u32 s47, s47, 0")
        for c in range(5):
            A.i(f"s_load_dword s45, s[46:47], {64*c}")
    def page_touch(tag):
        if not tlb: return
        A.i("s_cmp_lg_u32 s63, 3")
        A.i(f"s_cbranch_scc1 {tag}")
        srd(A, 16, P_WS, 48*MB)
        A.i(f"v_lshlrev_b32 v8, {tlb}, v2")
        n = (48*MB >> tlb) // 64 or 1
        A.i("s_mov_b32 s52, 0")
        for i in range(n):
            A.i("buffer_load_dword v9, v8, s[16:19], s52 offen")
            A.i(f"s_add_u32 s52, s52, {64 << tlb}")
        srd(A, 16, P_OUT, 4*MB)
        A.i("buffer_load_dword v9, v8, s[16:19], 0 offen")
        A.i("s_waitcnt vmcnt(0)")
        A.label(tag)
    def stream(j0, j1):
        for j in range(j0, j1):
            A.i(f"buffer_load_dwordx4 {v(SD+4*j,4)}, {v(vWM)}, s[12:15], s80 offen {nt}")
            A.i("s_add_u32 s80, s80, 12288")
    kernel_head(A, N)
    A.i("s_cmp_ge_u32 s2, 256")
    A.i(f"s_cbranch_scc1 {N}_done")
    A.i(f"s_load_dwordx4 s[{P_K}:{P_K+3}], s[0:1], {KA['k']}")
    A.i(f"s_load_dwordx2 s[{P_SH}:{P_SH+1}], s[0:1], {KA['shift']}")
    A.i(f"s_load_dwordx16 s[64:79], s[0:1], {KA['ssm']}")
    A.i(f"s_load_dwordx2 s[4:5], s[0:1], {KA['ws']}")
    A.i(f"s_load_dwordx2 s[6:7], s[0:1], {KA['q']}")
    A.i(f"s_cmp_ge_u32 s2, {ncode}")
    A.i(f"s_cbranch_scc1 {N}_nc")
    A.i("s_getpc_b64 s[8:9]")
    A.label(f"{N}_pc")
    A.i(f"s_mov_b32 s10, code_end-{N}_pc")
    A.i("s_mov_b32 s11, 0x20000")
    A.i("v_lshlrev_b32 v13, 7, v0")
    A.i(f"buffer_load_dword {v(HH)}, v13, s[8:11], 0 offen")
    A.label(f"{N}_nc")
    if ts: ts_begin(A)
    A.i(f"v_mov_b32 v14, {CNT}")
    A.i("v_mov_b32 v4, 0")
    A.i("v_mov_b32 v5, 0")
    for o in range(5): A.i(f"ds_write_b64 v14, v[4:5] offset:{8*o}")
    A.i("v_lshrrev_b32 v1, 6, v0")
    A.i("v_and_b32 v2, 63, v0              ; lane")
    A.i("v_readfirstlane_b32 s20, v1       ; wave")
    A.i("s_and_b32 s21, s2, 7")
    A.i("s_lshl_b32 s21, s21, 1")
    A.i("s_bfe_u32 s22, s2, 0x10003")
    A.i("s_add_u32 s21, s21, s22           ; cb")
    A.i("s_lshr_b32 s22, s2, 4             ; rb")
    A.i("v_and_b32 v1, 15, v0              ; cc")
    A.i("v_lshrrev_b32 v9, 4, v0           ; rg")
    A.i("s_lshl_b32 s23, s22, 18")
    A.i("s_lshl_b32 s24, s21, 7")
    A.i("s_add_u32 s23, s23, s24")
    A.i(f"s_sub_u32 s23, s23, {3*2048}")
    A.i("v_lshlrev_b32 v3, 13, v9")
    A.i("v_lshl_add_u32 v3, v1, 3, v3")
    A.i("v_add_u32 v3, s23, v3")
    A.i("v_add_u32 v4, 4096, v3")
    A.i("v_add_u32 v5, 6144, v3")
    A.i("v_add_u32 v6, 10240, v3")
    A.i("s_lshl_b32 s24, s21, 9")
    A.i("v_lshlrev_b32 v7, 5, v1")
    A.i("s_waitcnt lgkmcnt(0)")
    mark(50)
    srd(A, 12, P_K, 4*MB)
    srd(A, 16, P_V, 4*MB)
    K, V, W = 16, 32, 40
    addr = [(3,0),(3,2048),(4,0),(5,0),(5,2048),(6,0),(6,2048)]
    for j in range(3, 7):
        r,o = addr[j]
        A.i(f"buffer_load_dwordx2 {v(K+2*j,2)}, v{r}, s[12:15], 0 offen offset:{o} {ntk}")
    for j in range(4):
        r,o = addr[3+j]
        A.i(f"buffer_load_dwordx2 {v(V+2*j,2)}, v{r}, s[16:19], 0 offen offset:{o} {nt}")
    if halo: A.i("s_mov_b64 exec, 0xffff")
    for j in range(3):
        r,o = addr[j]
        A.i(f"buffer_load_dwordx2 {v(K+2*j,2)}, v{r}, s[12:15], 0 offen offset:{o} {ntk}")
    if halo: A.i("s_mov_b64 exec, -1")
    srd(A, 28, P_SH, 8192)
    A.i(f"buffer_load_dwordx4 {v(W,4)}, v7, s[28:31], s24 offen")
    A.i(f"buffer_load_dwordx4 {v(W+4,4)}, v7, s[28:31], s24 offen offset:16")
    srd(A, FL, P_WS, 512*1024, WS['flag'])
    A.i(f"s_load_dword s{SV}, s[{FL}:{FL+1}], {F_NONCE}")
    A.i("v_lshlrev_b32 v3, 4, v2           ; lane*16")
    A.i("s_and_b32 s62, s2, 7")
    A.i("s_lshl_b32 s62, s62, 5")
    A.i("s_lshr_b32 s63, s2, 3")
    A.i("s_add_u32 s62, s62, s63")
    srd(A, 32, P_WS, 4*MB, WS['kvT'])
    A.i("v_lshrrev_b32 v8, 1, v9")
    A.i("v_and_b32 v10, 7, v1")
    A.i("v_xor_b32 v8, v8, v10")
    A.i("v_lshlrev_b32 v8, 4, v8")
    A.i("v_lshl_add_u32 v8, v1, 10, v8")
    A.i("v_and_b32 v10, 1, v9")
    A.i("v_xor_b32 v10, 1, v10")
    A.i("v_lshl_add_u32 v8, v10, 3, v8")
    A.i(f"v_add_u32 v8, {P0B}, v8")
    A.i("v_lshrrev_b32 v10, 6, v0")
    A.i("v_xor_b32 v10, v10, v1")
    A.i("v_lshlrev_b32 v10, 4, v10")
    A.i("v_lshl_add_u32 v10, v9, 8, v10")
    A.i(f"v_add_u32 v10, {P0B}, v10")
    A.i("v_lshlrev_b32 v11, 4, v1")
    A.i("v_lshl_add_u32 v11, v9, 12, v11")
    A.i("s_lshl_b32 s25, s21, 18")
    A.i("s_lshl_b32 s26, s22, 8")
    A.i("s_add_u32 s25, s25, s26")
    A.i("s_add_u32 s26, s25, 0x20000")
    A.i("s_mov_b32 s27, 0xffff0000")
    A.i("s_lshl_b32 s23, s21, 4")
    A.i("s_add_u32 s23, s23, s22")
    A.i("s_lshl_b32 s23, s23, 10")

    A.i("s_lshr_b32 s39, s23, 3")
    A.i(f"s_add_u32 s39, s39, {F_KVF}")
    A.i("s_lshl_b32 s61, s62, 3")
    A.i("s_add_u32 s61, s61, s20")
    A.i("s_lshl_b32 s61, s61, 11")
    A.i("v_subrev_u32 v12, 16, v2")
    A.i("v_lshlrev_b32 v12, 2, v12")
    A.i("s_cmp_ge_u32 s20, 4")
    A.i(f"s_cbranch_scc1 {N}_noh")
    A.i("s_lshl_b32 s63, s62, 2")
    A.i("s_add_u32 s63, s63, s20           ; channel d")
    A.i("s_lshr_b32 s60, s63, 1")
    A.i("s_lshl_b32 s60, s60, 2")
    A.i(f"s_load_dword s82, s[{P_D}:{P_D+1}], s60                 ; D pair")
    A.i(f"v_mov_b32 {v(vWM)}, 0")
    A.i(f"v_mov_b32 {v(vCO)}, 0")
    mark(51)
    A.i("s_waitcnt vmcnt(0)")
    mark(52)
    if hearly:
        A.i("s_lshl_b32 s60, s63, 12")
        srd(A, 8, P_SSM, 4*MB)
        for u in range(4):
            A.i(f"buffer_load_dwordx4 {v(HH+4*u,4)}, v3, s[8:11], s60 offen offset:{1024*u} {nt}")
    A.i(f"s_branch {N}_h1")
    A.label(f"{N}_noh")
    A.i("s_sub_u32 s63, s20, 4             ; lw")
    A.i("s_lshr_b32 s36, s2, 1")
    A.i("s_and_b32 s37, s2, 1")
    A.i("s_lshl_b32 s37, s37, 2")
    A.i("s_add_u32 s37, s37, s63           ; k part 0..7")
    A.i("v_and_b32 v4, 7, v2               ; cc")
    A.i("v_lshrrev_b32 v5, 3, v2")
    A.i(f"s_mov_b32 s80, {16*12288}")
    A.i(f"v_mul_lo_u32 {v(vWM)}, v5, s80")
    A.i(f"v_lshl_add_u32 {v(vWM)}, v4, 4, {v(vWM)}")
    A.i(f"v_lshlrev_b32 {v(vCO)}, 5, v5")
    A.i(f"s_mul_i32 s80, s37, {128*12288}")
    A.i("s_lshl_b32 s81, s36, 7")
    A.i("s_add_u32 s80, s80, s81")
    A.i("s_lshl_b32 s37, s37, 8            ; c soffset")
    srd(A, 12, P_WM, 1024*12288)
    srd(A, 28, P_C, 2048)
    A.i(f"s_cmp_ge_u32 s2, {0 if nogemv else 192}")
    A.i("s_cselect_b32 s14, 0, s14")
    A.i("s_waitcnt vmcnt(0)")
    stream(0, E1)
    A.label(f"{N}_h1")
    if halo:
        for j in range(3):
            for e in range(2):
                A.i(f"ds_bpermute_b32 {v(96+2*j+e)}, v12, {v(K+2*(j+4)+e)}")
        A.i("v_cmp_gt_u32 vcc, 16, v2")
    WU = 48
    for pr in range(2):
        for e in range(2):
            ch = 2*pr + e
            for tap in range(4):
                src = W + 2*ch + tap//2
                dst = WU + (pr*4+tap)*2 + e
                if tap % 2 == 0: A.i(f"v_lshlrev_b32 {v(dst)}, 16, {v(src)}")
                else:            A.i(f"v_and_b32 {v(dst)}, s27, {v(src)}")
    if halo:
        A.i("s_waitcnt lgkmcnt(0)")
        for j in range(6):
            A.i(f"v_cndmask_b32 {v(K+j)}, {v(96+j)}, {v(K+j)}, vcc")
    KU, VU, R = 64, 80, 88
    for pr in range(2):
        for j in range(7):
            A.i(f"v_lshlrev_b32 {v(KU+2*j)}, 16, {v(K+2*j+pr)}")
            A.i(f"v_and_b32 {v(KU+2*j+1)}, s27, {v(K+2*j+pr)}")
        for j in range(4):
            A.i(f"v_lshlrev_b32 {v(VU+2*j)}, 16, {v(V+2*j+pr)}")
            A.i(f"v_and_b32 {v(VU+2*j+1)}, s27, {v(V+2*j+pr)}")
        w = lambda tap: v(WU+(pr*4+tap)*2, 2)
        for r in range(4):
            A.i(f"v_pk_mul_f32 {v(R+2*r,2)}, {v(KU+2*r,2)}, {w(3)}")
        for tap in (2,1,0):
            for r in range(4):
                A.i(f"v_pk_fma_f32 {v(R+2*r,2)}, {v(KU+2*(r+3-tap),2)}, {w(tap)}, {v(R+2*r,2)}")
        for r in range(4):
            A.i(f"v_pk_mul_f32 {v(R+2*r,2)}, {v(R+2*r,2)}, {v(VU+2*r,2)}")
        for e in range(2):
            d = 96 + (pr*2+e)*2
            A.i(f"v_cvt_pk_bf16_f32 {v(d)}, {v(R+6+e)}, {v(R+4+e)}")
            A.i(f"v_cvt_pk_bf16_f32 {v(d+1)}, {v(R+2+e)}, {v(R+e)}")
            A.i(f"ds_write_b64 v8, {v(d,2)} offset:{(2*pr+e)*256}")
    A.i("s_waitcnt lgkmcnt(0)")
    mark(53)
    A.i("s_barrier                         ; b0")
    mark(54)
    A.i("ds_read_b128 v[16:19], v10")
    A.i("ds_read_b128 v[20:23], v10 offset:8192")
    A.i(f"s_mul_i32 s{SV}, s{SV}, 0x9e3779b1")
    A.i(f"s_add_u32 s{SV}, s{SV}, 0x7f4a7c15")
    A.i("s_mov_b32 s21, s62")
    A.i("s_waitcnt lgkmcnt(1)")
    A.i(f"buffer_store_dwordx4 v[16:19], v11, s[32:35], s25 offen {WT}")
    A.i("s_waitcnt lgkmcnt(0)")
    A.i(f"buffer_store_dwordx4 v[20:23], v11, s[32:35], s26 offen {WT}")
    A.i("v_mov_b32 v12, 0")
    A.i(f"v_mov_b32 v13, s{SV}")
    A.label(f"{N}_p0end")
    mark(20)
    A.i("s_cmp_ge_u32 s20, 4")
    A.i(f"s_cbranch_scc1 {N}_L")

    NP = 4
    def gate(tag):
        A.label(tag)
        A.i("ds_read_b32 v15, v14 offset:8")
        A.i("s_waitcnt lgkmcnt(0)")
        A.i("v_cmp_ne_u32 vcc, 256, v15")
        A.i("s_nop 1")
        A.i(f"s_cbranch_vccnz {tag}")

    X, Y, M, MF, T, H = 16, 24, 32, 88, 136, 144
    XF, RS, LA = 176, 192, 196
    def unpack(dst, src):
        A.i(f"v_lshlrev_b32 {v(dst)}, 16, {v(src)}")
        A.i(f"v_and_b32 {v(dst+1)}, s27, {v(src)}")
    def stats(t):
        a, b_ = v(t,2), v(t+2,2)
        A.i(f"v_pk_add_f32 {a}, {v(XF,2)}, {v(XF+2,2)}")
        A.i(f"v_pk_mul_f32 {b_}, {v(XF,2)}, {v(XF,2)}")
        A.i(f"v_pk_fma_f32 {b_}, {v(XF+2,2)}, {v(XF+2,2)}, {b_}")
        for q in range(2, 8):
            b = XF + 2*q
            A.i(f"v_pk_add_f32 {a}, {a}, {v(b,2)}")
            A.i(f"v_pk_fma_f32 {b_}, {v(b,2)}, {v(b,2)}, {b_}")
        A.i(f"v_add_f32 {v(t+4)}, {v(t)}, {v(t+1)}")
        A.i(f"v_add_f32 {v(t+5)}, {v(t+2)}, {v(t+3)}")
        wave_reduce(A, [t+4, t+5])
        A.i("s_nop 0")
        A.i(f"v_readlane_b32 s52, {v(t+4)}, 63")
        A.i(f"v_readlane_b32 s53, {v(t+5)}, 63")
        A.i(f"v_mov_b32 {v(t+2)}, 0x3a800000        ; 1/1024")
        A.i("s_nop 0")
        A.i(f"v_mul_f32 {v(t)}, s52, {v(t+2)}           ; mean")
        A.i(f"v_mul_f32 {v(t+1)}, s53, {v(t+2)}         ; E[x^2]")
        A.i(f"v_fma_f32 {v(t+1)}, -{v(t)}, {v(t)}, {v(t+1)}     ; var")
        A.i(f"v_max_f32 {v(t+1)}, 0, {v(t+1)}")
        A.i(f"v_add_f32 {v(t+1)}, 0x3727c5ac, {v(t+1)}   ; + 1e-5")
        A.i(f"v_rsq_f32 {v(RS)}, {v(t+1)}")
        A.i("s_nop 0")
        A.i(f"v_mul_f32 {v(RS+2)}, -{v(t)}, {v(RS)}")
    def ln_pre(t):
        A.i("s_lshr_b32 s52, s20, 1")
        A.i(f"v_lshrrev_b32 {v(LA)}, 1, v2")
        A.i(f"v_xor_b32 {v(LA)}, s52, {v(LA)}")
        A.i(f"v_and_b32 {v(LA)}, 3, {v(LA)}")
        A.i(f"v_lshlrev_b32 {v(LA)}, 4, {v(LA)}")
        A.i(f"v_lshl_add_u32 {v(LA)}, v2, 7, {v(LA)}")
        A.i("s_and_b32 s52, s20, 1")
        A.i("s_lshl_b32 s52, s52, 3")
        A.i(f"s_add_u32 s52, s52, {LNY}")
        A.i(f"v_add_u32 {v(LA)}, s52, {v(LA)}")
        A.i(f"v_add_u32 {v(LA+1)}, {LNT}, v3")
        for q in range(8):
            unpack(XF + 2*q, XROW + q)
        stats(t)
    def ln_main(hi, after_b3=None):
        rs = f"{v(RS,2)}, {v(RS+2,2)} op_sel_hi:[1,0,0]"
        srd(A, 28, P_WS, 4*MB, WS['x1'])
        srd(A, 32, P_WS, 4*MB, WS['h2'])
        A.i("s_mov_b32 s27, 0xffff0000")
        for q in range(8):
            A.i(f"v_pk_fma_f32 {v(H+2*q,2)}, {v(XF+2*q,2)}, {rs}")
        A.i("s_barrier                         ; b3: modulation table ready, y on its way")
        if not hi: mark(3)
        for vec in (1, 0, 2, 4, 3):
            for hf in range(2):
                A.i(f"ds_read_b128 {v(M+(vec*2+hf)*4,4)}, {v(LA+1)} offset:{vec*2048 + hf*1024}")
        if after_b3: after_b3()
        SA, CA, GA = MF, MF+16, MF+32
        A.i("s_waitcnt lgkmcnt(6)")
        for q in range(8):
            unpack(CA+2*q, M+8+q); unpack(SA+2*q, M+q)
            A.i(f"v_pk_fma_f32 {v(H+2*q,2)}, {v(H+2*q,2)}, {v(CA+2*q,2)}, {v(SA+2*q,2)}")
        A.i("s_waitcnt lgkmcnt(4)")
        for q in range(8):
            unpack(GA+2*q, M+16+q)
            A.i(f"v_pk_mul_f32 {v(H+2*q,2)}, {v(H+2*q,2)}, {v(GA+2*q,2)}")
        A.i("s_waitcnt lgkmcnt(0)")
        SB, CB = MF, MF+16
        for q in range(8):
            unpack(CB+2*q, M+32+q); unpack(SB+2*q, M+24+q)
        if not hi:
            mark(16)
            A.i("s_waitcnt vmcnt(0)")
        A.i("s_barrier                         ; b4: y landed")
        if not hi: mark(17)
        for hf in range(2):
            for e in range(2):
                A.i(f"ds_read_b64 {v(Y+(hf*2+e)*2,2)}, {v(LA)} offset:{hf*8192 + e*64}")
        for q in range(8):
            t = T + (q % 2) * 2
            if q % 2 == 0: A.i(f"s_waitcnt lgkmcnt({3 - q//2})")
            unpack(t, Y + q)
            A.i(f"v_pk_fma_f32 {v(H+2*q,2)}, {v(H+2*q,2)}, {v(t,2)}, {v(XF+2*q,2)}")
            A.i(f"v_cvt_pk_bf16_f32 {v(X+q)}, {v(H+2*q)}, {v(H+2*q+1)}")
            unpack(XF+2*q, X+q)
        if not lazyx1:
            for hf in range(2):
                A.i(f"buffer_store_dwordx4 {v(X+hf*4,4)}, v3, s[28:31], s61 offen offset:{hf*1024} {WT}")
        stats(8)
        for q in range(8):
            A.i(f"v_pk_fma_f32 {v(H+2*q,2)}, {v(XF+2*q,2)}, {rs}")
            A.i(f"v_pk_fma_f32 {v(H+2*q,2)}, {v(H+2*q,2)}, {v(CB+2*q,2)}, {v(SB+2*q,2)}")
            A.i(f"v_cvt_pk_bf16_f32 {v(Y+q)}, {v(H+2*q)}, {v(H+2*q+1)}")
        for hf in range(2):
            A.i(f"buffer_store_dwordx4 {v(Y+hf*4,4)}, v3, s[32:35], s61 offen offset:{hf*1024} {WT}")
        A.i("s_lshl_b32 s22, s21, 10")
        A.i(f"v_mov_b32 v8, {CNT}")
    def ln_signal(tag):
        arrive(tag, 20, 8, "s22", F_H2, vc=8, vt=9)
        if lazyx1:
            for r in range(8): A.i(f"v_mov_b32 {v(112+r)}, {v(X+r)}")
            A.i("s_mov_b32 s34, s22")
            A.i("s_mov_b32 s35, s61")
    def x1_store(d):
        if lazyx1:
            srd(A, d, P_WS, 4*MB, WS['x1'])
            for hf in range(2):
                A.i(f"buffer_store_dwordx4 {v(112+hf*4,4)}, v3, s[{d}:{d+3}], s35 offen offset:{hf*1024} {WT}")
    def x1_signal(tag, vc, vt, wait="vmcnt(0)"):
        if lazyx1:
            A.i(f"v_mov_b32 {v(vc)}, {CNT}")
            arrive(tag, 32, 8, "s34", F_X1, vc=vc, vt=vt, wait=wait)

    def fblk_to(d, t):
        if m48:
            A.i(f"s_and_b32 {d}, s2, 1")
            A.i(f"s_lshl_b32 {d}, {d}, 3")
            A.i(f"s_lshr_b32 {t}, s2, 5")
        else:
            A.i(f"s_bfe_u32 {d}, s2, 0x20001")
            A.i(f"s_lshl_b32 {d}, {d}, 2")
            A.i(f"s_lshr_b32 {t}, s2, 6")
        A.i(f"s_add_u32 {d}, {d}, {t}            ; fblk")
    def g1_ids():
        if m48:
            A.i("s_bfe_u32 s21, s2, 0x20001")
            A.i("s_lshl_b32 s21, s21, 2")
            A.i("s_bfe_u32 s27, s2, 0x20003")
        else:
            A.i("s_and_b32 s21, s2, 1")
            A.i("s_lshl_b32 s21, s21, 3")
            A.i("s_bfe_u32 s27, s2, 0x30003")
        A.i("s_add_u32 s21, s21, s27            ; sblk")
        fblk_to("s22", "s27")
    def g2_ids():
        A.i("s_lshr_b32 s52, s22, 3             ; khalf")
        A.i("s_and_b32 s22, s22, 7")
    def blkidx(dst, c, j7, tmp):
        A.i(f"s_sub_u32 {tmp}, {c}, 6")
        A.i(f"s_cmp_ge_i32 {tmp}, {j7}")
        A.i(f"s_cselect_b32 {tmp}, {c}, {tmp}")
        A.i(f"s_add_u32 {dst}, {c}, {j7}")
        A.i(f"s_cmp_lt_u32 {c}, 6")
        A.i(f"s_cselect_b32 {dst}, {dst}, {tmp}")

    A.i("s_mov_b32 s22, s63                ; channel d")
    A.i(f"s_mul_i32 s62, s20, {WB}")
    A.i("s_lshl_b32 s24, s22, 12           ; d*4096")
    if not hearly:
        srd(A, 16, P_SSM, 4*MB)
        for u in range(4):
            A.i(f"buffer_load_dwordx4 {v(HH+4*u,4)}, v3, s[16:19], s24 offen offset:{1024*u} {nt}")
    if earlysig:
        arrive(f"{N}_ak", 16, 8, "s23", F_KV, wait="vmcnt(0)" if hearly else "vmcnt(4)", fast="s39" if fastkv else None)
        mark(21)
    Hh, XR = HH, 16
    A.i("v_mov_b32 v32, 0"); A.i("v_mov_b32 v33, 0"); A.i("v_mov_b32 v34, 0"); A.i("v_mov_b32 v35, 0")

    A.i("v_add_u32 v4, s62, v3")
    A.i(f"ds_write_b128 v4, v[32:35] offset:{XO}")
    A.i("v_min_u32 v5, 25, v2")
    A.i("v_lshlrev_b32 v5, 4, v5")
    A.i("v_add_u32 v5, s62, v5")
    A.i(f"ds_write_b128 v5, v[32:35] offset:{XO+1024}")
    A.i("v_and_b32 v6, 15, v2              ; r / i")
    A.i("v_lshrrev_b32 v7, 4, v2           ; g")
    A.i("v_and_b32 v8, 3, v6")
    A.i(f"v_mul_u32_u24 v8, {HC}, v8")
    A.i("v_lshl_add_u32 v5, v7, 4, v8")
    A.i("v_add_u32 v5, s62, v5")
    A.i("ds_write_b128 v5, v[32:35]")
    A.i("v_lshrrev_b32 v5, 2, v2")
    A.i("v_mul_u32_u24 v5, 96, v5")
    A.i("v_and_b32 v9, 3, v2")
    A.i("v_lshl_add_u32 v5, v9, 4, v5")
    A.i("v_add_u32 v5, s62, v5")
    A.i("v_lshrrev_b32 v9, 2, v6")
    A.i("v_lshlrev_b32 v10, 1, v7")
    A.i("v_sub_u32 v9, v9, v10")
    A.i("v_add_u32 v9, 7, v9")
    A.i("v_lshl_add_u32 v8, v9, 3, v8")
    A.i("v_add_u32 v8, s62, v8             ; vA")
    A.i("v_mul_u32_u24 v9, 96, v6")
    A.i("v_lshl_add_u32 v9, v7, 4, v9")
    A.i(f"s_add_u32 s25, s62, {XO + 96*14}")
    A.i("v_add_u32 v9, s25, v9             ; vB - 96")
    ACC = 48
    FS = [80, 128]
    for r in range(32):
        A.i(f"v_mov_b32 {v(ACC+r)}, 0")
    DI = 36
    A.i("v_lshlrev_b32 v10, 3, v7")
    A.i("v_add_u32 v10, 7, v10")
    A.i("v_sub_u32 v10, v10, v6")
    A.i("v_and_b32 v11, 1, v10")
    A.i("v_lshlrev_b32 v11, 4, v11")
    A.i("v_ashrrev_i32 v10, 1, v10")
    A.i("s_and_b32 s25, s22, 1")
    A.i("s_lshl_b32 s25, s25, 4")
    A.i("s_lshr_b32 s82, s82, s25")
    A.i("s_and_b32 s82, s82, 0xffff")
    A.i("v_lshlrev_b32 v11, v11, s82")
    for rt in range(2):
        for q in range(4):
            A.i(f"v_cmp_eq_u32 s[{8+2*q}:{9+2*q}], {q + 8*rt}, v10")
        for q in range(4):
            A.i(f"v_cndmask_b32 {v(DI+4*rt+q)}, 0, v11, s[{8+2*q}:{9+2*q}]")
    if not earlysig:
        arrive(f"{N}_ak", 16, 8, "s23", F_KV, wait="vmcnt(0)" if hearly else "vmcnt(4)", fast="s39" if fastkv else None)
        mark(21)
    P, TT = 96, 100
    for u in range(4):
        R = Hh + 4*u
        p = P + 2*(u % 2)
        t = TT + 12*(u % 2)
        A.i(f"s_waitcnt vmcnt({3-u})")
        if u == 0:
            A.i(f"v_mov_b32 {v(p)}, 0"); A.i(f"v_mov_b32 {v(p+1)}, 0")
        else:
            A.i(f"v_mov_b32_dpp {v(p)}, {v(R-2)} wave_ror:1 row_mask:0xf bank_mask:0xf")
            A.i(f"v_mov_b32_dpp {v(p+1)}, {v(R-1)} wave_ror:1 row_mask:0xf bank_mask:0xf")
        A.i(f"ds_write_b128 v4, {v(R,4)} offset:{3*HC + 64 + 1024*u}")
        A.i(f"v_mov_b32_dpp {v(p)}, {v(R+2)} wave_shr:1 row_mask:0xf bank_mask:0xf")
        A.i(f"v_mov_b32_dpp {v(p+1)}, {v(R+3)} wave_shr:1 row_mask:0xf bank_mask:0xf")
        A.i(f"v_alignbit_b32 {v(t+5)}, {v(R+1)}, {v(R)}, 16")
        A.i(f"v_alignbit_b32 {v(t+6)}, {v(R+2)}, {v(R+1)}, 16")
        A.i(f"v_alignbit_b32 {v(t+7)}, {v(R+3)}, {v(R+2)}, 16")
        A.i(f"v_alignbit_b32 {v(t+4)}, {v(R)}, {v(p+1)}, 16")
        A.i(f"ds_write_b128 v4, {v(t+4,4)} offset:{2*HC + 64 + 1024*u}")
        A.i(f"v_mov_b32 {v(t)}, {v(p+1)}")
        for e in range(3): A.i(f"v_mov_b32 {v(t+1+e)}, {v(R+e)}")
        A.i(f"ds_write_b128 v4, {v(t,4)} offset:{1*HC + 64 + 1024*u}")
        A.i(f"v_alignbit_b32 {v(t+8)}, {v(p+1)}, {v(p)}, 16")
        for e in range(3): A.i(f"v_mov_b32 {v(t+9+e)}, {v(t+4+e)}")
        A.i(f"ds_write_b128 v4, {v(t+8,4)} offset:{64 + 1024*u}")
    mark(23)
    A.i("s_lshr_b32 s25, s21, 4")
    A.i("s_lshl_b32 s25, s25, 14")
    A.i(f"s_add_u32 s25, s25, {F_KV}")
    A.i("v_lshlrev_b32 v10, 10, v6")
    A.i("v_add_u32 v10, s25, v10")
    srd(A, 28, P_WS, 4*MB, WS['kvT'])
    if fastkv:
        A.i("s_lshr_b32 s25, s21, 4")
        A.i("s_lshl_b32 s25, s25, 11")
        A.i(f"s_add_u32 s25, s25, {F_KVF}")
        A.i("v_lshlrev_b32 v11, 7, v6")
        A.i("v_add_u32 v11, s25, v11")
        poll2(A, f"{N}_pk", 10, 11, 12)
    else:
        poll(A, f"{N}_pk", 10)
    mark(22)
    for u in range(4):
        A.i(f"buffer_load_dwordx4 {v(XR+4*u,4)}, v3, s[28:31], s24 offen offset:{1024*u} {WT}")
    xrow_load()
    A.i("v_mov_b32 v15, 1")
    A.i("ds_add_u32 v14, v15 offset:8")
    for u in range(4):
        A.i(f"s_waitcnt vmcnt({5-u})")
        A.i(f"ds_write_b128 v5, {v(XR+4*u,4)} offset:{XO + 96*15 + 96*16*u}")
    A.i("s_waitcnt lgkmcnt(0)")
    mark(0)
    def creads(fs, par):
        out = []
        F = FS[fs]
        def ar(j):
            for rt in range(2):
                for hb in range(2):
                    out.append(f"ds_read_b64 {v(F+(j*2+rt)*4+2*hb,2)}, v8 offset:{64*(par+16*j) + 32*rt + 8*hb}")
        ar(0)
        for d in range(4):
            out.append(f"ds_read_b128 {v(F+32+4*d,4)}, v9 offset:{96*(16*d + 1 - par)}")
        for j in range(1,4): ar(j)
        return out
    def cbody(fs, side):
        F = FS[fs]
        side = list(side)
        n = 0
        for j in range(4):
            A.i("s_waitcnt lgkmcnt(12)" if n == 0 else "s_waitcnt lgkmcnt(15)")
            for d in range(4-j):
                for rt in range(2):
                    ac = ACC + ((j+d)*2+rt)*4
                    A.i(f"v_mfma_f32_16x16x32_bf16 {v(ac,4)}, {v(F+(j*2+rt)*4,4)}, {v(F+32+4*d,4)}, {v(ac,4)}")
                    if side: A.i(side.pop(0))
                    n += 1
        for x in side: A.i(x)
    for x in creads(0, 0): A.i(x)
    A.i("s_waitcnt lgkmcnt(12)")
    for d in range(4):
        for rt in range(2):
            ac = ACC + (d*2+rt)*4
            A.i(f"v_mfma_f32_16x16x32_bf16 {v(ac,4)}, {v(DI+4*rt,4)}, {v(FS[0]+32+4*d,4)}, {v(ac,4)}")
    A.i("s_mov_b32 s26, 8")
    A(".p2align 6")
    A.label(f"{N}_cv")
    cbody(0, creads(1, 1))
    A.i("v_add_u32 v8, 128, v8")
    A.i("v_subrev_u32 v9, 192, v9")
    cbody(1, creads(0, 0))
    A.i("s_sub_u32 s26, s26, 1")
    A.i("s_cmp_lg_u32 s26, 0")
    A.i(f"s_cbranch_scc1 {N}_cv")
    A.i("v_mul_u32_u24 v10, 80, v6")
    A.i("v_lshl_add_u32 v10, v7, 3, v10")
    A.i("v_add_u32 v10, s62, v10")
    srd(A, 16, P_WS, 4*MB, WS['y4'])
    A.i("s_waitcnt lgkmcnt(0)")
    for G in range(4):
        for rt in range(2):
            ac = ACC + (G*2+rt)*4
            d = 16 + (G*2+rt)*2
            A.i(f"v_cvt_pk_bf16_f32 {v(d)}, {v(ac)}, {v(ac+1)}")
            A.i(f"v_cvt_pk_bf16_f32 {v(d+1)}, {v(ac+2)}, {v(ac+3)}")
            A.i(f"ds_write_b64 v10, {v(d,2)} offset:{80*16*G + 32*rt}")
    A.i("v_lshrrev_b32 v11, 4, v0")
    A.i("v_mul_u32_u24 v11, 80, v11")
    A.i("v_lshl_add_u32 v11, v6, 2, v11")
    A.i(f"v_add_u32 v13, {3*WB}, v11")
    A.i("v_lshlrev_b32 v12, 4, v0")
    A.i("s_lshl_b32 s25, s21, 14")
    A.i("s_mov_b32 s34, 0x05040100")
    A.i("s_mov_b32 s35, 0x07060302")
    A.i("s_waitcnt lgkmcnt(0)")
    mark(1)
    A.i("v_mov_b32 v15, 1")
    A.i("ds_add_u32 v14, v15")
    A.label(f"{N}_ys")
    A.i("ds_read_b32 v15, v14")
    A.i("s_waitcnt lgkmcnt(0)")
    A.i("v_cmp_ne_u32 vcc, 256, v15")
    A.i("s_nop 1")
    A.i(f"s_cbranch_vccnz {N}_ys")
    mark(12)
    for u in range(4):
        for ch in range(4):
            if ch < 3: A.i(f"ds_read_b32 {v(48+4*u+ch)}, v11 offset:{ch*WB + 80*16*u}")
            else:      A.i(f"ds_read_b32 {v(48+4*u+ch)}, v13 offset:{80*16*u}")
    for u in range(4):
        A.i(f"s_waitcnt lgkmcnt({12-4*u})")
        s0 = 48+4*u; d = 64+4*u
        A.i(f"v_perm_b32 {v(d)}, {v(s0+1)}, {v(s0)}, s34")
        A.i(f"v_perm_b32 {v(d+1)}, {v(s0+3)}, {v(s0+2)}, s34")
        A.i(f"v_perm_b32 {v(d+2)}, {v(s0+1)}, {v(s0)}, s35")
        A.i(f"v_perm_b32 {v(d+3)}, {v(s0+3)}, {v(s0+2)}, s35")
        A.i(f"s_add_u32 s26, s25, {4096*u}")
        A.i(f"buffer_store_dwordx4 {v(d,4)}, v12, s[16:19], s26 offen {WT}")
    mark(13)
    A.i("s_lshl_b32 s22, s2, 10")
    arrive(f"{N}_ay", 28, 4, "s22", F_BAR)
    mark(2)
    A.i("s_mov_b32 s27, 0xffff0000")
    ln_pre(96)
    A.i("v_lshrrev_b32 v4, 4, v2")
    A.i("v_xor_b32 v4, v4, v2")
    A.i("v_and_b32 v4, 3, v4")
    A.i("v_lshlrev_b32 v4, 4, v4")
    A.i("v_lshrrev_b32 v5, 2, v2")
    A.i("v_lshl_add_u32 v4, v5, 14, v4")
    A.i("s_lshl_b32 s23, s21, 6")
    A.i("s_lshl_b32 s24, s20, 20")
    A.i("s_add_u32 s23, s23, s24")
    srd(A, 12, P_WS, 4*MB, WS['y4'])
    A.i("s_lshl_b32 s24, s20, 12")
    A.i(f"s_add_u32 m0, s24, {LNY}")
    A.i("s_cmp_lg_u32 s20, 0")
    A.i(f"s_cbranch_scc1 {N}_gw")
    A.i(f"v_mov_b32 v13, s{SV}")
    A.i("v_lshlrev_b32 v12, 10, v2")
    A.i(f"v_add_u32 v12, {F_BAR}, v12")
    poll_all(A, f"{N}_pg", 12, 4, cnt=39)
    A.i("v_mov_b32 v15, 1")
    A.i("ds_write_b32 v14, v15 offset:36")
    A.i(f"s_branch {N}_gx")
    A.label(f"{N}_gw")
    A.i("ds_read_b32 v15, v14 offset:36")
    A.i("s_waitcnt lgkmcnt(0)")
    A.i("v_cmp_ne_u32 vcc, 1, v15")
    A.i("s_nop 1")
    A.i(f"s_cbranch_vccnz {N}_gw")
    A.label(f"{N}_gx")
    mark(14)
    for e in range(4):
        A.i(f"buffer_load_dwordx4 v4, s[12:15], s23 offen {WT} lds")
        A.i("s_add_u32 m0, m0, 1024")
        A.i("s_add_u32 s23, s23, 0x40000")
    A.i("s_or_b32 s24, s2, s20")
    A.i("s_cmp_lg_u32 s24, 0")
    A.i(f"s_cbranch_scc1 {N}_gb")
    A.i(f"v_mov_b32 v12, {F_NONCE}")
    A.i(f"buffer_store_dword v13, v12, s[{FL}:{FL+3}], 0 offen {WT}")
    A.label(f"{N}_gb")
    ln_main(False)
    ACC = 128
    FS = [16, 60]
    vXb0, vXb1, vWb0, vWb1 = 4, 5, 6, 7
    vX0, vX1, vW0, vW1 = 104, 105, 106, 107
    A.i("s_and_b32 s28, s20, 1              ; ws")
    A.i("s_lshr_b32 s29, s20, 1             ; wf")
    A.i("v_and_b32 v110, 15, v2             ; n")
    A.i("v_lshrrev_b32 v12, 4, v2           ; g")
    A.i("v_and_b32 v13, 7, v110")
    A.i("v_xor_b32 v13, v13, v12")
    A.i("v_lshlrev_b32 v13, 4, v13")
    A.i("s_lshl_b32 s27, s28, 13")
    A.i(f"s_add_u32 s27, s27, {G1X}")
    A.i(f"v_lshl_add_u32 {v(vXb0)}, v110, 7, v13")
    A.i(f"v_add_u32 {v(vXb0)}, s27, {v(vXb0)}")
    A.i(f"v_xor_b32 {v(vXb1)}, 64, {v(vXb0)}")
    A.i("v_lshrrev_b32 v13, 2, v110")
    A.i("v_lshl_add_u32 v13, v12, 3, v13")
    A.i("v_mul_u32_u24 v13, 448, v13")
    A.i("v_and_b32 v14, 3, v2")
    A.i("v_lshl_add_u32 v13, v14, 3, v13")
    A.i("s_mul_i32 s27, s29, 224")
    A.i("v_add_u32 v13, s27, v13")
    A.i("v_and_b32 v14, 1, v12")
    A.i("v_lshlrev_b32 v14, 5, v14")
    A.i(f"v_add_u32 {v(vWb0)}, v13, v14")
    A.i(f"v_sub_u32 {v(vWb1)}, v13, v14")
    A.i("s_cmp_eq_u32 s29, 0")
    A.i(f"s_cbranch_scc1 {N}_noswap")
    A.i(f"v_swap_b32 {v(vWb0)}, {v(vWb1)}")
    A.label(f"{N}_noswap")
    for r in range(32, 112):
        A.i(f"v_mov_b32 {v(ACC+r)}, 0")
    mark(19)
    ln_signal(f"{N}_ah")
    mark(4)
    for r in range(32):
        A.i(f"v_mov_b32 {v(ACC+r)}, 0")
    g1_ids()
    srd(A, 16, P_WS, 2048*3584*2, WS['act'])
    def g1reads(fs, kk):
        out = []
        Xr, W = FS[fs], FS[fs] + 16
        vx = vX0 if kk == 0 else vX1
        def wr(t):
            for hb in range(2):
                out.append(f"ds_read_b64_tr_b16 {v(W+4*t+2*hb,2)}, {v(vW0 if t%2==0 else vW1)} offset:{(32*kk+4*hb)*448 + 32*t}")
        wr(0)
        for st in range(4):
            out.append(f"ds_read_b128 {v(Xr+4*st,4)}, {v(vx)} offset:{st*2048}")
        for t in range(1, 7): wr(t)
        return out
    def g1phase(fs, side):
        Xr, W = FS[fs], FS[fs] + 16
        side = list(side)
        for t in range(7):
            for st in range(4):
                ac = ACC + (t*4+st)*4
                A.i(f"v_mfma_f32_16x16x32_bf16 {v(ac,4)}, {v(W+4*t,4)}, {v(Xr+4*st,4)}, {v(ac,4)}")
                if side: A.i(side.pop(0))
        for x in side: A.i(x)
    A.i("s_mov_b32 s26, 0")
    A.i("s_mov_b32 s24, 0")
    A.i(f"v_mov_b32 {v(vX0)}, {v(vXb0)}")
    A.i(f"v_mov_b32 {v(vX1)}, {v(vXb1)}")
    A.i(f"v_mov_b32 {v(vW0)}, {v(vWb0)}")
    A.i(f"v_mov_b32 {v(vW1)}, {v(vWb1)}")
    A.i("s_mov_b32 s23, 16")
    A.i("s_barrier                          ; G1 B0")
    mark(5)
    for x in g1reads(0, 0): A.i(x)
    x1_store(8)
    A(".p2align 6")
    A.label(f"{N}_g1c")
    A.i("s_waitcnt lgkmcnt(0)")
    nxt = ["s_add_u32 s26, s26, 28672", "s_add_u32 s24, s24, 16384", "s_cmp_eq_u32 s24, 49152",
           "s_cselect_b32 s26, 0, s26", "s_cselect_b32 s24, 0, s24",
           f"v_add_u32 {v(vX0)}, s24, {v(vXb0)}", f"v_add_u32 {v(vW0)}, s26, {v(vWb0)}",
           f"v_add_u32 {v(vW1)}, s26, {v(vWb1)}", f"v_add_u32 {v(vX1)}, s24, {v(vXb1)}"]
    g1phase(0, g1reads(1, 1) + nxt)
    A.i("s_waitcnt lgkmcnt(0)")
    A.i("s_barrier")
    g1phase(1, g1reads(0, 0) + ["s_sub_u32 s23, s23, 1", "s_cmp_lg_u32 s23, 0"])
    A.i(f"s_cbranch_scc1 {N}_g1c")
    mark(6)
    x1_signal(f"{N}_ax", 8, 9)
    A.i("s_lshl_b32 s27, s21, 3")
    A.i("s_lshl_b32 s30, s28, 2")
    A.i("s_add_u32 s27, s27, s30")
    A.i("s_mul_i32 s27, s27, 112")
    A.i("s_mul_i32 s30, s22, 7")
    A.i("s_add_u32 s27, s27, s30")
    A.i("s_lshl_b32 s27, s27, 10")
    A.i("v_and_b32 v13, 1, v12")
    A.i("v_lshrrev_b32 v14, 1, v12")
    A.i("v_lshl_or_b32 v13, v13, 1, v14     ; pi(g)")
    A.i("v_lshlrev_b32 v108, 4, v13")
    A.i("v_lshlrev_b32 v13, 8, v13")
    A.i("v_lshl_add_u32 v13, v110, 4, v13")
    A.i("v_lshlrev_b32 v14, 8, v14")
    A.i("v_lshl_add_u32 v14, v110, 4, v14")
    A.i("v_and_b32 v15, 1, v12")
    A.i(f"v_mul_u32_u24 v15, {112*1024}, v15")
    A.i("v_add_u32 v14, v15, v14")
    A.i("s_lshl_b32 s30, s28, 13")
    A.i(f"s_add_u32 s30, s30, {G2X}")
    A.i("v_add_u32 v10, s30, v13")
    A.i("v_lshrrev_b32 v11, 1, v12")
    A.i("v_lshlrev_b32 v11, 8, v11")
    A.i("v_lshl_add_u32 v11, v110, 4, v11")
    A.i("v_and_b32 v9, 1, v12")
    A.i("v_lshl_add_u32 v11, v9, 11, v11")
    A.i("v_add_u32 v11, s30, v11")
    A.i(f"s_mov_b32 s32, 0x{LOG2E ^ 0x80000000:x}")
    A.i("s_waitcnt lgkmcnt(0)")
    def silu4(dst, ac, tmp):
        A.i(f"v_pk_mul_f32 {v(tmp,2)}, {v(ac,2)}, s[32:33] op_sel_hi:[1,0]")
        A.i(f"v_pk_mul_f32 {v(tmp+2,2)}, {v(ac+2,2)}, s[32:33] op_sel_hi:[1,0]")
        for r in range(4): A.i(f"v_exp_f32 {v(tmp+r)}, {v(tmp+r)}")
        A.i(f"v_pk_add_f32 {v(tmp,2)}, {v(tmp,2)}, 1.0 op_sel_hi:[1,0]")
        A.i(f"v_pk_add_f32 {v(tmp+2,2)}, {v(tmp+2,2)}, 1.0 op_sel_hi:[1,0]")
        for r in range(4): A.i(f"v_rcp_f32 {v(tmp+r)}, {v(tmp+r)}")
        A.i(f"v_pk_mul_f32 {v(tmp,2)}, {v(tmp,2)}, {v(ac,2)}")
        A.i(f"v_pk_mul_f32 {v(tmp+2,2)}, {v(tmp+2,2)}, {v(ac+2,2)}")
        A.i(f"v_cvt_pk_bf16_f32 {v(dst)}, {v(tmp)}, {v(tmp+1)}")
        A.i(f"v_cvt_pk_bf16_f32 {v(dst+1)}, {v(tmp+2)}, {v(tmp+3)}")
    def ebody(wf):
        pairs = [(0,0),(2,1),(4,2)] if wf == 0 else [(1,4),(3,5),(5,6)]
        single = 6 if wf == 0 else 0
        cnt = 0
        for st in range(4):
            A.i(f"s_add_u32 s30, s27, {st*112*1024}")
            for (t, blk) in pairs:
                d = 16 + (cnt % 4) * 4
                cnt += 1
                silu4(d, ACC + (t*4+st)*4, 40)
                silu4(d+2, ACC + ((t+1)*4+st)*4, 44)
                A.i("s_nop 1")
                A.i(f"v_permlane16_swap_b32 {v(d)}, {v(d+2)}")
                A.i(f"v_permlane16_swap_b32 {v(d+1)}, {v(d+3)}")
                A.i(f"buffer_store_dwordx4 {v(d,4)}, {'v13' if blk < 4 else 'v15'}, s[16:19], s30 offen offset:{(blk%4)*1024} {actst}")
                if blk < 6: A.i(f"ds_write_b128 v10, {v(d,4)} offset:{(blk//2)*16384 + st*2048 + (blk%2)*1024}")
            if st % 2 == 0:
                d = 32 + (st // 2) * 4
                silu4(d, ACC + (single*4+st)*4, 40)
                silu4(d+2, ACC + (single*4+st+1)*4, 44)
                A.i("s_nop 1")
                A.i(f"v_permlane16_swap_b32 {v(d)}, {v(d+2)}")
                A.i(f"v_permlane16_swap_b32 {v(d+1)}, {v(d+3)}")
                A.i(f"buffer_store_dwordx4 {v(d,4)}, v14, s[16:19], s30 offen offset:{3*1024 + wf*512} {actst}")
                A.i(f"ds_write_b128 v11, {v(d,4)} offset:{16384 + 1024 + st*2048 + wf*512}")
    A.i("v_add_u32 v15, 4096, v13")
    A.i("s_cmp_eq_u32 s29, 0")
    A.i(f"s_cbranch_scc0 {N}_epi1")
    ebody(0)
    A.i(f"s_branch {N}_epi2")
    A.label(f"{N}_epi1")
    ebody(1)
    A.label(f"{N}_epi2")
    mark(7)
    A.i("s_lshl_b32 s62, s21, 4")
    A.i("s_add_u32 s62, s62, s22")
    A.i("s_lshl_b32 s62, s62, 10")

    FS = [16, 48]
    vXb, vWb = 12, 13
    vX, vW = 4, 8
    X1, GB = 96, 112
    g2_ids()
    A.i("v_lshl_add_u32 v81, v110, 11, v108")
    A.i("s_lshl_b32 s30, s21, 1")
    A.i("s_add_u32 s30, s30, s28")
    A.i("s_lshl_b32 s30, s30, 17")
    A.i("s_lshl_b32 s31, s22, 1")
    A.i("s_add_u32 s31, s31, s29")
    A.i("s_lshl_b32 s31, s31, 1")
    A.i("s_add_u32 s31, s31, s52")
    A.i("s_lshl_b32 s31, s31, 6")
    A.i("s_add_u32 s30, s30, s31")
    A.i("s_lshl_b32 s31, s31, 1")
    A.i(f"s_add_u32 s31, s31, {5*4096}")
    A.i("v_lshrrev_b32 v14, 4, v2           ; g")
    A.i("v_lshrrev_b32 v80, 2, v110")
    A.i("v_lshl_add_u32 v82, v14, 3, v80")
    A.i("v_and_b32 v83, 1, v14")
    A.i("v_xor_b32 v83, s29, v83")
    A.i("v_lshl_or_b32 v80, v83, 2, v80")
    A.i("v_lshlrev_b32 v80, 5, v80")
    A.i("v_and_b32 v83, 3, v2")
    A.i("v_lshl_add_u32 v80, v83, 3, v80")
    A.i(f"v_lshl_add_u32 {v(vWb)}, v82, 8, v80")
    A.i("s_lshl_b32 s27, s52, 6")
    A.i(f"v_xor_b32 {v(vWb)}, s27, {v(vWb)}")
    A.i("s_lshl_b32 s27, s28, 13")
    A.i(f"s_add_u32 s27, s27, {G2X}")
    A.i(f"v_add_u32 {v(vXb)}, s27, v3")
    A.i("v_mov_b32 v83, 0")
    A.i(f"v_mov_b32 v94, s{SV}")
    A.i(f"v_mov_b32 v92, {CNT}")
    def g2addr():
        out = ["s_add_u32 s26, s26, 16384", "s_and_b32 s26, s26, 0xffff",
               f"v_add_u32 {v(vW)}, s26, {v(vWb)}", f"v_add_u32 {v(vX)}, s26, {v(vXb)}"]
        for t in range(1, 4):
            out.append(f"v_xor_b32 {v(vW+t)}, {32*t}, {v(vW)}")
        return out
    def g2reads(fs, kk):
        out = []
        Xr, W = FS[fs], FS[fs] + 16
        def wr(t):
            for hb in range(2):
                out.append(f"ds_read_b64_tr_b16 {v(W+4*t+2*hb,2)}, {v(vW+t)} offset:{kk*8192 + hb*1024}")
        wr(0)
        for st in range(4):
            out.append(f"ds_read_b128 {v(Xr+4*st,4)}, {v(vX)} offset:{st*2048 + kk*1024}")
        for t in range(1, 4): wr(t)
        return out
    def g2phase(fs, side):
        Xr, W = FS[fs], FS[fs] + 16
        side = list(side)
        n = 0
        for t in range(4):
            for st in range(4):
                ac = ACC + (t*4+st)*4
                A.i(f"v_mfma_f32_16x16x32_bf16 {v(ac,4)}, {v(W+4*t,4)}, {v(Xr+4*st,4)}, {v(ac,4)}")
                n += 1
                for _ in range(1 if n <= 12 else 2):
                    if side: A.i(side.pop(0))
        for x in side: A.i(x)
    A.i("s_mov_b32 s26, 49152")
    for x in g2addr(): A.i(x)
    srd(A, 8, P_WS, 4*MB, WS['x1'])
    srd(A, 12, P_WS, 2*24576, WS['mod'])
    srd(A, 16, P_OUT, 4*MB)
    A.i("v_lshlrev_b32 v15, 1, v108")
    A.i(f"s_add_u32 s25, s31, 24576")
    A.i("s_mov_b32 s23, 28")
    A.i("s_waitcnt lgkmcnt(0)")
    A.i("s_barrier                          ; G2 B0")
    mark(9)
    for x in g2reads(0, 0): A.i(x)
    for r in range(64):
        A.i(f"v_mov_b32 {v(ACC+r)}, 0")
    arrive(f"{N}_aa", 24, 4, "s62", F_ACT, vc=92, vt=93)
    mark(8)
    for st in range(4):
        A.i(f"s_add_u32 s{32+st}, s30, {st*16*2048}")
        if not lazyx1:
            A.i(f"buffer_load_dwordx4 {v(X1+4*st,4)}, v81, s[8:11], s{32+st} offen {WT}")
    for h in range(2):
        for e in range(2):
            A.i(f"buffer_load_dwordx4 {v(GB+8*h+4*e,4)}, v15, s[12:15], {'s31' if h==0 else 's25'} offen offset:{16*e} {WT}")
    srd(A, 8, P_WS, 4*MB, WS['xch'])
    if lazyx1: srd(A, 12, P_WS, 4*MB, WS['x1'])
    A(".p2align 6")
    A.label(f"{N}_g2c")
    A.i("s_waitcnt lgkmcnt(0)")
    g2phase(0, g2reads(1, 1) + g2addr())
    A.i("s_waitcnt lgkmcnt(0)")
    A.i("s_barrier")
    g2phase(1, g2reads(0, 0) + ["s_sub_u32 s23, s23, 1", "s_cmp_lg_u32 s23, 0"])
    A.i(f"s_cbranch_scc1 {N}_g2c")
    mark(10)
    A.i("s_lshl_b32 s27, s2, 2")
    A.i("s_add_u32 s27, s27, s20")
    A.i(f"s_xor_b32 s36, s27, {4 if m48 else 16}")
    A.i("s_lshl_b32 s53, s27, 12")
    A.i("s_lshl_b32 s54, s36, 12")
    A.i("s_lshl_b32 s63, s2, 10")
    A.i("s_lshl_b32 s27, s20, 7")
    A.i("s_add_u32 s63, s63, s27")
    A.i(f"s_xor_b32 s27, s63, {1024 if m48 else 4096}")
    A.i("v_mov_b32 v82, s27")
    A.i("s_mov_b32 s27, 0xffff0000")
    A.i("s_waitcnt vmcnt(0) lgkmcnt(0)")
    send, keep = ACC + 32, ACC
    if lazyx1:
        for st in range(4):
            A.i(f"buffer_load_dwordx4 {v(X1+4*st,4)}, v81, s[12:15], s{32+st} offen {WT}")
    for st in range(4):
        d, a2 = send + st*4, send + 16 + st*4
        A.i(f"v_cvt_pk_bf16_f32 {v(d)}, {v(d)}, {v(d+1)}")
        A.i(f"v_cvt_pk_bf16_f32 {v(d+1)}, {v(d+2)}, {v(d+3)}")
        A.i(f"v_cvt_pk_bf16_f32 {v(d+2)}, {v(a2)}, {v(a2+1)}")
        A.i(f"v_cvt_pk_bf16_f32 {v(d+3)}, {v(a2+2)}, {v(a2+3)}")
        A.i("s_nop 1")
        A.i(f"v_permlane16_swap_b32 {v(d)}, {v(d+2)}")
        A.i(f"v_permlane16_swap_b32 {v(d+1)}, {v(d+3)}")
        A.i(f"buffer_store_dwordx4 {v(d,4)}, v3, s[8:11], s53 offen offset:{1024*st} {WT}")
    for q in range(4):
        A.i(f"v_pk_add_f32 {v(84+2*q,2)}, {v(GB+2*q,2)}, {v(GB+8+2*q,2)}")
        A.i(f"v_cvt_pk_bf16_f32 v92, {v(84+2*q)}, {v(85+2*q)}")
        A.i(f"v_lshlrev_b32 {v(84+2*q)}, 16, v92")
        A.i(f"v_and_b32 {v(85+2*q)}, s27, v92")
    def base(st):
        p, q = keep + st*4, keep + 16 + st*4
        for r in range(4):
            A.i(f"v_permlane16_swap_b32 {v(p+r)}, {v(q+r)}")
        for hh in range(4):
            src = (p if hh < 2 else q) + 2*(hh % 2)
            t = 32 + 2*(hh % 2)
            A.i(f"v_lshlrev_b32 {v(t)}, 16, {v(X1+4*st+hh)}")
            A.i(f"v_and_b32 {v(t+1)}, s27, {v(X1+4*st+hh)}")
            A.i(f"v_pk_fma_f32 {v(src,2)}, {v(src,2)}, {v(84+2*hh,2)}, {v(t,2)}")
    if lazyx1: A.i("s_waitcnt vmcnt(4)")
    base(0); base(1)
    A.i("s_waitcnt vmcnt(0)")
    mark(62)
    A.i("s_mov_b64 exec, 1")
    A.i(f"buffer_store_dword v94, off, s[{FL}:{FL+3}], s63 {WT}")
    A.i("s_mov_b64 exec, -1")
    base(2); base(3)
    poll(A, f"{N}_px", 82, vt=95)
    mark(11)
    for st in range(4):
        A.i(f"buffer_load_dwordx4 {v(16+4*st,4)}, v3, s[8:11], s54 offen offset:{1024*st} {WT}")
    for st in range(4):
        p, q = keep + st*4, keep + 16 + st*4
        A.i("s_waitcnt vmcnt(3)")
        for hh in range(4):
            src = (p if hh < 2 else q) + 2*(hh % 2)
            t = 32 + 2*(hh % 2)
            A.i(f"v_lshlrev_b32 {v(t)}, 16, {v(16+4*st+hh)}")
            A.i(f"v_and_b32 {v(t+1)}, s27, {v(16+4*st+hh)}")
            A.i(f"v_pk_fma_f32 {v(t,2)}, {v(t,2)}, {v(84+2*hh,2)}, {v(src,2)}")
            A.i(f"v_cvt_pk_bf16_f32 {v(X1+4*st+hh)}, {v(t)}, {v(t+1)}")
        A.i(f"buffer_store_dwordx4 {v(X1+4*st,4)}, v81, s[16:19], s{32+st} offen {outf}")
    A.label(f"{N}_fin")
    if ts and tsw < 4 and spin is None: ts_end(A, N, P_WS, tsw)
    if spin is not None:
        A.i("s_waitcnt vmcnt(0)")
        A.i("s_memrealtime s[42:43]")
        A.i("s_waitcnt lgkmcnt(0)")
        A.i(f"s_cmp_lg_u32 s2, {spin[1]}")
        A.i(f"s_cbranch_scc1 {N}_done")
        A.i("s_cmp_lg_u32 s20, 0")
        A.i(f"s_cbranch_scc1 {N}_done")
        src = {-1: "s40", -2: "s42"}.get(spin[0], "s84")
        A.i(f"s_sub_u32 s46, {src}, s40")
        A.i("s_min_u32 s46, s46, 10000")
        A.i("s_mul_i32 s46, s46, 2")
        A.i("s_add_u32 s46, s46, 1000")
        A.i("s_add_u32 s46, s46, s42")
        A.label(f"{N}_spin")
        A.i("s_memrealtime s[44:45]")
        A.i("s_waitcnt lgkmcnt(0)")
        A.i("s_sub_u32 s45, s46, s44")
        A.i("s_cmp_gt_i32 s45, 0")
        A.i(f"s_cbranch_scc1 {N}_spin")
    A.i("s_endpgm")

    def l_epilogue():
        pass
    def l_pre(xw):
        A.i("v_lshrrev_b32 v166, 3, v2")
        A.i("v_and_b32 v175, 7, v2")
        A.i("v_xor_b32 v175, v175, v166")
        A.i("v_lshlrev_b32 v175, 4, v175")
        A.i("v_lshl_add_u32 v175, v166, 11, v175")
        A.i("s_mul_i32 s52, s63, 448")
        A.i("v_add_u32 v162, s52, v2")
        A.i("s_movk_i32 s52, 2341")
        A.i("s_movk_i32 s53, 7168")
        for q in range(7):
            A.i(f"v_add_u32 v163, {64*q}, v162")
            A.i("v_mul_u32_u24 v164, s52, v163")
            A.i("v_lshrrev_b32 v164, 16, v164")
            A.i("v_mul_u32_u24 v165, 28, v164")
            A.i("v_sub_u32 v163, v163, v165")
            A.i("v_bfe_u32 v165, v164, 3, 1")
            A.i("v_lshlrev_b32 v165, 1, v165")
            A.i("v_xor_b32 v163, v163, v165")
            A.i("v_mul_u32_u24 v164, s53, v164")
            A.i(f"v_lshl_add_u32 {v(168+q)}, v163, 4, v164")
        pass
    A.label(f"{N}_L")
    for u in range(2):
        A.i(f"buffer_load_dwordx4 {v(CR+4*u,4)}, {v(vCO)}, s[28:31], s37 offen offset:{16*u}")
    stream(E1, E1+E2)
    arrive(f"{N}_ak2", 16, 8, "s23", F_KV, wait=f"vmcnt({2+E2})", fast="s39" if fastkv else None)
    A.i("s_cmp_ge_u32 s2, 192")
    A.i(f"s_cbranch_scc1 {N}_Lidle")
    S = 32
    A.i(f"s_mov_b32 s39, 0x{LOG2E ^ 0x80000000:x}")
    A.i(f"s_waitcnt vmcnt({E2})")
    for q in range(8):
        A.i(f"v_lshlrev_b32 {v(S+4*q)}, 16, {v(CR+q)}")
        A.i(f"v_and_b32 {v(S+4*q+2)}, s27, {v(CR+q)}")
    for q in range(8):
        x0, x1 = S+4*q, S+4*q+2
        A.i(f"v_mul_f32 v8, s39, {v(x0)}")
        A.i(f"v_mul_f32 v9, s39, {v(x1)}")
        A.i("v_exp_f32 v8, v8"); A.i("v_exp_f32 v9, v9")
        A.i("s_nop 0")
        A.i("v_add_f32 v8, 1.0, v8"); A.i("v_add_f32 v9, 1.0, v9")
        A.i("v_rcp_f32 v8, v8"); A.i("v_rcp_f32 v9, v9")
        A.i("s_nop 0")
        A.i(f"v_mul_f32 v8, v8, {v(x0)}"); A.i(f"v_mul_f32 v9, v9, {v(x1)}")
        A.i("v_cvt_pk_bf16_f32 v8, v8, v9")
        A.i(f"v_lshlrev_b32 {v(x0)}, 16, v8")
        A.i(f"v_and_b32 {v(x1)}, s27, v8")
    AC = 16
    for r in range(8): A.i(f"v_mov_b32 {v(AC+r)}, 0")
    def fma_rows(j0, j1, later):
        for j in range(j0, j1):
            A.i(f"s_waitcnt vmcnt({later(j)})")
            for q in range(4):
                t = 8 + 2*(q % 2)
                A.i(f"v_lshlrev_b32 {v(t)}, 16, {v(SD+4*j+q)}")
                A.i(f"v_and_b32 {v(t+1)}, s27, {v(SD+4*j+q)}")
                A.i(f"v_pk_fma_f32 {v(AC+2*q,2)}, {v(t,2)}, {v(S+2*j,2)}, {v(AC+2*q,2)} op_sel_hi:[1,0,1]")
    fma_rows(0, E1+E2, lambda j: min(E2, E1+E2-1-j))
    l_pre(0)
    page_touch(f"{N}_pt1")
    mark(30)
    gate(f"{N}_gk")
    mark(31)
    xrow_load()
    stream(E1+E2, 16)
    code_touch(f"{N}_ct1")
    def conv_wait(tag, need):
        A.label(tag)
        A.i("s_sleep 2")
        A.i("ds_read_b32 v15, v14")
        A.i("s_waitcnt lgkmcnt(0)")
        A.i(f"v_cmp_gt_u32 vcc, {need}, v15")
        A.i("s_nop 1")
        A.i(f"s_cbranch_vccnz {tag}")
    if defer == 2: conv_wait(f"{N}_cw", 64)
    A.i(f"s_waitcnt vmcnt({16-E1-E2})")
    ln_pre(64)
    if defer == 1: conv_wait(f"{N}_cw", 64)
    mark(32)
    if prio: A.i(f"s_setprio {prio}")
    fma_rows(E1+E2, 16, lambda j: 15-j)
    mark(33)
    A.i("s_nop 1")
    for r in range(8):
        A.i(f"v_add_f32_dpp {v(AC+r)}, {v(AC+r)}, {v(AC+r)} row_ror:8 row_mask:0xf bank_mask:0xf")
    for sw in ("v_permlane16_swap_b32", "v_permlane32_swap_b32"):
        for r in range(8): A.i(f"v_mov_b32 {v(24+r)}, {v(AC+r)}")
        for r in range(8): A.i(f"{sw} {v(AC+r)}, {v(24+r)}")
        for r in range(8): A.i(f"v_add_f32 {v(AC+r)}, {v(AC+r)}, {v(24+r)}")
    A.i("s_lshl_b32 s25, s63, 8")
    A.i(f"s_add_u32 s25, s25, {GP}")
    A.i("v_and_b32 v8, 7, v2")
    A.i("v_lshlrev_b32 v8, 5, v8")
    A.i("v_add_u32 v8, s25, v8")
    A.i(f"ds_write_b128 v8, {v(AC,4)}")
    A.i(f"ds_write_b128 v8, {v(AC+4,4)} offset:16")
    A.i(f"v_mov_b32 v9, {CNT+4}")
    A.i("v_mov_b32 v10, 1")
    A.i("s_waitcnt lgkmcnt(0)")
    A.i("ds_add_rtn_u32 v10, v9, v10")
    A.i("s_waitcnt lgkmcnt(0)")
    A.i("v_cmp_le_u32 vcc, 192, v10")
    A.i("s_nop 1")
    A.i(f"s_cbranch_vccz {N}_Lj")
    A.i("v_lshlrev_b32 v8, 2, v2")
    A.i(f"v_add_u32 v9, {GP}, v8")
    for p in range(4):
        A.i(f"ds_read_b32 {v(16+p)}, v9 offset:{256*p}")
    srd(A, 16, P_WS, 2*24576, WS['mod'])
    A.i("s_and_b32 s25, s2, 1")
    A.i("s_mul_i32 s25, s25, 24576")
    A.i("s_lshl_b32 s26, s36, 8")
    A.i("s_add_u32 s25, s25, s26")
    A.i("s_waitcnt lgkmcnt(0)")
    A.i("v_add_f32 v16, v16, v17")
    A.i("v_add_f32 v18, v18, v19")
    A.i("v_add_f32 v16, v16, v18")
    A.i(f"buffer_store_dword v16, v8, s[16:19], s25 offen {WT}")
    A.i("s_lshl_b32 s25, s2, 7")
    A.i(f"s_add_u32 s25, s25, {F_MOD}")
    A.i("s_waitcnt vmcnt(0)")
    A.i("s_mov_b64 exec, 1")
    A.i(f"buffer_store_dword v13, off, s[{FL}:{FL+3}], s25 {WT}")
    A.i("s_mov_b64 exec, -1")
    A.i(f"s_branch {N}_Lj")
    A.label(f"{N}_Lidle")
    l_pre(0)
    page_touch(f"{N}_pt2")
    gate(f"{N}_gk2")
    xrow_load()
    code_touch(f"{N}_ct2")
    A.i("s_waitcnt vmcnt(0)")
    ln_pre(64)
    if pw1:
        srd(A, 12, P_W1, D1*64*7168)
        A.i("s_sub_u32 s30, s2, 192")
        A.i("s_lshl_b32 s30, s30, 2")
        A.i("s_add_u32 s30, s30, s63")
        A.i(f"s_mul_i32 s30, s30, {D1*14*128}")
        A.i("v_lshlrev_b32 v11, 7, v2")
        n = D1*14
        for b in range(0, n, 64):
            if n - b < 64: A.i(f"v_min_u32 v11, {(n-b-1)*128}, v11")
            A.i("buffer_load_dword v12, v11, s[12:15], s30 offen")
            A.i("s_add_u32 s30, s30, 8192")
    A.label(f"{N}_Lj")
    if prio: A.i("s_setprio 0")
    A.i("s_waitcnt lgkmcnt(0)")
    mark(34)
    A.i("v_lshlrev_b32 v4, 7, v2")
    A.i(f"v_add_u32 v4, {F_MOD}, v4")
    srd(A, 16, P_WS, 2*24576, WS['mod'])
    A.i("v_and_b32 v7, 0xff, v0")
    A.i("v_lshlrev_b32 v6, 3, v7")
    A.i(f"v_add_u32 v6, {LNT}, v6")
    A.i("v_lshlrev_b32 v7, 4, v7")
    fblk_to("s80", "s22")
    A.i("s_mul_i32 s80, s80, 448            ; W soffset")
    A.i("s_mul_i32 s81, s63, 7168")
    srd(A, 8, P_W1, 1024*7168)
    def g1w(slot):
        for q in range(7):
            A.i(f"s_add_u32 m0, s81, {slot + q*1024}" if isinstance(slot, int) else f"s_add_u32 m0, {slot}, {q*1024}")
            A.i("s_nop 0")
            A.i(f"buffer_load_dwordx4 {v(168+q)}, s[8:11], s80 offen lds")
        A.i(f"s_add_u32 s80, s80, {64*7168}")
    if prefill == 'y':
        A.label(f"{N}_pfy")
        A.i("ds_read_b32 v15, v14 offset:28")
        A.i("s_waitcnt lgkmcnt(0)")
        A.i("v_cmp_ne_u32 vcc, 4, v15")
        A.i("s_sleep 1")
        A.i(f"s_cbranch_vccnz {N}_pfy")
        for j in range(npf): g1w(G1W + j*28672)
    if onepm:
        A.i("s_cmp_lg_u32 s63, 0")
        A.i(f"s_cbranch_scc1 {N}_pmw")
        if pmgate:
            A.label(f"{N}_pmg")
            A.i("ds_read_b32 v15, v14 offset:28")
            A.i("s_waitcnt lgkmcnt(0)")
            A.i("v_cmp_ne_u32 vcc, 4, v15")
            A.i("s_sleep 1")
            A.i(f"s_cbranch_vccnz {N}_pmg")
        poll_all(A, f"{N}_pm", 4, 3, cnt=39, stride=8192)
        A.i("v_mov_b32 v15, 1")
        A.i("ds_write_b32 v14, v15 offset:12")
        A.label(f"{N}_pmw")
        A.i("ds_read_b32 v15, v14 offset:12")
        A.i("s_waitcnt lgkmcnt(0)")
        A.i("v_cmp_ne_u32 vcc, 1, v15")
        A.i("s_sleep 1")
        A.i(f"s_cbranch_vccnz {N}_pmw")
    else:
        poll_ctr(A, f"{N}_pm", 4, 8, 12)
    mark(35)
    for r in range(5):
        for h in range(2):
            A.i(f"s_mov_b32 s22, {4096*r + 24576*h}")
            A.i(f"buffer_load_dwordx4 {v(32+8*r+4*h,4)}, v7, s[16:19], s22 offen {WT}")
    for r in range(5):
        b = 32 + 8*r
        A.i(f"s_waitcnt vmcnt({2*(4-r)})")
        A.i(f"v_pk_add_f32 {v(b,2)}, {v(b,2)}, {v(b+4,2)}")
        A.i(f"v_pk_add_f32 {v(b+2,2)}, {v(b+2,2)}, {v(b+6,2)}")
        A.i(f"v_cvt_pk_bf16_f32 {v(b+4)}, {v(b)}, {v(b+1)}")
        A.i(f"v_cvt_pk_bf16_f32 {v(b+5)}, {v(b+2)}, {v(b+3)}")
        if r in (1, 4):
            unpack(b, b+4); unpack(b+2, b+5)
            A.i(f"v_pk_add_f32 {v(b,2)}, {v(b,2)}, 1.0 op_sel_hi:[1,0]")
            A.i(f"v_pk_add_f32 {v(b+2,2)}, {v(b+2,2)}, 1.0 op_sel_hi:[1,0]")
            A.i(f"v_cvt_pk_bf16_f32 {v(b+4)}, {v(b)}, {v(b+1)}")
            A.i(f"v_cvt_pk_bf16_f32 {v(b+5)}, {v(b+2)}, {v(b+3)}")
        A.i(f"ds_write_b64 v6, {v(b+4,2)} offset:{2048*r}")
    def pf():
        if prefill == 'b3':
            for j in range(npf): g1w(G1W + j*28672)
    A.i("s_waitcnt lgkmcnt(0)")
    mark(36)
    ln_main(True, pf)
    mark(37)
    ln_signal(f"{N}_ah2")
    mark(38)
    if prefill == 'sig':
        for j in range(npf): g1w(G1W + j*28672)
    g1_ids()
    A.i("s_lshl_b32 s24, s21, 4")
    A.i("s_lshl_b32 s27, s63, 2")
    A.i("s_add_u32 s24, s24, s27")
    A.i("v_and_b32 v4, 3, v2")
    A.i("v_add_u32 v4, s24, v4")
    A.i("v_lshlrev_b32 v4, 10, v4")
    A.i(f"v_add_u32 v4, {F_H2}, v4")
    A.i("s_lshl_b32 s24, s24, 14")
    A.i("s_lshl_b32 s33, s63, 12")
    A.i(f"s_add_u32 s33, s33, {G1X}")
    srd(A, 12, P_WS, 4*MB, WS['h2'])
    A.i("s_lshl_b32 s82, s2, 2")
    A.i("s_add_u32 s82, s82, s63           ; wave 0..1023")
    if xw1:
        A.i("s_lshr_b32 s38, s2, 3")
        A.i("s_lshl_b32 s38, s38, 1")
        A.i("s_lshr_b32 s39, s63, 1")
        A.i("s_add_u32 s38, s38, s39")
        A.i("s_mul_i32 s38, s38, 7168")
        A.i("s_bfe_u32 s39, s2, 0x20001")
        A.i("s_lshl_b32 s39, s39, 1")
        A.i("s_and_b32 s53, s63, 1")
        A.i("s_add_u32 s39, s39, s53")
        A.i("s_mul_i32 s39, s39, 896")
        A.i("s_add_u32 s38, s38, s39")
    else:
        A.i("s_mul_i32 s38, s82, 448")
    A.i(f"s_add_u32 s38, s38, {D1*64*7168}")
    A.i(f"s_add_u32 s38, s38, s{P_W1}")
    A.i(f"s_addc_u32 s39, s{P_W1+1}, 0")
    A.i("s_lshl_b32 s82, s21, 2")
    A.i("s_add_u32 s82, s82, s63           ; q")
    A.i("s_and_b32 s54, s82, 31")
    A.i("s_lshl_b32 s54, s54, 11")
    A.i("s_and_b32 s61, s22, 7")
    A.i("s_lshl_b32 s55, s61, 8")
    A.i("s_add_u32 s54, s54, s55")
    A.i("s_lshr_b32 s55, s22, 3")
    A.i(f"s_mul_i32 s55, s55, {1792*2048}")
    A.i("s_add_u32 s54, s54, s55")
    A.i(f"s_add_u32 s54, s54, s{P_W2}")
    A.i(f"s_addc_u32 s55, s{P_W2+1}, 0")
    A.i("s_mul_i32 s61, s61, 7")
    A.i("s_lshr_b32 s82, s82, 5")
    def w2_touch():
        blkidx("s62", "s82", "s61", "s53")
        A.i("s_lshl_b32 s62, s62, 16")
        for c in range(4):
            A.i(f"s_load_dword s{44+c}, s[54:55], s62")
            if c < 3: A.i("s_add_u32 s62, s62, 64")
        A.i("s_add_u32 s82, s82, 2")
    NL1 = 11
    poll(A, f"{N}_ph", 4)
    mark(39)
    def g1x(slot):
        for q in range(4):
            A.i(f"s_add_u32 m0, s33, {slot + q*1024}" if isinstance(slot, int) else f"s_add_u32 m0, {slot}, {q*1024}")
            A.i(f"s_add_u32 s37, s24, {q*8*2048}")
            A.i(f"buffer_load_dwordx4 v175, s[12:15], s37 offen {WT} lds")
        A.i("s_add_u32 s24, s24, 128")
    pend = []
    for j in range(3):
        if j >= npf: g1w(G1W + j*28672)
        g1x(j*16384)
        pend.append(4 + (7 if j >= npf else 0))
    mark(40)
    A.i(f"s_waitcnt vmcnt({pend[1]+pend[2]})")
    mark(41)
    A.i("s_barrier                          ; G1 B0")
    A.i("s_mov_b32 s26, 0")
    A.i("s_mov_b32 s25, 0")
    A.i("s_mov_b32 s23, 13")
    x1_store(16)
    A.i(f"s_waitcnt vmcnt({pend[2] + (2 if lazyx1 else 0)})")
    A.i(f"s_branch {N}_g1l2")
    A.label(f"{N}_g1l")
    A.i(f"s_waitcnt vmcnt({NL1})")
    A.label(f"{N}_g1l2")
    A.i("s_barrier")
    A.i("s_add_u32 s35, s26, s81")
    A.i("s_add_u32 s36, s25, s33")
    g1w("s35"); g1x("s36")
    if pw1:
        A.i(f"s_cmp_le_u32 s23, {13-(16-D1)}")
        A.i(f"s_cbranch_scc1 {N}_t1")
        for c in range(14 if xw1 else 7):
            A.i(f"s_load_dword s{44+(c%4)}, s[38:39], {c*64}")
        A.i(f"s_add_u32 s38, s38, {64*7168}")
        A.i("s_addc_u32 s39, s39, 0")
        A.label(f"{N}_t1")
    if pw2:
        A.i(f"s_cmp_gt_u32 s23, {D2}")
        A.i(f"s_cbranch_scc1 {N}_t2")
        w2_touch()
        A.label(f"{N}_t2")
    A.i("s_add_u32 s26, s26, 28672")
    A.i("s_add_u32 s25, s25, 16384")
    A.i("s_cmp_eq_u32 s25, 49152")
    A.i("s_cselect_b32 s26, 0, s26")
    A.i("s_cselect_b32 s25, 0, s25")
    A.i("s_sub_u32 s23, s23, 1")
    A.i("s_cmp_lg_u32 s23, 0")
    A.i(f"s_cbranch_scc1 {N}_g1l")
    x1_signal(f"{N}_ax2", 8, 9, wait="vmcnt(22)")
    A.i("s_waitcnt lgkmcnt(0)")
    code_touch(f"{N}_ct3")
    g2_ids()
    A.i("v_lshrrev_b32 v4, 4, v2")
    A.i("v_lshlrev_b32 v5, 1, v4")
    A.i("v_and_b32 v6, 15, v2")
    A.i("v_xor_b32 v5, v5, v6")
    A.i("v_lshlrev_b32 v5, 4, v5")
    A.i("v_lshl_add_u32 v5, v4, 11, v5")
    A.i("v_xor_b32 v6, 128, v5")
    A.i("s_lshl_b32 s24, s21, 3")
    A.i("s_lshl_b32 s27, s63, 1")
    A.i("s_add_u32 s24, s24, s27")
    A.i(f"s_mul_i32 s24, s24, {112*1024}")
    A.i(f"s_mul_i32 s27, s52, {56*1024}")
    A.i("s_add_u32 s24, s24, s27            ; X base")
    A.i("s_lshl_b32 s80, s22, 8")
    A.i("s_and_b32 s27, s63, 1")
    A.i("s_lshl_b32 s27, s27, 15")
    A.i("s_add_u32 s80, s80, s27")
    A.i(f"s_mul_i32 s27, s52, {1792*2048}")
    A.i("s_add_u32 s80, s80, s27            ; W base")
    A.i("s_lshr_b32 s28, s63, 1")
    A.i("s_mov_b32 s29, 6")
    A.i("s_lshl_b32 s81, s63, 12")
    A.i(f"s_add_u32 s33, s81, {G2X}")
    A.i("s_lshl_b32 s27, s21, 4")
    A.i("s_lshl_b32 s30, s52, 3")
    A.i("s_add_u32 s27, s27, s30")
    A.i("v_and_b32 v7, 7, v2")
    A.i("v_add_u32 v7, s27, v7")
    A.i("v_lshlrev_b32 v7, 10, v7")
    A.i(f"v_add_u32 v7, {F_ACT}, v7")
    if lazyx1:
        A.i("s_lshl_b32 s27, s21, 4")
        A.i("v_and_b32 v8, 15, v2")
        A.i("v_add_u32 v8, s27, v8")
        A.i("v_lshlrev_b32 v8, 10, v8")
        A.i(f"v_add_u32 v8, {F_X1}, v8")
        A.i("v_cmp_gt_u32 vcc, 32, v2")
        A.i("s_nop 1")
        A.i("v_cndmask_b32 v7, v8, v7, vcc")
    for rem in (NL1, 0, 0):
        A.i(f"s_waitcnt vmcnt({rem})")
        A.i("s_barrier")
    srd(A, 8, P_W2, 3584*2048)
    srd(A, 12, P_WS, 2048*3584*2, WS['act'])
    def g2w(slot):
        blkidx("s30", "s28", "s61", "s31")
        A.i("s_lshl_b32 s30, s30, 16")
        A.i("s_add_u32 s30, s30, s80")
        for q in range(4):
            A.i(f"s_add_u32 m0, s81, {slot + q*1024}" if isinstance(slot, int) else f"s_add_u32 m0, {slot}, {q*1024}")
            A.i(f"s_add_u32 s37, s30, {q*4*2048}")
            A.i(f"buffer_load_dwordx4 {v(5+(q//2))}, s[8:11], s37 offen lds")
        A.i("s_add_u32 s28, s28, 2")
    def g2x(slot):
        A.i(f"s_add_u32 m0, s33, {slot}")
        for kb in range(2):
            A.i("s_sub_u32 s31, s29, 6")
            A.i("s_cmp_ge_u32 s31, s61")
            A.i("s_cselect_b32 s30, s29, s31")
            A.i("s_lshl_b32 s30, s30, 10")
            A.i("s_add_u32 s30, s30, s24")
            A.i(f"s_add_u32 s37, s30, {112*1024}")
            A.i(f"buffer_load_dwordx4 v3, s[12:15], s30 offen {actld} lds")
            A.i("s_add_u32 m0, m0, 2048")
            A.i("s_add_u32 s29, s29, 1")
            A.i(f"buffer_load_dwordx4 v3, s[12:15], s37 offen {actld} lds")
            if kb == 0: A.i("s_sub_u32 m0, m0, 1024")
    for j in range(4): g2w(G2W + j*16384)
    A.i("v_and_b32 v8, 1, v2")
    A.i("v_lshlrev_b32 v8, 10, v8")
    A.i("v_readfirstlane_b32 s27, v7")
    A.i("s_nop 1")
    A.i("v_add_u32 v8, s27, v8")
    for rem in (12, 8, 4):
        A.i(f"s_waitcnt vmcnt({rem})")
        A.i("s_barrier")
    mark(42)
    poll(A, f"{N}_pa0", 8)
    mark(43)
    g2x(3*16384)
    A.i("s_mov_b32 s26, 0")
    def g2step(touch=True, bar=True):
        if bar: A.i("s_barrier")
        A.i("s_add_u32 s35, s26, s81")
        g2w("s35"); g2x("s26")
        if pw2 and touch: w2_touch()
        A.i("s_add_u32 s26, s26, 16384")
        A.i("s_and_b32 s26, s26, 0xffff")
    g2step(bar=False)
    g2step(bar=False)
    A.i("s_waitcnt vmcnt(16)")
    mark(44)
    A.i("s_barrier                          ; B3")
    poll(A, f"{N}_pa", 7)
    g2step(bar=False)
    A.i(f"s_mov_b32 s23, {28-D2-3}")
    A.label(f"{N}_g2l")
    A.i("s_waitcnt vmcnt(16)")
    g2step()
    A.i("s_sub_u32 s23, s23, 1")
    A.i("s_cmp_lg_u32 s23, 0")
    A.i(f"s_cbranch_scc1 {N}_g2l")
    A.i(f"s_mov_b32 s23, {D2-4}")
    A.label(f"{N}_g2m")
    A.i("s_waitcnt vmcnt(16)")
    g2step(False)
    A.i("s_sub_u32 s23, s23, 1")
    A.i("s_cmp_lg_u32 s23, 0")
    A.i(f"s_cbranch_scc1 {N}_g2m")
    A.i("s_waitcnt lgkmcnt(0)")
    code_touch(f"{N}_ct4")
    for rem in (16, 8, 0, 0):
        A.i(f"s_waitcnt vmcnt({rem})")
        A.i("s_barrier")
    if ts and tsw >= 4:
        A.i("s_waitcnt lgkmcnt(0)")
        ts_end(A, N, P_WS, tsw)
    A.label(f"{N}_done")
    A.i("s_endpgm")
    kernel_desc(A, N, 240, 102)
    return (256, 512, 163840)
```

```python
from asmlib import *
from bw import ts_begin, ts_end, ts_mark
from k2 import wave_reduce
LOG2E = 0x3fb8aa3b
WT = "sc0 sc1"

P_WS, P_Q = 4, 6
P_SSM, P_D, P_W1, P_W2, P_C, P_WM, P_OUT = 64, 66, 70, 72, 74, 76, 78
FL = 56
F_X, F_H2, F_ACT, F_KV = 0, 512, 640, 768
F_H2B = 704
F_X1 = 576
F_BAR = 896
F_MOD = 288*1024
F_KVF = 320*1024
F_NONCE = 448*1024 + 52
SV = 83
P_K, P_V, P_SH = 96, 98, 100

PSLEEP = {}
def poll(A, tag, vaddr, vt=15, cnt=60, wide=False):
    val = f"s{SV}"
    A.i(f"s_mov_b32 s{cnt}, 0x40000")
    sl = PSLEEP.get(tag.split("_")[-1][:2], 0)
    if sl:
        A.i(f"s_branch {tag}_in")
    A.label(tag)
    if sl:
        A.i(f"s_sleep {sl}")
        A.label(f"{tag}_in")
    if wide: A.i(f"buffer_load_dwordx4 {v(vt,4)}, {v(vaddr)}, s[{FL}:{FL+3}], 0 offen {WT}")
    else:    A.i(f"buffer_load_dword {v(vt)}, {v(vaddr)}, s[{FL}:{FL+3}], 0 offen {WT}")
    A.i(f"s_sub_u32 s{cnt}, s{cnt}, 1")
    A.i(f"s_cmp_eq_u32 s{cnt}, 0")
    A.i(f"s_cbranch_scc1 {tag}_out")
    A.i("s_waitcnt vmcnt(0)")
    if wide:
        for r in range(4): A.i(f"v_xor_b32 {v(vt+r)}, {val}, {v(vt+r)}")
        A.i(f"v_or3_b32 {v(vt)}, {v(vt)}, {v(vt+1)}, {v(vt+2)}")
        A.i(f"v_or_b32 {v(vt)}, {v(vt)}, {v(vt+3)}")
        val = "0"
    A.i(f"v_cmp_ne_u32 vcc, {val}, {v(vt)}")
    A.i("s_nop 1")
    A.i(f"s_cbranch_vccnz {tag}")
    A.label(f"{tag}_out")

def poll2(A, tag, va, vb, vt, cnt=60):
    sl = PSLEEP.get(tag.split("_")[-1][:2], 0)
    A.i(f"s_mov_b32 s{cnt}, 0x40000")
    A.i(f"s_branch {tag}_in")
    A.label(tag)
    if sl: A.i(f"s_sleep {sl}")
    A.label(f"{tag}_in")
    A.i(f"buffer_load_dword {v(vt)}, {v(vb)}, s[{FL}:{FL+3}], 0 offen {WT}")
    A.i(f"s_sub_u32 s{cnt}, s{cnt}, 1")
    A.i(f"s_cmp_eq_u32 s{cnt}, 0")
    A.i(f"s_cbranch_scc1 {tag}_out")
    A.i("s_waitcnt vmcnt(0)")
    A.i(f"v_cmp_ne_u32 vcc, s{SV}, {v(vt)}")
    A.i("s_nop 1")
    A.i(f"s_cbranch_vccz {tag}_out")
    A.i(f"s_and_b32 s10, s{cnt}, 3")
    A.i(f"s_cbranch_scc1 {tag}")
    A.i(f"buffer_load_dword {v(vt+1)}, {v(va)}, s[{FL}:{FL+3}], 0 offen {WT}")
    A.i("s_mov_b64 s[8:9], vcc")
    A.i("s_waitcnt vmcnt(0)")
    A.i(f"v_cmp_ne_u32 vcc, s{SV}, {v(vt+1)}")
    A.i("s_nop 1")
    A.i("s_and_b64 vcc, vcc, s[8:9]")
    A.i(f"s_cbranch_scc1 {tag}")
    A.label(f"{tag}_out")

def poll_all(A, tag, vaddr, groups, vt=16, cnt=60, stride=65536, mask=84):
    sl = PSLEEP.get(tag.split("_")[-1][:2], 0)
    M = [f"s[{44+2*g}:{45+2*g}]" if g < 2 else f"s[{52+2*(g-2)}:{53+2*(g-2)}]" for g in range(groups)]
    A.i(f"s_mov_b32 s{cnt}, 0x40000")
    for g in range(groups):
        A.i(f"s_mov_b64 {M[g]}, -1")
        if g: A.i(f"v_add_u32 {v(vt+4+g)}, {g*stride}, {v(vaddr)}")
    A.i(f"s_branch {tag}_in")
    A.label(tag)
    if sl: A.i(f"s_sleep {sl}")
    A.label(f"{tag}_in")
    for g in range(groups):
        A.i(f"s_or_b64 exec, {M[g]}, 1")
        A.i(f"buffer_load_dword {v(vt+g)}, {v(vt+4+g) if g else v(vaddr)}, s[{FL}:{FL+3}], 0 offen {WT}")
    A.i(f"s_sub_u32 s{cnt}, s{cnt}, 1")
    A.i(f"s_cmp_eq_u32 s{cnt}, 0")
    A.i(f"s_cbranch_scc1 {tag}_out")
    A.i("s_waitcnt vmcnt(0)")
    for g in range(groups):
        A.i(f"s_or_b64 exec, {M[g]}, 1")
        A.i(f"v_cmp_ne_u32 {M[g]}, s{SV}, {v(vt+g)}")
    A.i("s_nop 1")
    A.i(f"s_or_b64 vcc, {M[0]}, {M[1]}")
    for g in range(2, groups):
        A.i(f"s_or_b64 vcc, vcc, {M[g]}")
    A.i(f"s_cbranch_scc1 {tag}")
    A.label(f"{tag}_out")
    A.i("s_mov_b64 exec, -1")

def poll_ctr(A, tag, vaddr, shift, val, vt=16, cnt=39):
    sl = PSLEEP.get(tag.split("_")[-1][:2], 0)
    A.i(f"s_mov_b32 s{cnt}, 0x40000")
    A.i(f"s_branch {tag}_in")
    A.label(tag)
    if sl: A.i(f"s_sleep {sl}")
    A.label(f"{tag}_in")
    A.i(f"buffer_load_dword {v(vt)}, {v(vaddr)}, s[{FL}:{FL+3}], 0 offen {WT}")
    A.i(f"s_sub_u32 s{cnt}, s{cnt}, 1")
    A.i(f"s_cmp_eq_u32 s{cnt}, 0")
    A.i(f"s_cbranch_scc1 {tag}_out")
    A.i("s_waitcnt vmcnt(0)")
    A.i(f"v_bfe_u32 {v(vt)}, {v(vt)}, {shift}, 8")
    A.i(f"v_cmp_ne_u32 vcc, {val}, {v(vt)}")
    A.i("s_nop 1")
    A.i(f"s_cbranch_vccnz {tag}")
    A.label(f"{tag}_out")

def gen_f(A, name="f1_kernel", ts=False, nt="nt", outf="", pw1=True, pw2=True, marks=(0,1,2,3,4,5), tsw=0, prio=0, ntk='nt', prefill='y', npf=2, wf1='', E1=2, E2=2, halo=True, D1=7, D2=8, ncode=16, psleep=dict(pk=1, pg=2, pm=2, ph=1, pa=1, px=1), lstore=False, onepm=True, nogemv=False, spin=None, ctouch=True, pmgate=False, earlysig=False, reuse=True, FLAGIT=8, nosend=False, xw1=False, lazyx1=False, h2split=False, prioC=0, padc=0, pad1=0, rampc=4, ramp1=4, tailc=0, tail1=0, latec=0, late1=0, qc=(1,4), q1=(1,4), nomf1=False, nomfc=False, prioL=0, X1IT=8, defer=0, firsttile=True, fastkv=True, hearly=True, m48=False, actst=WT, actld=WT, tlb=0):
    N = name
    NARR = 4
    PSLEEP.clear(); PSLEEP.update(psleep)
    def mark(j):
        if ts:
            for i, m in enumerate(marks):
                if m == j: ts_mark(A, i)
    WB, HC = 24320, 4160
    XO = 4*HC
    GP = 4*WB
    CNT = 161792
    G1W, G1X = 0, 86016
    LNP, LNY, LNT = 86016, 135168, 151552
    G2W, G2X = 0, 65536
    XROW = 232
    HH = 216
    SD = 104
    vWM, vCO, CR = 204, 205, 208
    P0B = 135168
    XPK = LNT
    X1L = 131072

    def xrow_load():
        srd(A, 8, P_Q, 4*MB)
        for hf in range(2):
            A.i(f"buffer_load_dwordx4 {v(XROW+hf*4,4)}, v3, s[8:11], s61 offen offset:{hf*1024} {nt}")

    def arrive(tag, cnt, n, soff, off, wait="vmcnt(0)", vc=14, vt=15, add=None, fast=None):
        A.i(f"v_mov_b32 {v(vt)}, 1")
        A.i(f"s_waitcnt {wait}")
        A.i("s_mov_b64 exec, 1")
        A.i(f"ds_add_rtn_u32 {v(vt)}, {v(vc)}, {v(vt)} offset:{cnt}")
        A.i("s_waitcnt lgkmcnt(0)")
        A.i(f"v_cmp_eq_u32 vcc, {n-1}, {v(vt)}")
        A.i(f"v_mov_b32 {v(vt)}, {add if add else f's{SV}'}")
        A.i("s_nop 0")
        A.i(f"s_cbranch_vccz {tag}")
        if add: A.i(f"buffer_atomic_add {v(vt)}, off, s[{FL}:{FL+3}], {soff}")
        else:
            if fast: A.i(f"buffer_store_dword {v(vt)}, off, s[{FL}:{FL+3}], {fast}")
            A.i(f"buffer_store_dword {v(vt)}, off, s[{FL}:{FL+3}], {soff} offset:{off} {WT}")
        A.label(tag)
        A.i("s_mov_b64 exec, -1")
    def code_touch(tag):
        if not ctouch: return
        A.i("s_getpc_b64 s[46:47]")
        A.label(tag)
        A.i(f"s_sub_u32 s46, s46, {tag}-{N}")
        A.i("s_subb_u32 s47, s47, 0")
        A.i("s_lshr_b32 s44, s2, 3")
        A.i("s_lshl_b32 s44, s44, 2")
        A.i("s_add_u32 s44, s44, s63")
        A.i("s_mul_i32 s44, s44, 320")
        A.i(f"s_min_u32 s44, s44, code_end-{N}-320")
        A.i("s_add_u32 s46, s46, s44")
        A.i("s_addc_u32 s47, s47, 0")
        for c in range(5):
            A.i(f"s_load_dword s45, s[46:47], {64*c}")
    def page_touch(tag):
        if not tlb: return
        A.i("s_cmp_lg_u32 s63, 3")
        A.i(f"s_cbranch_scc1 {tag}")
        srd(A, 16, P_WS, 48*MB)
        A.i(f"v_lshlrev_b32 v8, {tlb}, v2")
        n = (48*MB >> tlb) // 64 or 1
        A.i("s_mov_b32 s52, 0")
        for i in range(n):
            A.i("buffer_load_dword v9, v8, s[16:19], s52 offen")
            A.i(f"s_add_u32 s52, s52, {64 << tlb}")
        srd(A, 16, P_OUT, 4*MB)
        A.i("buffer_load_dword v9, v8, s[16:19], 0 offen")
        A.i("s_waitcnt vmcnt(0)")
        A.label(tag)
    def stream(j0, j1):
        for j in range(j0, j1):
            A.i(f"buffer_load_dwordx4 {v(SD+4*j,4)}, {v(vWM)}, s[12:15], s80 offen {nt}")
            A.i("s_add_u32 s80, s80, 12288")
    kernel_head(A, N)
    A.i("s_cmp_ge_u32 s2, 256")
    A.i(f"s_cbranch_scc1 {N}_done")
    A.i(f"s_load_dwordx4 s[{P_K}:{P_K+3}], s[0:1], {KA['k']}")
    A.i(f"s_load_dwordx2 s[{P_SH}:{P_SH+1}], s[0:1], {KA['shift']}")
    A.i(f"s_load_dwordx16 s[64:79], s[0:1], {KA['ssm']}")
    A.i(f"s_load_dwordx2 s[4:5], s[0:1], {KA['ws']}")
    A.i(f"s_load_dwordx2 s[6:7], s[0:1], {KA['q']}")
    A.i(f"s_cmp_ge_u32 s2, {ncode}")
    A.i(f"s_cbranch_scc1 {N}_nc")
    A.i("s_getpc_b64 s[8:9]")
    A.label(f"{N}_pc")
    A.i(f"s_mov_b32 s10, code_end-{N}_pc")
    A.i("s_mov_b32 s11, 0x20000")
    A.i("v_lshlrev_b32 v13, 7, v0")
    A.i(f"buffer_load_dword {v(HH)}, v13, s[8:11], 0 offen")
    A.label(f"{N}_nc")
    if ts: ts_begin(A)
    A.i(f"v_mov_b32 v14, {CNT}")
    A.i("v_mov_b32 v4, 0")
    A.i("v_mov_b32 v5, 0")
    for o in range(6): A.i(f"ds_write_b64 v14, v[4:5] offset:{8*o}")
    A.i("v_lshrrev_b32 v1, 6, v0")
    A.i("v_and_b32 v2, 63, v0              ; lane")
    A.i("v_readfirstlane_b32 s20, v1       ; wave")
    A.i("s_and_b32 s21, s2, 7")
    A.i("s_lshl_b32 s21, s21, 1")
    A.i("s_bfe_u32 s22, s2, 0x10003")
    A.i("s_add_u32 s21, s21, s22           ; cb")
    A.i("s_lshr_b32 s22, s2, 4             ; rb")
    A.i("v_and_b32 v1, 15, v0              ; cc")
    A.i("v_lshrrev_b32 v9, 4, v0           ; rg")
    A.i("s_lshl_b32 s23, s22, 18")
    A.i("s_lshl_b32 s24, s21, 7")
    A.i("s_add_u32 s23, s23, s24")
    A.i(f"s_sub_u32 s23, s23, {3*2048}")
    A.i("v_lshlrev_b32 v3, 13, v9")
    A.i("v_lshl_add_u32 v3, v1, 3, v3")
    A.i("v_add_u32 v3, s23, v3")
    A.i("v_add_u32 v4, 4096, v3")
    A.i("v_add_u32 v5, 6144, v3")
    A.i("v_add_u32 v6, 10240, v3")
    A.i("s_lshl_b32 s24, s21, 9")
    A.i("v_lshlrev_b32 v7, 5, v1")
    A.i("s_waitcnt lgkmcnt(0)")
    mark(50)
    srd(A, 12, P_K, 4*MB)
    srd(A, 16, P_V, 4*MB)
    K, V, W = 16, 32, 40
    addr = [(3,0),(3,2048),(4,0),(5,0),(5,2048),(6,0),(6,2048)]
    for j in range(3, 7):
        r,o = addr[j]
        A.i(f"buffer_load_dwordx2 {v(K+2*j,2)}, v{r}, s[12:15], 0 offen offset:{o} {ntk}")
    for j in range(4):
        r,o = addr[3+j]
        A.i(f"buffer_load_dwordx2 {v(V+2*j,2)}, v{r}, s[16:19], 0 offen offset:{o} {nt}")
    if halo: A.i("s_mov_b64 exec, 0xffff")
    for j in range(3):
        r,o = addr[j]
        A.i(f"buffer_load_dwordx2 {v(K+2*j,2)}, v{r}, s[12:15], 0 offen offset:{o} {ntk}")
    if halo: A.i("s_mov_b64 exec, -1")
    srd(A, 28, P_SH, 8192)
    A.i(f"buffer_load_dwordx4 {v(W,4)}, v7, s[28:31], s24 offen")
    A.i(f"buffer_load_dwordx4 {v(W+4,4)}, v7, s[28:31], s24 offen offset:16")
    srd(A, FL, P_WS, 512*1024, WS['flag'])
    A.i(f"s_load_dword s{SV}, s[{FL}:{FL+1}], {F_NONCE}")
    A.i("v_lshlrev_b32 v3, 4, v2           ; lane*16")
    A.i("s_and_b32 s62, s2, 7")
    A.i("s_lshl_b32 s62, s62, 5")
    A.i("s_lshr_b32 s63, s2, 3")
    A.i("s_add_u32 s62, s62, s63")
    srd(A, 32, P_WS, 4*MB, WS['kvT'])
    A.i("v_lshrrev_b32 v8, 1, v9")
    A.i("v_and_b32 v10, 7, v1")
    A.i("v_xor_b32 v8, v8, v10")
    A.i("v_lshlrev_b32 v8, 4, v8")
    A.i("v_lshl_add_u32 v8, v1, 10, v8")
    A.i("v_and_b32 v10, 1, v9")
    A.i("v_xor_b32 v10, 1, v10")
    A.i("v_lshl_add_u32 v8, v10, 3, v8")
    A.i(f"v_add_u32 v8, {P0B}, v8")
    A.i("v_lshrrev_b32 v10, 6, v0")
    A.i("v_xor_b32 v10, v10, v1")
    A.i("v_lshlrev_b32 v10, 4, v10")
    A.i("v_lshl_add_u32 v10, v9, 8, v10")
    A.i(f"v_add_u32 v10, {P0B}, v10")
    A.i("v_lshlrev_b32 v11, 4, v1")
    A.i("v_lshl_add_u32 v11, v9, 12, v11")
    A.i("s_lshl_b32 s25, s21, 18")
    A.i("s_lshl_b32 s26, s22, 8")
    A.i("s_add_u32 s25, s25, s26")
    A.i("s_add_u32 s26, s25, 0x20000")
    A.i("s_mov_b32 s27, 0xffff0000")
    A.i("s_lshl_b32 s23, s21, 4")
    A.i("s_add_u32 s23, s23, s22")
    A.i("s_lshl_b32 s23, s23, 10")

    A.i("s_lshr_b32 s39, s23, 3")
    A.i(f"s_add_u32 s39, s39, {F_KVF}")
    A.i("s_lshl_b32 s61, s62, 3")
    A.i("s_add_u32 s61, s61, s20")
    A.i("s_lshl_b32 s61, s61, 11")
    A.i("v_subrev_u32 v12, 16, v2")
    A.i("v_lshlrev_b32 v12, 2, v12")
    A.i("s_cmp_ge_u32 s20, 4")
    A.i(f"s_cbranch_scc1 {N}_noh")
    A.i("s_lshl_b32 s63, s62, 2")
    A.i("s_add_u32 s63, s63, s20           ; channel d")
    A.i("s_lshr_b32 s60, s63, 1")
    A.i("s_lshl_b32 s60, s60, 2")
    A.i(f"s_load_dword s82, s[{P_D}:{P_D+1}], s60                 ; D pair")
    A.i(f"v_mov_b32 {v(vWM)}, 0")
    A.i(f"v_mov_b32 {v(vCO)}, 0")
    mark(51)
    A.i("s_waitcnt vmcnt(0)")
    mark(52)
    if hearly:
        A.i("s_lshl_b32 s60, s63, 12")
        srd(A, 8, P_SSM, 4*MB)
        for u in range(4):
            A.i(f"buffer_load_dwordx4 {v(HH+4*u,4)}, v3, s[8:11], s60 offen offset:{1024*u} {nt}")
    A.i(f"s_branch {N}_h1")
    A.label(f"{N}_noh")
    A.i("s_sub_u32 s63, s20, 4             ; lw")
    A.i("s_lshr_b32 s36, s2, 1")
    A.i("s_and_b32 s37, s2, 1")
    A.i("s_lshl_b32 s37, s37, 2")
    A.i("s_add_u32 s37, s37, s63           ; k part 0..7")
    A.i("v_and_b32 v4, 7, v2               ; cc")
    A.i("v_lshrrev_b32 v5, 3, v2")
    A.i(f"s_mov_b32 s80, {16*12288}")
    A.i(f"v_mul_lo_u32 {v(vWM)}, v5, s80")
    A.i(f"v_lshl_add_u32 {v(vWM)}, v4, 4, {v(vWM)}")
    A.i(f"v_lshlrev_b32 {v(vCO)}, 5, v5")
    A.i(f"s_mul_i32 s80, s37, {128*12288}")
    A.i("s_lshl_b32 s81, s36, 7")
    A.i("s_add_u32 s80, s80, s81")
    A.i("s_lshl_b32 s37, s37, 8            ; c soffset")
    srd(A, 12, P_WM, 1024*12288)
    srd(A, 28, P_C, 2048)
    A.i(f"s_cmp_ge_u32 s2, {0 if nogemv else 192}")
    A.i("s_cselect_b32 s14, 0, s14")
    A.i("s_waitcnt vmcnt(0)")
    stream(0, E1)
    A.label(f"{N}_h1")
    if halo:
        for j in range(3):
            for e in range(2):
                A.i(f"ds_bpermute_b32 {v(96+2*j+e)}, v12, {v(K+2*(j+4)+e)}")
        A.i("v_cmp_gt_u32 vcc, 16, v2")
    WU = 48
    for pr in range(2):
        for e in range(2):
            ch = 2*pr + e
            for tap in range(4):
                src = W + 2*ch + tap//2
                dst = WU + (pr*4+tap)*2 + e
                if tap % 2 == 0: A.i(f"v_lshlrev_b32 {v(dst)}, 16, {v(src)}")
                else:            A.i(f"v_and_b32 {v(dst)}, s27, {v(src)}")
    if halo:
        A.i("s_waitcnt lgkmcnt(0)")
        for j in range(6):
            A.i(f"v_cndmask_b32 {v(K+j)}, {v(96+j)}, {v(K+j)}, vcc")
    KU, VU, R = 64, 80, 88
    for pr in range(2):
        for j in range(7):
            A.i(f"v_lshlrev_b32 {v(KU+2*j)}, 16, {v(K+2*j+pr)}")
            A.i(f"v_and_b32 {v(KU+2*j+1)}, s27, {v(K+2*j+pr)}")
        for j in range(4):
            A.i(f"v_lshlrev_b32 {v(VU+2*j)}, 16, {v(V+2*j+pr)}")
            A.i(f"v_and_b32 {v(VU+2*j+1)}, s27, {v(V+2*j+pr)}")
        w = lambda tap: v(WU+(pr*4+tap)*2, 2)
        for r in range(4):
            A.i(f"v_pk_mul_f32 {v(R+2*r,2)}, {v(KU+2*r,2)}, {w(3)}")
        for tap in (2,1,0):
            for r in range(4):
                A.i(f"v_pk_fma_f32 {v(R+2*r,2)}, {v(KU+2*(r+3-tap),2)}, {w(tap)}, {v(R+2*r,2)}")
        for r in range(4):
            A.i(f"v_pk_mul_f32 {v(R+2*r,2)}, {v(R+2*r,2)}, {v(VU+2*r,2)}")
        for e in range(2):
            d = 96 + (pr*2+e)*2
            A.i(f"v_cvt_pk_bf16_f32 {v(d)}, {v(R+6+e)}, {v(R+4+e)}")
            A.i(f"v_cvt_pk_bf16_f32 {v(d+1)}, {v(R+2+e)}, {v(R+e)}")
            A.i(f"ds_write_b64 v8, {v(d,2)} offset:{(2*pr+e)*256}")
    A.i("s_waitcnt lgkmcnt(0)")
    mark(53)
    A.i("s_barrier                         ; b0")
    mark(54)
    if not lstore:
        A.i("ds_read_b128 v[16:19], v10")
        A.i("ds_read_b128 v[20:23], v10 offset:8192")
    A.i(f"s_mul_i32 s{SV}, s{SV}, 0x9e3779b1")
    A.i(f"s_add_u32 s{SV}, s{SV}, 0x7f4a7c15")
    A.i("s_mov_b32 s21, s62")
    if not lstore:
        A.i("s_waitcnt lgkmcnt(1)")
        A.i(f"buffer_store_dwordx4 v[16:19], v11, s[32:35], s25 offen {WT}")
        A.i("s_waitcnt lgkmcnt(0)")
        A.i(f"buffer_store_dwordx4 v[20:23], v11, s[32:35], s26 offen {WT}")
    A.i("v_mov_b32 v12, 0")
    A.i(f"v_mov_b32 v13, s{SV}")
    A.label(f"{N}_p0end")
    mark(20)
    A.i("s_cmp_ge_u32 s20, 4")
    A.i(f"s_cbranch_scc1 {N}_L")

    NP = 4
    def gate(tag):
        A.label(tag)
        A.i("ds_read_b32 v15, v14 offset:8")
        A.i("s_waitcnt lgkmcnt(0)")
        A.i("v_cmp_ne_u32 vcc, 256, v15")
        A.i("s_nop 1")
        A.i(f"s_cbranch_vccnz {tag}")

    X, Y, M, MF, T, H = 16, 24, 32, 88, 136, 144
    XF, RS, LA = 176, 192, 196
    def unpack(dst, src):
        A.i(f"v_lshlrev_b32 {v(dst)}, 16, {v(src)}")
        A.i(f"v_and_b32 {v(dst+1)}, s27, {v(src)}")
    def stats(t):
        a, b_ = v(t,2), v(t+2,2)
        A.i(f"v_pk_add_f32 {a}, {v(XF,2)}, {v(XF+2,2)}")
        A.i(f"v_pk_mul_f32 {b_}, {v(XF,2)}, {v(XF,2)}")
        A.i(f"v_pk_fma_f32 {b_}, {v(XF+2,2)}, {v(XF+2,2)}, {b_}")
        for q in range(2, 8):
            b = XF + 2*q
            A.i(f"v_pk_add_f32 {a}, {a}, {v(b,2)}")
            A.i(f"v_pk_fma_f32 {b_}, {v(b,2)}, {v(b,2)}, {b_}")
        A.i(f"v_add_f32 {v(t+4)}, {v(t)}, {v(t+1)}")
        A.i(f"v_add_f32 {v(t+5)}, {v(t+2)}, {v(t+3)}")
        wave_reduce(A, [t+4, t+5])
        A.i("s_nop 0")
        A.i(f"v_readlane_b32 s52, {v(t+4)}, 63")
        A.i(f"v_readlane_b32 s53, {v(t+5)}, 63")
        A.i(f"v_mov_b32 {v(t+2)}, 0x3a800000        ; 1/1024")
        A.i("s_nop 0")
        A.i(f"v_mul_f32 {v(t)}, s52, {v(t+2)}           ; mean")
        A.i(f"v_mul_f32 {v(t+1)}, s53, {v(t+2)}         ; E[x^2]")
        A.i(f"v_fma_f32 {v(t+1)}, -{v(t)}, {v(t)}, {v(t+1)}     ; var")
        A.i(f"v_max_f32 {v(t+1)}, 0, {v(t+1)}")
        A.i(f"v_add_f32 {v(t+1)}, 0x3727c5ac, {v(t+1)}   ; + 1e-5")
        A.i(f"v_rsq_f32 {v(RS)}, {v(t+1)}")
        A.i("s_nop 0")
        A.i(f"v_mul_f32 {v(RS+2)}, -{v(t)}, {v(RS)}")
    def ln_pre(t):
        A.i("s_lshr_b32 s52, s20, 1")
        A.i(f"v_lshrrev_b32 {v(LA)}, 1, v2")
        A.i(f"v_xor_b32 {v(LA)}, s52, {v(LA)}")
        A.i(f"v_and_b32 {v(LA)}, 3, {v(LA)}")
        A.i(f"v_lshlrev_b32 {v(LA)}, 4, {v(LA)}")
        A.i(f"v_lshl_add_u32 {v(LA)}, v2, 7, {v(LA)}")
        A.i("s_and_b32 s52, s20, 1")
        A.i("s_lshl_b32 s52, s52, 3")
        A.i(f"s_add_u32 s52, s52, {LNY}")
        A.i(f"v_add_u32 {v(LA)}, s52, {v(LA)}")
        A.i(f"v_add_u32 {v(LA+1)}, {LNT}, v3")
        for q in range(8):
            unpack(XF + 2*q, XROW + q)
        stats(t)
    def ln_main(hi, after_b3=None):
        rs = f"{v(RS,2)}, {v(RS+2,2)} op_sel_hi:[1,0,0]"
        srd(A, 28, P_WS, 4*MB, WS['x1'])
        srd(A, 32, P_WS, 4*MB, WS['h2'])
        A.i("s_mov_b32 s27, 0xffff0000")
        for q in range(8):
            A.i(f"v_pk_fma_f32 {v(H+2*q,2)}, {v(XF+2*q,2)}, {rs}")
        A.i("s_barrier                         ; b3: modulation table ready, y on its way")
        if not hi: mark(3)
        for vec in (1, 0, 2, 4, 3):
            for hf in range(2):
                A.i(f"ds_read_b128 {v(M+(vec*2+hf)*4,4)}, {v(LA+1)} offset:{vec*2048 + hf*1024}")
        if after_b3: after_b3()
        SA, CA, GA = MF, MF+16, MF+32
        A.i("s_waitcnt lgkmcnt(6)")
        for q in range(8):
            unpack(CA+2*q, M+8+q); unpack(SA+2*q, M+q)
            A.i(f"v_pk_fma_f32 {v(H+2*q,2)}, {v(H+2*q,2)}, {v(CA+2*q,2)}, {v(SA+2*q,2)}")
        A.i("s_waitcnt lgkmcnt(4)")
        for q in range(8):
            unpack(GA+2*q, M+16+q)
            A.i(f"v_pk_mul_f32 {v(H+2*q,2)}, {v(H+2*q,2)}, {v(GA+2*q,2)}")
        A.i("s_waitcnt lgkmcnt(0)")
        SB, CB = MF, MF+16
        for q in range(8):
            unpack(CB+2*q, M+32+q); unpack(SB+2*q, M+24+q)
        if not hi:
            mark(16)
            A.i("s_waitcnt vmcnt(0)")
        A.i("s_barrier                         ; b4: y landed")
        if not hi: mark(17)
        for hf in range(2):
            for e in range(2):
                A.i(f"ds_read_b64 {v(Y+(hf*2+e)*2,2)}, {v(LA)} offset:{hf*8192 + e*64}")
        for q in range(8):
            t = T + (q % 2) * 2
            if q % 2 == 0: A.i(f"s_waitcnt lgkmcnt({3 - q//2})")
            unpack(t, Y + q)
            A.i(f"v_pk_fma_f32 {v(H+2*q,2)}, {v(H+2*q,2)}, {v(t,2)}, {v(XF+2*q,2)}")
            A.i(f"v_cvt_pk_bf16_f32 {v(X+q)}, {v(H+2*q)}, {v(H+2*q+1)}")
            unpack(XF+2*q, X+q)
        if not lazyx1:
            for hf in range(2):
                A.i(f"buffer_store_dwordx4 {v(X+hf*4,4)}, v3, s[28:31], s61 offen offset:{hf*1024} {WT}")
        stats(8)
        for q in range(8):
            A.i(f"v_pk_fma_f32 {v(H+2*q,2)}, {v(XF+2*q,2)}, {rs}")
            A.i(f"v_pk_fma_f32 {v(H+2*q,2)}, {v(H+2*q,2)}, {v(CB+2*q,2)}, {v(SB+2*q,2)}")
            A.i(f"v_cvt_pk_bf16_f32 {v(Y+q)}, {v(H+2*q)}, {v(H+2*q+1)}")
        for hf in range(1 if h2split else 2):
            A.i(f"buffer_store_dwordx4 {v(Y+hf*4,4)}, v3, s[32:35], s61 offen offset:{hf*1024} {WT}")
        A.i("s_lshl_b32 s22, s21, 10")
        A.i(f"v_mov_b32 v8, {CNT}")
    def ln_signal(tag, hi):
        arrive(tag, 20, 8, "s22", F_H2, vc=8, vt=9)
        if h2split:
            A.i(f"buffer_store_dwordx4 {v(Y+4,4)}, v3, s[32:35], s61 offen offset:1024 {WT}")
        A.i("s_mov_b32 s34, s22")
        if lazyx1:
            if hi:
                for r in range(8): A.i(f"v_mov_b32 {v(112+r)}, {v(X+r)}")
                A.i("s_mov_b32 s29, s61")
            else:
                A.i("s_lshl_b32 s35, s20, 11")
                A.i(f"s_add_u32 s35, s35, {XPK}")
                A.i("v_add_u32 v10, s35, v3")
                A.i(f"ds_write_b128 v10, {v(X,4)}")
                A.i(f"ds_write_b128 v10, {v(X+4,4)} offset:1024")
    def h2b_signal(tag, wait):
        if h2split: arrive(tag, 40, 8, "s34", F_H2B, vc=8, vt=9, wait=wait)
    def x1_store():
        srd(A, 16, P_WS, 4*MB, WS['x1'])
        A.i("s_lshl_b32 s28, s63, 11")
        A.i(f"s_add_u32 s28, s28, {XPK}")
        A.i("v_add_u32 v10, s28, v3")
        A.i("ds_read_b128 v[120:123], v10")
        A.i("ds_read_b128 v[124:127], v10 offset:1024")
        A.i("s_sub_u32 s28, s29, 8192")
        for hf in range(2):
            A.i(f"buffer_store_dwordx4 {v(112+hf*4,4)}, v3, s[16:19], s29 offen offset:{hf*1024} {WT}")
        A.i("s_waitcnt lgkmcnt(0)")
        for hf in range(2):
            A.i(f"buffer_store_dwordx4 {v(120+hf*4,4)}, v3, s[16:19], s28 offen offset:{hf*1024} {WT}")
    def x1_signal(tag, vc, vt, wait="vmcnt(0)"):
        if lazyx1:
            A.i(f"v_mov_b32 {v(vc)}, {CNT}")
            arrive(tag, 32, 4, "s34", F_X1, vc=vc, vt=vt, wait=wait)

    def fblk_to(d, t):
        if m48:
            A.i(f"s_and_b32 {d}, s2, 1")
            A.i(f"s_lshl_b32 {d}, {d}, 3")
            A.i(f"s_lshr_b32 {t}, s2, 5")
        else:
            A.i(f"s_bfe_u32 {d}, s2, 0x20001")
            A.i(f"s_lshl_b32 {d}, {d}, 2")
            A.i(f"s_lshr_b32 {t}, s2, 6")
        A.i(f"s_add_u32 {d}, {d}, {t}            ; fblk")
    def g1_ids():
        if m48:
            A.i("s_bfe_u32 s21, s2, 0x20001")
            A.i("s_lshl_b32 s21, s21, 2")
            A.i("s_bfe_u32 s27, s2, 0x20003")
        else:
            A.i("s_and_b32 s21, s2, 1")
            A.i("s_lshl_b32 s21, s21, 3")
            A.i("s_bfe_u32 s27, s2, 0x30003")
        A.i("s_add_u32 s21, s21, s27            ; sblk")
        fblk_to("s22", "s27")
    def g2_ids():
        A.i("s_lshr_b32 s52, s22, 3             ; khalf")
        A.i("s_and_b32 s22, s22, 7")
    def blkidx(dst, c, j7, tmp):
        A.i(f"s_sub_u32 {tmp}, {c}, 6")
        A.i(f"s_cmp_ge_i32 {tmp}, {j7}")
        A.i(f"s_cselect_b32 {tmp}, {c}, {tmp}")
        A.i(f"s_add_u32 {dst}, {c}, {j7}")
        A.i(f"s_cmp_lt_u32 {c}, 6")
        A.i(f"s_cselect_b32 {dst}, {dst}, {tmp}")

    A.i("s_mov_b32 s22, s63                ; channel d")
    A.i(f"s_mul_i32 s62, s20, {WB}")
    A.i("s_lshl_b32 s24, s22, 12           ; d*4096")
    if not hearly:
        srd(A, 16, P_SSM, 4*MB)
        for u in range(4):
            A.i(f"buffer_load_dwordx4 {v(HH+4*u,4)}, v3, s[16:19], s24 offen offset:{1024*u} {nt}")
    if earlysig:
        arrive(f"{N}_ak", 16, 8, "s23", F_KV, wait="vmcnt(0)" if hearly else "vmcnt(4)", fast="s39" if fastkv else None)
        mark(21)
    Hh, XR = HH, 16
    A.i("v_mov_b32 v32, 0"); A.i("v_mov_b32 v33, 0"); A.i("v_mov_b32 v34, 0"); A.i("v_mov_b32 v35, 0")

    A.i("v_add_u32 v4, s62, v3")
    A.i(f"ds_write_b128 v4, v[32:35] offset:{XO}")
    A.i("v_min_u32 v5, 25, v2")
    A.i("v_lshlrev_b32 v5, 4, v5")
    A.i("v_add_u32 v5, s62, v5")
    A.i(f"ds_write_b128 v5, v[32:35] offset:{XO+1024}")
    A.i("v_and_b32 v6, 15, v2              ; r / i")
    A.i("v_lshrrev_b32 v7, 4, v2           ; g")
    A.i("v_and_b32 v8, 3, v6")
    A.i(f"v_mul_u32_u24 v8, {HC}, v8")
    A.i("v_lshl_add_u32 v5, v7, 4, v8")
    A.i("v_add_u32 v5, s62, v5")
    A.i("ds_write_b128 v5, v[32:35]")
    A.i("v_lshrrev_b32 v5, 2, v2")
    A.i("v_mul_u32_u24 v5, 96, v5")
    A.i("v_and_b32 v9, 3, v2")
    A.i("v_lshl_add_u32 v5, v9, 4, v5")
    A.i("v_add_u32 v5, s62, v5")
    A.i("v_lshrrev_b32 v9, 2, v6")
    A.i("v_lshlrev_b32 v10, 1, v7")
    A.i("v_sub_u32 v9, v9, v10")
    A.i("v_add_u32 v9, 7, v9")
    A.i("v_lshl_add_u32 v8, v9, 3, v8")
    A.i("v_add_u32 v8, s62, v8             ; vA")
    A.i("v_mul_u32_u24 v9, 96, v6")
    A.i("v_lshl_add_u32 v9, v7, 4, v9")
    A.i(f"s_add_u32 s25, s62, {XO + 96*14}")
    A.i("v_add_u32 v9, s25, v9             ; vB - 96")
    ACC = 48
    FS = [80, 128]
    for r in range(32):
        A.i(f"v_mov_b32 {v(ACC+r)}, 0")
    DI = 36
    A.i("v_lshlrev_b32 v10, 3, v7")
    A.i("v_add_u32 v10, 7, v10")
    A.i("v_sub_u32 v10, v10, v6")
    A.i("v_and_b32 v11, 1, v10")
    A.i("v_lshlrev_b32 v11, 4, v11")
    A.i("v_ashrrev_i32 v10, 1, v10")
    A.i("s_and_b32 s25, s22, 1")
    A.i("s_lshl_b32 s25, s25, 4")
    A.i("s_lshr_b32 s82, s82, s25")
    A.i("s_and_b32 s82, s82, 0xffff")
    A.i("v_lshlrev_b32 v11, v11, s82")
    for rt in range(2):
        for q in range(4):
            A.i(f"v_cmp_eq_u32 s[{8+2*q}:{9+2*q}], {q + 8*rt}, v10")
        for q in range(4):
            A.i(f"v_cndmask_b32 {v(DI+4*rt+q)}, 0, v11, s[{8+2*q}:{9+2*q}]")
    if not earlysig and not lstore:
        arrive(f"{N}_ak", 16, 8, "s23", F_KV, wait="vmcnt(0)" if hearly else "vmcnt(4)", fast="s39" if fastkv else None)
        mark(21)
    P, TT = 96, 100
    for u in range(4):
        R = Hh + 4*u
        p = P + 2*(u % 2)
        t = TT + 12*(u % 2)
        A.i(f"s_waitcnt vmcnt({3-u})")
        if u == 0:
            A.i(f"v_mov_b32 {v(p)}, 0"); A.i(f"v_mov_b32 {v(p+1)}, 0")
        else:
            A.i(f"v_mov_b32_dpp {v(p)}, {v(R-2)} wave_ror:1 row_mask:0xf bank_mask:0xf")
            A.i(f"v_mov_b32_dpp {v(p+1)}, {v(R-1)} wave_ror:1 row_mask:0xf bank_mask:0xf")
        A.i(f"ds_write_b128 v4, {v(R,4)} offset:{3*HC + 64 + 1024*u}")
        A.i(f"v_mov_b32_dpp {v(p)}, {v(R+2)} wave_shr:1 row_mask:0xf bank_mask:0xf")
        A.i(f"v_mov_b32_dpp {v(p+1)}, {v(R+3)} wave_shr:1 row_mask:0xf bank_mask:0xf")
        A.i(f"v_alignbit_b32 {v(t+5)}, {v(R+1)}, {v(R)}, 16")
        A.i(f"v_alignbit_b32 {v(t+6)}, {v(R+2)}, {v(R+1)}, 16")
        A.i(f"v_alignbit_b32 {v(t+7)}, {v(R+3)}, {v(R+2)}, 16")
        A.i(f"v_alignbit_b32 {v(t+4)}, {v(R)}, {v(p+1)}, 16")
        A.i(f"ds_write_b128 v4, {v(t+4,4)} offset:{2*HC + 64 + 1024*u}")
        A.i(f"v_mov_b32 {v(t)}, {v(p+1)}")
        for e in range(3): A.i(f"v_mov_b32 {v(t+1+e)}, {v(R+e)}")
        A.i(f"ds_write_b128 v4, {v(t,4)} offset:{1*HC + 64 + 1024*u}")
        A.i(f"v_alignbit_b32 {v(t+8)}, {v(p+1)}, {v(p)}, 16")
        for e in range(3): A.i(f"v_mov_b32 {v(t+9+e)}, {v(t+4+e)}")
        A.i(f"ds_write_b128 v4, {v(t+8,4)} offset:{64 + 1024*u}")
    mark(23)
    A.i("s_lshr_b32 s25, s21, 4")
    A.i("s_lshl_b32 s25, s25, 14")
    A.i(f"s_add_u32 s25, s25, {F_KV}")
    A.i("v_lshlrev_b32 v10, 10, v6")
    A.i("v_add_u32 v10, s25, v10")
    srd(A, 28, P_WS, 4*MB, WS['kvT'])
    if fastkv:
        A.i("s_lshr_b32 s25, s21, 4")
        A.i("s_lshl_b32 s25, s25, 11")
        A.i(f"s_add_u32 s25, s25, {F_KVF}")
        A.i("v_lshlrev_b32 v11, 7, v6")
        A.i("v_add_u32 v11, s25, v11")
        poll2(A, f"{N}_pk", 10, 11, 12)
    else:
        poll(A, f"{N}_pk", 10)
    mark(22)
    for u in range(4):
        A.i(f"buffer_load_dwordx4 {v(XR+4*u,4)}, v3, s[28:31], s24 offen offset:{1024*u} {WT}")
    xrow_load()
    A.i("v_mov_b32 v15, 1")
    A.i("ds_add_u32 v14, v15 offset:8")
    for u in range(4):
        A.i(f"s_waitcnt vmcnt({5-u})")
        A.i(f"ds_write_b128 v5, {v(XR+4*u,4)} offset:{XO + 96*15 + 96*16*u}")
    A.i("s_waitcnt lgkmcnt(0)")
    mark(0)
    def creads(fs, par):
        out = []
        F = FS[fs]
        def ar(j):
            for rt in range(2):
                for hb in range(2):
                    out.append(f"ds_read_b64 {v(F+(j*2+rt)*4+2*hb,2)}, v8 offset:{64*(par+16*j) + 32*rt + 8*hb}")
        ar(0)
        for d in range(4):
            out.append(f"ds_read_b128 {v(F+32+4*d,4)}, v9 offset:{96*(16*d + 1 - par)}")
        for j in range(1,4): ar(j)
        return out
    PC = [padc]
    LC = [0]; QC = [None]
    def cbody(fs, side):
        F = FS[fs]
        side = list(side)
        n = 0
        for j in range(4):
            if LC[0]:
                if n == 0: A.i("s_waitcnt lgkmcnt(0)")
            else:
                A.i("s_waitcnt lgkmcnt(12)" if n == 0 else "s_waitcnt lgkmcnt(15)")
            for d in range(4-j):
                for rt in range(2):
                    ac = ACC + ((j+d)*2+rt)*4
                    if nomfc: A.i("s_nop 3")
                    else: A.i(f"v_mfma_f32_16x16x32_bf16 {v(ac,4)}, {v(F+(j*2+rt)*4,4)}, {v(F+32+4*d,4)}, {v(ac,4)}")
                    if PC[0] and rt == 1: A.i(f"s_nop {PC[0]}")
                    if n >= LC[0]:
                        for _ in range(2 if LC[0] else 1):
                            if side: A.i(side.pop(0))
                    if QC[0] and n % QC[0][1] == QC[0][1]-1: A.i(f"s_waitcnt lgkmcnt({QC[0][0]})")
                    n += 1
        for x in side: A.i(x)
    if prioC: A.i(f"s_setprio {prioC}")
    for x in creads(0, 0): A.i(x)
    A.i("s_waitcnt lgkmcnt(12)")
    for d in range(4):
        for rt in range(2):
            ac = ACC + (d*2+rt)*4
            A.i(f"v_mfma_f32_16x16x32_bf16 {v(ac,4)}, {v(DI+4*rt,4)}, {v(FS[0]+32+4*d,4)}, {v(ac,4)}")
    def cloop(tag, n, pad, late=0, q=None):
        if n == 0: return
        PC[0] = pad
        LC[0] = late
        QC[0] = q
        A.i(f"s_mov_b32 s26, {n}")
        A(".p2align 6")
        A.label(tag)
        cbody(0, creads(1, 1))
        A.i("v_add_u32 v8, 128, v8")
        A.i("v_subrev_u32 v9, 192, v9")
        cbody(1, creads(0, 0))
        A.i("s_sub_u32 s26, s26, 1")
        A.i("s_cmp_lg_u32 s26, 0")
        A.i(f"s_cbranch_scc1 {tag}")
    if rampc or tailc:
        cloop(f"{N}_cv0", rampc, padc, latec, qc); A.i("s_waitcnt lgkmcnt(0)"); cloop(f"{N}_cv", 8-rampc-tailc, 0); cloop(f"{N}_cv2", tailc, padc)
    else:
        cloop(f"{N}_cv", 8, padc)
    A.i("v_mul_u32_u24 v10, 80, v6")
    A.i("v_lshl_add_u32 v10, v7, 3, v10")
    A.i("v_add_u32 v10, s62, v10")
    srd(A, 16, P_WS, 4*MB, WS['y4'])
    A.i("s_waitcnt lgkmcnt(0)")
    for G in range(4):
        for rt in range(2):
            ac = ACC + (G*2+rt)*4
            d = 16 + (G*2+rt)*2
            A.i(f"v_cvt_pk_bf16_f32 {v(d)}, {v(ac)}, {v(ac+1)}")
            A.i(f"v_cvt_pk_bf16_f32 {v(d+1)}, {v(ac+2)}, {v(ac+3)}")
            A.i(f"ds_write_b64 v10, {v(d,2)} offset:{80*16*G + 32*rt}")
    A.i("v_lshrrev_b32 v11, 4, v0")
    A.i("v_mul_u32_u24 v11, 80, v11")
    A.i("v_lshl_add_u32 v11, v6, 2, v11")
    A.i(f"v_add_u32 v13, {3*WB}, v11")
    A.i("v_lshlrev_b32 v12, 4, v0")
    A.i("s_lshl_b32 s25, s21, 14")
    A.i("s_mov_b32 s34, 0x05040100")
    A.i("s_mov_b32 s35, 0x07060302")
    A.i("s_waitcnt lgkmcnt(0)")
    mark(1)
    A.i("v_mov_b32 v15, 1")
    A.i("ds_add_u32 v14, v15")
    A.label(f"{N}_ys")
    A.i("ds_read_b32 v15, v14")
    A.i("s_waitcnt lgkmcnt(0)")
    A.i("v_cmp_ne_u32 vcc, 256, v15")
    A.i("s_nop 1")
    A.i(f"s_cbranch_vccnz {N}_ys")
    mark(12)
    for u in range(4):
        for ch in range(4):
            if ch < 3: A.i(f"ds_read_b32 {v(48+4*u+ch)}, v11 offset:{ch*WB + 80*16*u}")
            else:      A.i(f"ds_read_b32 {v(48+4*u+ch)}, v13 offset:{80*16*u}")
    for u in range(4):
        A.i(f"s_waitcnt lgkmcnt({12-4*u})")
        s0 = 48+4*u; d = 64+4*u
        A.i(f"v_perm_b32 {v(d)}, {v(s0+1)}, {v(s0)}, s34")
        A.i(f"v_perm_b32 {v(d+1)}, {v(s0+3)}, {v(s0+2)}, s34")
        A.i(f"v_perm_b32 {v(d+2)}, {v(s0+1)}, {v(s0)}, s35")
        A.i(f"v_perm_b32 {v(d+3)}, {v(s0+3)}, {v(s0+2)}, s35")
        A.i(f"s_add_u32 s26, s25, {4096*u}")
        A.i(f"buffer_store_dwordx4 {v(d,4)}, v12, s[16:19], s26 offen {WT}")
    mark(13)
    A.i("s_lshl_b32 s22, s2, 10")
    arrive(f"{N}_ay", 28, 4, "s22", F_BAR)
    mark(2)
    A.i("s_mov_b32 s27, 0xffff0000")
    ln_pre(96)
    A.i("v_lshrrev_b32 v4, 4, v2")
    A.i("v_xor_b32 v4, v4, v2")
    A.i("v_and_b32 v4, 3, v4")
    A.i("v_lshlrev_b32 v4, 4, v4")
    A.i("v_lshrrev_b32 v5, 2, v2")
    A.i("v_lshl_add_u32 v4, v5, 14, v4")
    A.i("s_lshl_b32 s23, s21, 6")
    A.i("s_lshl_b32 s24, s20, 20")
    A.i("s_add_u32 s23, s23, s24")
    srd(A, 12, P_WS, 4*MB, WS['y4'])
    A.i("s_lshl_b32 s24, s20, 12")
    A.i(f"s_add_u32 m0, s24, {LNY}")
    A.i("s_cmp_lg_u32 s20, 0")
    A.i(f"s_cbranch_scc1 {N}_gw")
    A.i(f"v_mov_b32 v13, s{SV}")
    A.i("v_lshlrev_b32 v12, 10, v2")
    A.i(f"v_add_u32 v12, {F_BAR}, v12")
    poll_all(A, f"{N}_pg", 12, 4, cnt=39)
    A.i("v_mov_b32 v15, 1")
    A.i("ds_write_b32 v14, v15 offset:36")
    A.i(f"s_branch {N}_gx")
    A.label(f"{N}_gw")
    A.i("ds_read_b32 v15, v14 offset:36")
    A.i("s_waitcnt lgkmcnt(0)")
    A.i("v_cmp_ne_u32 vcc, 1, v15")
    A.i("s_nop 1")
    A.i(f"s_cbranch_vccnz {N}_gw")
    A.label(f"{N}_gx")
    mark(14)
    for e in range(4):
        A.i(f"buffer_load_dwordx4 v4, s[12:15], s23 offen {WT} lds")
        A.i("s_add_u32 m0, m0, 1024")
        A.i("s_add_u32 s23, s23, 0x40000")
    A.i("s_or_b32 s24, s2, s20")
    A.i("s_cmp_lg_u32 s24, 0")
    A.i(f"s_cbranch_scc1 {N}_gb")
    A.i(f"v_mov_b32 v12, {F_NONCE}")
    A.i(f"buffer_store_dword v13, v12, s[{FL}:{FL+3}], 0 offen {WT}")
    A.label(f"{N}_gb")
    ln_main(False)
    ACC = 128
    FS = [16, 60]
    vXb0, vXb1, vWb0, vWb1 = 4, 5, 6, 7
    vX0, vX1, vW0, vW1 = 104, 105, 106, 107
    A.i("s_and_b32 s28, s20, 1              ; ws")
    A.i("s_lshr_b32 s29, s20, 1             ; wf")
    A.i("v_and_b32 v110, 15, v2             ; n")
    A.i("v_lshrrev_b32 v12, 4, v2           ; g")
    A.i("v_and_b32 v13, 7, v110")
    A.i("v_xor_b32 v13, v13, v12")
    A.i("v_lshlrev_b32 v13, 4, v13")
    A.i("s_lshl_b32 s27, s28, 13")
    A.i(f"s_add_u32 s27, s27, {G1X}")
    A.i(f"v_lshl_add_u32 {v(vXb0)}, v110, 7, v13")
    A.i(f"v_add_u32 {v(vXb0)}, s27, {v(vXb0)}")
    A.i(f"v_xor_b32 {v(vXb1)}, 64, {v(vXb0)}")
    A.i("v_lshrrev_b32 v13, 2, v110")
    A.i("v_lshl_add_u32 v13, v12, 3, v13")
    A.i("v_mul_u32_u24 v13, 448, v13")
    A.i("v_and_b32 v14, 3, v2")
    A.i("v_lshl_add_u32 v13, v14, 3, v13")
    A.i("s_mul_i32 s27, s29, 224")
    A.i("v_add_u32 v13, s27, v13")
    A.i("v_and_b32 v14, 1, v12")
    A.i("v_lshlrev_b32 v14, 5, v14")
    A.i(f"v_add_u32 {v(vWb0)}, v13, v14")
    A.i(f"v_sub_u32 {v(vWb1)}, v13, v14")
    A.i("s_cmp_eq_u32 s29, 0")
    A.i(f"s_cbranch_scc1 {N}_noswap")
    A.i(f"v_swap_b32 {v(vWb0)}, {v(vWb1)}")
    A.label(f"{N}_noswap")
    for r in range(32, 112):
        A.i(f"v_mov_b32 {v(ACC+r)}, 0")
    mark(19)
    ln_signal(f"{N}_ah", False)
    mark(4)
    for r in range(32):
        A.i(f"v_mov_b32 {v(ACC+r)}, 0")
    g1_ids()
    srd(A, 16, P_WS, 2048*3584*2, WS['act'])
    def g1reads(fs, kk):
        out = []
        Xr, W = FS[fs], FS[fs] + 16
        vx = vX0 if kk == 0 else vX1
        def wr(t):
            for hb in range(2):
                out.append(f"ds_read_b64_tr_b16 {v(W+4*t+2*hb,2)}, {v(vW0 if t%2==0 else vW1)} offset:{(32*kk+4*hb)*448 + 32*t}")
        wr(0)
        for st in range(4):
            out.append(f"ds_read_b128 {v(Xr+4*st,4)}, {v(vx)} offset:{st*2048}")
        for t in range(1, 7): wr(t)
        return out
    P1 = [pad1]
    L1 = [0]; Q1 = [None]
    def g1phase(fs, side):
        Xr, W = FS[fs], FS[fs] + 16
        side = list(side)
        n = 0
        for t in range(7):
            for st in range(4):
                ac = ACC + (t*4+st)*4
                if nomf1: A.i("s_nop 3")
                else: A.i(f"v_mfma_f32_16x16x32_bf16 {v(ac,4)}, {v(W+4*t,4)}, {v(Xr+4*st,4)}, {v(ac,4)}")
                if n >= L1[0]:
                    for _ in range(2 if L1[0] else 1):
                        if side: A.i(side.pop(0))
                if P1[0] and st == 3: A.i(f"s_nop {P1[0]}")
                if Q1[0] and n % Q1[0][1] == Q1[0][1]-1 and n < 20: A.i(f"s_waitcnt lgkmcnt({Q1[0][0]})")
                n += 1
        for x in side: A.i(x)
    A.i("s_mov_b32 s26, 0")
    A.i("s_mov_b32 s24, 0")
    A.i(f"v_mov_b32 {v(vX0)}, {v(vXb0)}")
    A.i(f"v_mov_b32 {v(vX1)}, {v(vXb1)}")
    A.i(f"v_mov_b32 {v(vW0)}, {v(vWb0)}")
    A.i(f"v_mov_b32 {v(vW1)}, {v(vWb1)}")
    A.i("s_mov_b32 s23, 16")
    h2b_signal(f"{N}_ahb", "vmcnt(0)")
    A.i("s_waitcnt lgkmcnt(0)")
    A.i("s_barrier                          ; G1 B0")
    mark(5)
    for x in g1reads(0, 0): A.i(x)
    nxt = ["s_add_u32 s26, s26, 28672", "s_add_u32 s24, s24, 16384", "s_cmp_eq_u32 s24, 49152",
           "s_cselect_b32 s26, 0, s26", "s_cselect_b32 s24, 0, s24",
           f"v_add_u32 {v(vX0)}, s24, {v(vXb0)}", f"v_add_u32 {v(vW0)}, s26, {v(vWb0)}",
           f"v_add_u32 {v(vW1)}, s26, {v(vWb1)}", f"v_add_u32 {v(vX1)}, s24, {v(vXb1)}"]
    def g1loop(tag, n, pad, late=0, q=None):
        if n == 0: return
        P1[0] = pad
        L1[0] = late
        Q1[0] = q
        A.i(f"s_mov_b32 s23, {n}")
        A(".p2align 6")
        A.label(tag)
        A.i("s_waitcnt lgkmcnt(0)")
        g1phase(0, g1reads(1, 1) + nxt)
        A.i("s_waitcnt lgkmcnt(0)")
        A.i("s_barrier")
        g1phase(1, g1reads(0, 0) + ["s_sub_u32 s23, s23, 1", "s_cmp_lg_u32 s23, 0"])
        A.i(f"s_cbranch_scc1 {tag}")
    if ramp1 or tail1:
        g1loop(f"{N}_g1c0", ramp1, pad1, late1, q1); g1loop(f"{N}_g1c", 16-ramp1-tail1, 0); g1loop(f"{N}_g1c2", tail1, pad1)
    else:
        g1loop(f"{N}_g1c", 16, pad1)
    mark(6)
    A.i("s_lshl_b32 s27, s21, 3")
    A.i("s_lshl_b32 s30, s28, 2")
    A.i("s_add_u32 s27, s27, s30")
    A.i("s_mul_i32 s27, s27, 112")
    A.i("s_mul_i32 s30, s22, 7")
    A.i("s_add_u32 s27, s27, s30")
    A.i("s_lshl_b32 s27, s27, 10")
    A.i("v_and_b32 v13, 1, v12")
    A.i("v_lshrrev_b32 v14, 1, v12")
    A.i("v_lshl_or_b32 v13, v13, 1, v14     ; pi(g)")
    A.i("v_lshlrev_b32 v108, 4, v13")
    A.i("v_lshlrev_b32 v13, 8, v13")
    A.i("v_lshl_add_u32 v13, v110, 4, v13")
    A.i("v_lshlrev_b32 v14, 8, v14")
    A.i("v_lshl_add_u32 v14, v110, 4, v14")
    A.i("v_and_b32 v15, 1, v12")
    A.i(f"v_mul_u32_u24 v15, {112*1024}, v15")
    A.i("v_add_u32 v14, v15, v14")
    A.i("s_lshl_b32 s30, s28, 13")
    A.i(f"s_add_u32 s30, s30, {G2X}")
    A.i("v_add_u32 v10, s30, v13")
    A.i("v_lshrrev_b32 v11, 1, v12")
    A.i("v_lshlrev_b32 v11, 8, v11")
    A.i("v_lshl_add_u32 v11, v110, 4, v11")
    A.i("v_and_b32 v9, 1, v12")
    A.i("v_lshl_add_u32 v11, v9, 11, v11")
    A.i("v_add_u32 v11, s30, v11")
    A.i(f"s_mov_b32 s32, 0x{LOG2E ^ 0x80000000:x}")
    A.i("s_waitcnt lgkmcnt(0)")
    def silu4(dst, ac, tmp):
        A.i(f"v_pk_mul_f32 {v(tmp,2)}, {v(ac,2)}, s[32:33] op_sel_hi:[1,0]")
        A.i(f"v_pk_mul_f32 {v(tmp+2,2)}, {v(ac+2,2)}, s[32:33] op_sel_hi:[1,0]")
        for r in range(4): A.i(f"v_exp_f32 {v(tmp+r)}, {v(tmp+r)}")
        A.i(f"v_pk_add_f32 {v(tmp,2)}, {v(tmp,2)}, 1.0 op_sel_hi:[1,0]")
        A.i(f"v_pk_add_f32 {v(tmp+2,2)}, {v(tmp+2,2)}, 1.0 op_sel_hi:[1,0]")
        for r in range(4): A.i(f"v_rcp_f32 {v(tmp+r)}, {v(tmp+r)}")
        A.i(f"v_pk_mul_f32 {v(tmp,2)}, {v(tmp,2)}, {v(ac,2)}")
        A.i(f"v_pk_mul_f32 {v(tmp+2,2)}, {v(tmp+2,2)}, {v(ac+2,2)}")
        A.i(f"v_cvt_pk_bf16_f32 {v(dst)}, {v(tmp)}, {v(tmp+1)}")
        A.i(f"v_cvt_pk_bf16_f32 {v(dst+1)}, {v(tmp+2)}, {v(tmp+3)}")
    def ebody(wf):
        pairs = [(0,0),(2,1),(4,2)] if wf == 0 else [(1,4),(3,5),(5,6)]
        single = 6 if wf == 0 else 0
        cnt = 0
        for st in range(4):
            A.i(f"s_add_u32 s30, s27, {st*112*1024}")
            for (t, blk) in pairs:
                d = 16 + (cnt % 4) * 4
                cnt += 1
                silu4(d, ACC + (t*4+st)*4, 40)
                silu4(d+2, ACC + ((t+1)*4+st)*4, 44)
                A.i("s_nop 1")
                A.i(f"v_permlane16_swap_b32 {v(d)}, {v(d+2)}")
                A.i(f"v_permlane16_swap_b32 {v(d+1)}, {v(d+3)}")
                A.i(f"buffer_store_dwordx4 {v(d,4)}, {'v13' if blk < 4 else 'v15'}, s[16:19], s30 offen offset:{(blk%4)*1024} {actst}")
                if blk < 6: A.i(f"ds_write_b128 v10, {v(d,4)} offset:{(blk//2)*16384 + st*2048 + (blk%2)*1024}")
            if st % 2 == 0:
                d = 32 + (st // 2) * 4
                silu4(d, ACC + (single*4+st)*4, 40)
                silu4(d+2, ACC + (single*4+st+1)*4, 44)
                A.i("s_nop 1")
                A.i(f"v_permlane16_swap_b32 {v(d)}, {v(d+2)}")
                A.i(f"v_permlane16_swap_b32 {v(d+1)}, {v(d+3)}")
                A.i(f"buffer_store_dwordx4 {v(d,4)}, v14, s[16:19], s30 offen offset:{3*1024 + wf*512} {actst}")
                A.i(f"ds_write_b128 v11, {v(d,4)} offset:{16384 + 1024 + st*2048 + wf*512}")
    A.i("v_add_u32 v15, 4096, v13")
    A.i("s_cmp_eq_u32 s29, 0")
    A.i(f"s_cbranch_scc0 {N}_epi1")
    ebody(0)
    A.i(f"s_branch {N}_epi2")
    A.label(f"{N}_epi1")
    ebody(1)
    A.label(f"{N}_epi2")
    mark(7)
    A.i("s_lshl_b32 s62, s21, 4")
    A.i("s_add_u32 s62, s62, s22")
    A.i("s_lshl_b32 s62, s62, 10")

    FS = [16, 48]
    vXb, vWb = 12, 13
    vX, vW = 4, 8
    X1, GB = 96, 112
    g2_ids()
    A.i("v_lshl_add_u32 v81, v110, 11, v108")
    A.i("s_lshl_b32 s30, s21, 1")
    A.i("s_add_u32 s30, s30, s28")
    A.i("s_lshl_b32 s30, s30, 17")
    A.i("s_lshl_b32 s31, s22, 1")
    A.i("s_add_u32 s31, s31, s29")
    A.i("s_lshl_b32 s31, s31, 1")
    A.i("s_add_u32 s31, s31, s52")
    A.i("s_lshl_b32 s31, s31, 6")
    A.i("s_add_u32 s30, s30, s31")
    A.i("s_lshl_b32 s31, s31, 1")
    A.i(f"s_add_u32 s31, s31, {5*4096}")
    A.i("v_lshrrev_b32 v14, 4, v2           ; g")
    A.i("v_lshrrev_b32 v80, 2, v110")
    A.i("v_lshl_add_u32 v82, v14, 3, v80")
    A.i("v_and_b32 v83, 1, v14")
    A.i("v_xor_b32 v83, s29, v83")
    A.i("v_lshl_or_b32 v80, v83, 2, v80")
    A.i("v_lshlrev_b32 v80, 5, v80")
    A.i("v_and_b32 v83, 3, v2")
    A.i("v_lshl_add_u32 v80, v83, 3, v80")
    A.i(f"v_lshl_add_u32 {v(vWb)}, v82, 8, v80")
    A.i("s_lshl_b32 s27, s52, 6")
    A.i(f"v_xor_b32 {v(vWb)}, s27, {v(vWb)}")
    A.i("s_lshl_b32 s27, s28, 13")
    A.i(f"s_add_u32 s27, s27, {G2X}")
    A.i(f"v_add_u32 {v(vXb)}, s27, v3")
    A.i("v_mov_b32 v83, 0")
    A.i(f"v_mov_b32 v94, s{SV}")
    A.i(f"v_mov_b32 v92, {CNT}")
    def g2addr():
        out = ["s_add_u32 s26, s26, 16384", "s_and_b32 s26, s26, 0xffff",
               f"v_add_u32 {v(vW)}, s26, {v(vWb)}", f"v_add_u32 {v(vX)}, s26, {v(vXb)}"]
        for t in range(1, 4):
            out.append(f"v_xor_b32 {v(vW+t)}, {32*t}, {v(vW)}")
        return out
    def g2reads(fs, kk):
        out = []
        Xr, W = FS[fs], FS[fs] + 16
        def wr(t):
            for hb in range(2):
                out.append(f"ds_read_b64_tr_b16 {v(W+4*t+2*hb,2)}, {v(vW+t)} offset:{kk*8192 + hb*1024}")
        wr(0)
        for st in range(4):
            out.append(f"ds_read_b128 {v(Xr+4*st,4)}, {v(vX)} offset:{st*2048 + kk*1024}")
        for t in range(1, 4): wr(t)
        return out
    def g2phase(fs, side):
        Xr, W = FS[fs], FS[fs] + 16
        side = list(side)
        n = 0
        for t in range(4):
            for st in range(4):
                ac = ACC + (t*4+st)*4
                A.i(f"v_mfma_f32_16x16x32_bf16 {v(ac,4)}, {v(W+4*t,4)}, {v(Xr+4*st,4)}, {v(ac,4)}")
                n += 1
                for _ in range(1 if n <= 12 else 2):
                    if side: A.i(side.pop(0))
        for x in side: A.i(x)
    A.i("s_mov_b32 s26, 49152")
    for x in g2addr(): A.i(x)
    srd(A, 8, P_WS, 4*MB, WS['x1'])
    srd(A, 12, P_WS, 2*24576, WS['mod'])
    srd(A, 16, P_OUT, 4*MB)
    A.i("v_lshlrev_b32 v15, 1, v108")
    A.i(f"s_add_u32 s25, s31, 24576")
    A.i("s_mov_b32 s23, 28")
    A.i("s_waitcnt lgkmcnt(0)")
    A.i("s_barrier                          ; G2 B0")
    mark(9)
    for x in g2reads(0, 0): A.i(x)
    for r in range(64):
        A.i(f"v_mov_b32 {v(ACC+r)}, 0")
    arrive(f"{N}_aa", 24, 4, "s62", F_ACT, vc=92, vt=93)
    mark(8)
    for st in range(4):
        A.i(f"s_add_u32 s{32+st}, s30, {st*16*2048}")
        if not lazyx1:
            A.i(f"buffer_load_dwordx4 {v(X1+4*st,4)}, v81, s[8:11], s{32+st} offen {WT}")
    for h in range(2):
        for e in range(2):
            A.i(f"buffer_load_dwordx4 {v(GB+8*h+4*e,4)}, v15, s[12:15], {'s31' if h==0 else 's25'} offen offset:{16*e} {WT}")
    srd(A, 8, P_WS, 4*MB, WS['xch'])
    A(".p2align 6")
    A.label(f"{N}_g2c")
    A.i("s_waitcnt lgkmcnt(0)")
    g2phase(0, g2reads(1, 1) + g2addr())
    A.i("s_waitcnt lgkmcnt(0)")
    A.i("s_barrier")
    g2phase(1, g2reads(0, 0) + ["s_sub_u32 s23, s23, 1", "s_cmp_lg_u32 s23, 0"])
    A.i(f"s_cbranch_scc1 {N}_g2c")
    mark(10)
    A.i("s_lshl_b32 s27, s2, 2")
    A.i("s_add_u32 s27, s27, s20")
    A.i(f"s_xor_b32 s36, s27, {4 if m48 else 16}")
    A.i("s_lshl_b32 s53, s27, 12")
    A.i("s_lshl_b32 s54, s36, 12")
    A.i("s_lshl_b32 s63, s2, 10")
    A.i("s_lshl_b32 s27, s20, 7")
    A.i("s_add_u32 s63, s63, s27")
    A.i(f"s_xor_b32 s27, s63, {1024 if m48 else 4096}")
    A.i("v_mov_b32 v82, s27")
    A.i("s_mov_b32 s27, 0xffff0000")
    A.i("s_waitcnt vmcnt(0) lgkmcnt(0)")
    send, keep = ACC + 32, ACC
    if lazyx1:
        A.i("s_lshl_b32 s25, s20, 12")
        A.i(f"s_add_u32 s25, s25, {X1L}")
        A.i("v_add_u32 v80, s25, v3")
        for st in range(4):
            A.i(f"ds_read_b128 {v(X1+4*st,4)}, v80 offset:{1024*st}")
    for st in range(4):
        d, a2 = send + st*4, send + 16 + st*4
        A.i(f"v_cvt_pk_bf16_f32 {v(d)}, {v(d)}, {v(d+1)}")
        A.i(f"v_cvt_pk_bf16_f32 {v(d+1)}, {v(d+2)}, {v(d+3)}")
        A.i(f"v_cvt_pk_bf16_f32 {v(d+2)}, {v(a2)}, {v(a2+1)}")
        A.i(f"v_cvt_pk_bf16_f32 {v(d+3)}, {v(a2+2)}, {v(a2+3)}")
        A.i("s_nop 1")
        A.i(f"v_permlane16_swap_b32 {v(d)}, {v(d+2)}")
        A.i(f"v_permlane16_swap_b32 {v(d+1)}, {v(d+3)}")
        A.i(f"buffer_store_dwordx4 {v(d,4)}, v3, s[8:11], s53 offen offset:{1024*st} {WT}")
    for q in range(4):
        A.i(f"v_pk_add_f32 {v(84+2*q,2)}, {v(GB+2*q,2)}, {v(GB+8+2*q,2)}")
        A.i(f"v_cvt_pk_bf16_f32 v92, {v(84+2*q)}, {v(85+2*q)}")
        A.i(f"v_lshlrev_b32 {v(84+2*q)}, 16, v92")
        A.i(f"v_and_b32 {v(85+2*q)}, s27, v92")
    def base(st):
        p, q = keep + st*4, keep + 16 + st*4
        for r in range(4):
            A.i(f"v_permlane16_swap_b32 {v(p+r)}, {v(q+r)}")
        for hh in range(4):
            src = (p if hh < 2 else q) + 2*(hh % 2)
            t = 32 + 2*(hh % 2)
            A.i(f"v_lshlrev_b32 {v(t)}, 16, {v(X1+4*st+hh)}")
            A.i(f"v_and_b32 {v(t+1)}, s27, {v(X1+4*st+hh)}")
            A.i(f"v_pk_fma_f32 {v(src,2)}, {v(src,2)}, {v(84+2*hh,2)}, {v(t,2)}")
    if lazyx1: A.i("s_waitcnt lgkmcnt(0)")
    base(0); base(1)
    A.i("s_waitcnt vmcnt(0)")
    mark(62)
    A.i("s_mov_b64 exec, 1")
    A.i(f"buffer_store_dword v94, off, s[{FL}:{FL+3}], s63 {WT}")
    A.i("s_mov_b64 exec, -1")
    base(2); base(3)
    poll(A, f"{N}_px", 82, vt=95)
    mark(11)
    for st in range(4):
        A.i(f"buffer_load_dwordx4 {v(16+4*st,4)}, v3, s[8:11], s54 offen offset:{1024*st} {WT}")
    for st in range(4):
        p, q = keep + st*4, keep + 16 + st*4
        A.i("s_waitcnt vmcnt(3)")
        for hh in range(4):
            src = (p if hh < 2 else q) + 2*(hh % 2)
            t = 32 + 2*(hh % 2)
            A.i(f"v_lshlrev_b32 {v(t)}, 16, {v(16+4*st+hh)}")
            A.i(f"v_and_b32 {v(t+1)}, s27, {v(16+4*st+hh)}")
            A.i(f"v_pk_fma_f32 {v(t,2)}, {v(t,2)}, {v(84+2*hh,2)}, {v(src,2)}")
            A.i(f"v_cvt_pk_bf16_f32 {v(X1+4*st+hh)}, {v(t)}, {v(t+1)}")
        A.i(f"buffer_store_dwordx4 {v(X1+4*st,4)}, v81, s[16:19], s{32+st} offen {outf}")
    A.label(f"{N}_fin")
    if ts and tsw < 4 and spin is None: ts_end(A, N, P_WS, tsw)
    if spin is not None:
        A.i("s_waitcnt vmcnt(0)")
        A.i("s_memrealtime s[42:43]")
        A.i("s_waitcnt lgkmcnt(0)")
        A.i(f"s_cmp_lg_u32 s2, {spin[1]}")
        A.i(f"s_cbranch_scc1 {N}_done")
        A.i("s_cmp_lg_u32 s20, 0")
        A.i(f"s_cbranch_scc1 {N}_done")
        src = {-1: "s40", -2: "s42"}.get(spin[0], "s84")
        A.i(f"s_sub_u32 s46, {src}, s40")
        A.i("s_min_u32 s46, s46, 10000")
        A.i("s_mul_i32 s46, s46, 2")
        A.i("s_add_u32 s46, s46, 1000")
        A.i("s_add_u32 s46, s46, s42")
        A.label(f"{N}_spin")
        A.i("s_memrealtime s[44:45]")
        A.i("s_waitcnt lgkmcnt(0)")
        A.i("s_sub_u32 s45, s46, s44")
        A.i("s_cmp_gt_i32 s45, 0")
        A.i(f"s_cbranch_scc1 {N}_spin")
    A.i("s_endpgm")

    def l_epilogue():
        pass
    def l_pre(xw):
        A.i("v_lshrrev_b32 v166, 3, v2")
        A.i("v_and_b32 v175, 7, v2")
        A.i("v_xor_b32 v175, v175, v166")
        A.i("v_lshlrev_b32 v175, 4, v175")
        A.i("v_lshl_add_u32 v175, v166, 11, v175")
        A.i("s_mul_i32 s52, s63, 448")
        A.i("v_add_u32 v162, s52, v2")
        A.i("s_movk_i32 s52, 2341")
        A.i("s_movk_i32 s53, 7168")
        for q in range(7):
            A.i(f"v_add_u32 v163, {64*q}, v162")
            A.i("v_mul_u32_u24 v164, s52, v163")
            A.i("v_lshrrev_b32 v164, 16, v164")
            A.i("v_mul_u32_u24 v165, 28, v164")
            A.i("v_sub_u32 v163, v163, v165")
            A.i("v_bfe_u32 v165, v164, 3, 1")
            A.i("v_lshlrev_b32 v165, 1, v165")
            A.i("v_xor_b32 v163, v163, v165")
            A.i("v_mul_u32_u24 v164, s53, v164")
            A.i(f"v_lshl_add_u32 {v(168+q)}, v163, 4, v164")
        pass
    A.label(f"{N}_L")
    if lstore:
        A.i("ds_read_b128 v[16:19], v10")
        A.i("ds_read_b128 v[20:23], v10 offset:8192")
        A.i("v_subrev_u32 v10, 4096, v10")
        A.i("v_xor_b32 v10, 64, v10")
        A.i("ds_read_b128 v[24:27], v10")
        A.i("ds_read_b128 v[28:31], v10 offset:8192")
        A.i("v_subrev_u32 v9, 0x10000, v11")
        for i, (r, so) in enumerate(((11, 25), (11, 26), (9, 25), (9, 26))):
            A.i(f"s_waitcnt lgkmcnt({3-i})")
            A.i(f"buffer_store_dwordx4 {v(16+4*i,4)}, v{r}, s[32:35], s{so} offen {WT}")
    for u in range(2):
        A.i(f"buffer_load_dwordx4 {v(CR+4*u,4)}, {v(vCO)}, s[28:31], s37 offen offset:{16*u}")
    stream(E1, E1+E2)
    arrive(f"{N}_ak2", 16, 4 if lstore else 8, "s23", F_KV, wait=f"vmcnt({2+E2})", fast="s39" if fastkv else None)
    A.i("s_cmp_ge_u32 s2, 192")
    A.i(f"s_cbranch_scc1 {N}_Lidle")
    S = 32
    A.i(f"s_mov_b32 s39, 0x{LOG2E ^ 0x80000000:x}")
    A.i(f"s_waitcnt vmcnt({E2})")
    for q in range(8):
        A.i(f"v_lshlrev_b32 {v(S+4*q)}, 16, {v(CR+q)}")
        A.i(f"v_and_b32 {v(S+4*q+2)}, s27, {v(CR+q)}")
    for q in range(8):
        x0, x1 = S+4*q, S+4*q+2
        A.i(f"v_mul_f32 v8, s39, {v(x0)}")
        A.i(f"v_mul_f32 v9, s39, {v(x1)}")
        A.i("v_exp_f32 v8, v8"); A.i("v_exp_f32 v9, v9")
        A.i("s_nop 0")
        A.i("v_add_f32 v8, 1.0, v8"); A.i("v_add_f32 v9, 1.0, v9")
        A.i("v_rcp_f32 v8, v8"); A.i("v_rcp_f32 v9, v9")
        A.i("s_nop 0")
        A.i(f"v_mul_f32 v8, v8, {v(x0)}"); A.i(f"v_mul_f32 v9, v9, {v(x1)}")
        A.i("v_cvt_pk_bf16_f32 v8, v8, v9")
        A.i(f"v_lshlrev_b32 {v(x0)}, 16, v8")
        A.i(f"v_and_b32 {v(x1)}, s27, v8")
    AC = 16
    for r in range(8): A.i(f"v_mov_b32 {v(AC+r)}, 0")
    def fma_rows(j0, j1, later):
        for j in range(j0, j1):
            A.i(f"s_waitcnt vmcnt({later(j)})")
            for q in range(4):
                t = 8 + 2*(q % 2)
                A.i(f"v_lshlrev_b32 {v(t)}, 16, {v(SD+4*j+q)}")
                A.i(f"v_and_b32 {v(t+1)}, s27, {v(SD+4*j+q)}")
                A.i(f"v_pk_fma_f32 {v(AC+2*q,2)}, {v(t,2)}, {v(S+2*j,2)}, {v(AC+2*q,2)} op_sel_hi:[1,0,1]")
    fma_rows(0, E1+E2, lambda j: min(E2, E1+E2-1-j))
    l_pre(0)
    page_touch(f"{N}_pt1")
    mark(30)
    gate(f"{N}_gk")
    mark(31)
    xrow_load()
    stream(E1+E2, 16)
    code_touch(f"{N}_ct1")
    def conv_wait(tag, need):
        A.label(tag)
        A.i("s_sleep 2")
        A.i("ds_read_b32 v15, v14")
        A.i("s_waitcnt lgkmcnt(0)")
        A.i(f"v_cmp_gt_u32 vcc, {need}, v15")
        A.i("s_nop 1")
        A.i(f"s_cbranch_vccnz {tag}")
    if defer == 2: conv_wait(f"{N}_cw", 64)
    A.i(f"s_waitcnt vmcnt({16-E1-E2})")
    ln_pre(64)
    if defer == 1: conv_wait(f"{N}_cw", 64)
    mark(32)
    if prio: A.i(f"s_setprio {prio}")
    fma_rows(E1+E2, 16, lambda j: 15-j)
    mark(33)
    A.i("s_nop 1")
    for r in range(8):
        A.i(f"v_add_f32_dpp {v(AC+r)}, {v(AC+r)}, {v(AC+r)} row_ror:8 row_mask:0xf bank_mask:0xf")
    for sw in ("v_permlane16_swap_b32", "v_permlane32_swap_b32"):
        for r in range(8): A.i(f"v_mov_b32 {v(24+r)}, {v(AC+r)}")
        for r in range(8): A.i(f"{sw} {v(AC+r)}, {v(24+r)}")
        for r in range(8): A.i(f"v_add_f32 {v(AC+r)}, {v(AC+r)}, {v(24+r)}")
    A.i("s_lshl_b32 s25, s63, 8")
    A.i(f"s_add_u32 s25, s25, {GP}")
    A.i("v_and_b32 v8, 7, v2")
    A.i("v_lshlrev_b32 v8, 5, v8")
    A.i("v_add_u32 v8, s25, v8")
    A.i(f"ds_write_b128 v8, {v(AC,4)}")
    A.i(f"ds_write_b128 v8, {v(AC+4,4)} offset:16")
    A.i(f"v_mov_b32 v9, {CNT+4}")
    A.i("v_mov_b32 v10, 1")
    A.i("s_waitcnt lgkmcnt(0)")
    A.i("ds_add_rtn_u32 v10, v9, v10")
    A.i("s_waitcnt lgkmcnt(0)")
    A.i("v_cmp_le_u32 vcc, 192, v10")
    A.i("s_nop 1")
    A.i(f"s_cbranch_vccz {N}_Lj")
    A.i("v_lshlrev_b32 v8, 2, v2")
    A.i(f"v_add_u32 v9, {GP}, v8")
    for p in range(4):
        A.i(f"ds_read_b32 {v(16+p)}, v9 offset:{256*p}")
    srd(A, 16, P_WS, 2*24576, WS['mod'])
    A.i("s_and_b32 s25, s2, 1")
    A.i("s_mul_i32 s25, s25, 24576")
    A.i("s_lshl_b32 s26, s36, 8")
    A.i("s_add_u32 s25, s25, s26")
    A.i("s_waitcnt lgkmcnt(0)")
    A.i("v_add_f32 v16, v16, v17")
    A.i("v_add_f32 v18, v18, v19")
    A.i("v_add_f32 v16, v16, v18")
    A.i(f"buffer_store_dword v16, v8, s[16:19], s25 offen {WT}")
    A.i("s_lshl_b32 s25, s2, 7")
    A.i(f"s_add_u32 s25, s25, {F_MOD}")
    A.i("s_waitcnt vmcnt(0)")
    A.i("s_mov_b64 exec, 1")
    A.i(f"buffer_store_dword v13, off, s[{FL}:{FL+3}], s25 {WT}")
    A.i("s_mov_b64 exec, -1")
    A.i(f"s_branch {N}_Lj")
    A.label(f"{N}_Lidle")
    l_pre(0)
    page_touch(f"{N}_pt2")
    gate(f"{N}_gk2")
    xrow_load()
    code_touch(f"{N}_ct2")
    A.i("s_waitcnt vmcnt(0)")
    ln_pre(64)
    if pw1:
        srd(A, 12, P_W1, D1*64*7168)
        A.i("s_sub_u32 s30, s2, 192")
        A.i("s_lshl_b32 s30, s30, 2")
        A.i("s_add_u32 s30, s30, s63")
        A.i(f"s_mul_i32 s30, s30, {D1*14*128}")
        A.i("v_lshlrev_b32 v11, 7, v2")
        n = D1*14
        for b in range(0, n, 64):
            if n - b < 64: A.i(f"v_min_u32 v11, {(n-b-1)*128}, v11")
            A.i("buffer_load_dword v12, v11, s[12:15], s30 offen")
            A.i("s_add_u32 s30, s30, 8192")
    A.label(f"{N}_Lj")
    if prio: A.i("s_setprio 0")
    A.i("s_waitcnt lgkmcnt(0)")
    mark(34)
    A.i("v_lshlrev_b32 v4, 7, v2")
    A.i(f"v_add_u32 v4, {F_MOD}, v4")
    srd(A, 16, P_WS, 2*24576, WS['mod'])
    A.i("v_and_b32 v7, 0xff, v0")
    A.i("v_lshlrev_b32 v6, 3, v7")
    A.i(f"v_add_u32 v6, {LNT}, v6")
    A.i("v_lshlrev_b32 v7, 4, v7")
    fblk_to("s80", "s22")
    A.i("s_mul_i32 s80, s80, 448            ; W soffset")
    A.i("s_mul_i32 s81, s63, 7168")
    srd(A, 8, P_W1, 1024*7168)
    def g1w(slot):
        for q in range(7):
            A.i(f"s_add_u32 m0, s81, {slot + q*1024}" if isinstance(slot, int) else f"s_add_u32 m0, {slot}, {q*1024}")
            A.i("s_nop 0")
            A.i(f"buffer_load_dwordx4 {v(168+q)}, s[8:11], s80 offen lds")
        A.i(f"s_add_u32 s80, s80, {64*7168}")
    if prefill == 'y':
        A.label(f"{N}_pfy")
        A.i("ds_read_b32 v15, v14 offset:28")
        A.i("s_waitcnt lgkmcnt(0)")
        A.i("v_cmp_ne_u32 vcc, 4, v15")
        A.i("s_sleep 1")
        A.i(f"s_cbranch_vccnz {N}_pfy")
        for j in range(npf): g1w(G1W + j*28672)
    if onepm:
        A.i("s_cmp_lg_u32 s63, 0")
        A.i(f"s_cbranch_scc1 {N}_pmw")
        if pmgate:
            A.label(f"{N}_pmg")
            A.i("ds_read_b32 v15, v14 offset:28")
            A.i("s_waitcnt lgkmcnt(0)")
            A.i("v_cmp_ne_u32 vcc, 4, v15")
            A.i("s_sleep 1")
            A.i(f"s_cbranch_vccnz {N}_pmg")
        poll_all(A, f"{N}_pm", 4, 3, cnt=39, stride=8192)
        A.i("v_mov_b32 v15, 1")
        A.i("ds_write_b32 v14, v15 offset:12")
        A.label(f"{N}_pmw")
        A.i("ds_read_b32 v15, v14 offset:12")
        A.i("s_waitcnt lgkmcnt(0)")
        A.i("v_cmp_ne_u32 vcc, 1, v15")
        A.i("s_sleep 1")
        A.i(f"s_cbranch_vccnz {N}_pmw")
    else:
        poll_ctr(A, f"{N}_pm", 4, 8, 12)
    mark(35)
    for r in range(5):
        for h in range(2):
            A.i(f"s_mov_b32 s22, {4096*r + 24576*h}")
            A.i(f"buffer_load_dwordx4 {v(32+8*r+4*h,4)}, v7, s[16:19], s22 offen {WT}")
    for r in range(5):
        b = 32 + 8*r
        A.i(f"s_waitcnt vmcnt({2*(4-r)})")
        A.i(f"v_pk_add_f32 {v(b,2)}, {v(b,2)}, {v(b+4,2)}")
        A.i(f"v_pk_add_f32 {v(b+2,2)}, {v(b+2,2)}, {v(b+6,2)}")
        A.i(f"v_cvt_pk_bf16_f32 {v(b+4)}, {v(b)}, {v(b+1)}")
        A.i(f"v_cvt_pk_bf16_f32 {v(b+5)}, {v(b+2)}, {v(b+3)}")
        if r in (1, 4):
            unpack(b, b+4); unpack(b+2, b+5)
            A.i(f"v_pk_add_f32 {v(b,2)}, {v(b,2)}, 1.0 op_sel_hi:[1,0]")
            A.i(f"v_pk_add_f32 {v(b+2,2)}, {v(b+2,2)}, 1.0 op_sel_hi:[1,0]")
            A.i(f"v_cvt_pk_bf16_f32 {v(b+4)}, {v(b)}, {v(b+1)}")
            A.i(f"v_cvt_pk_bf16_f32 {v(b+5)}, {v(b+2)}, {v(b+3)}")
        A.i(f"ds_write_b64 v6, {v(b+4,2)} offset:{2048*r}")
    def pf():
        if prefill == 'b3':
            for j in range(npf): g1w(G1W + j*28672)
    A.i("s_waitcnt lgkmcnt(0)")
    mark(36)
    ln_main(True, pf)
    mark(37)
    ln_signal(f"{N}_ah2", True)
    mark(38)
    if prefill == 'sig':
        for j in range(npf): g1w(G1W + j*28672)
    g1_ids()
    A.i("s_lshl_b32 s24, s21, 4")
    A.i("s_lshl_b32 s27, s63, 2")
    A.i("s_add_u32 s24, s24, s27")
    A.i("v_and_b32 v4, 3, v2")
    A.i("v_add_u32 v4, s24, v4")
    A.i("v_lshlrev_b32 v4, 10, v4")
    A.i(f"v_add_u32 v4, {F_H2}, v4")
    A.i("s_lshl_b32 s24, s24, 14")
    A.i("s_lshl_b32 s33, s63, 12")
    A.i(f"s_add_u32 s33, s33, {G1X}")
    srd(A, 12, P_WS, 4*MB, WS['h2'])
    A.i("s_lshl_b32 s82, s2, 2")
    A.i("s_add_u32 s82, s82, s63           ; wave 0..1023")
    if xw1:
        A.i("s_lshr_b32 s38, s2, 3")
        A.i("s_lshl_b32 s38, s38, 1")
        A.i("s_lshr_b32 s39, s63, 1")
        A.i("s_add_u32 s38, s38, s39")
        A.i("s_mul_i32 s38, s38, 7168")
        A.i("s_bfe_u32 s39, s2, 0x20001")
        A.i("s_lshl_b32 s39, s39, 1")
        A.i("s_and_b32 s53, s63, 1")
        A.i("s_add_u32 s39, s39, s53")
        A.i("s_mul_i32 s39, s39, 896")
        A.i("s_add_u32 s38, s38, s39")
    else:
        A.i("s_mul_i32 s38, s82, 448")
    A.i(f"s_add_u32 s38, s38, {D1*64*7168}")
    A.i(f"s_add_u32 s38, s38, s{P_W1}")
    A.i(f"s_addc_u32 s39, s{P_W1+1}, 0")
    A.i("s_lshl_b32 s82, s21, 2")
    A.i("s_add_u32 s82, s82, s63           ; q")
    A.i("s_and_b32 s54, s82, 31")
    A.i("s_lshl_b32 s54, s54, 11")
    A.i("s_and_b32 s61, s22, 7")
    A.i("s_lshl_b32 s55, s61, 8")
    A.i("s_add_u32 s54, s54, s55")
    A.i("s_lshr_b32 s55, s22, 3")
    A.i(f"s_mul_i32 s55, s55, {1792*2048}")
    A.i("s_add_u32 s54, s54, s55")
    A.i(f"s_add_u32 s54, s54, s{P_W2}")
    A.i(f"s_addc_u32 s55, s{P_W2+1}, 0")
    A.i("s_mul_i32 s61, s61, 7")
    A.i("s_lshr_b32 s82, s82, 5")
    def w2_touch():
        blkidx("s62", "s82", "s61", "s53")
        A.i("s_lshl_b32 s62, s62, 16")
        for c in range(4):
            A.i(f"s_load_dword s{44+c}, s[54:55], s62")
            if c < 3: A.i("s_add_u32 s62, s62, 64")
        A.i("s_add_u32 s82, s82, 2")
    NL1 = 11
    if prioL: A.i(f"s_setprio {prioL}")
    poll(A, f"{N}_ph", 4)
    mark(39)
    def g1x(slot):
        for q in range(4):
            A.i(f"s_add_u32 m0, s33, {slot + q*1024}" if isinstance(slot, int) else f"s_add_u32 m0, {slot}, {q*1024}")
            A.i(f"s_add_u32 s37, s24, {q*8*2048}")
            A.i(f"buffer_load_dwordx4 v175, s[12:15], s37 offen {WT} lds")
        A.i("s_add_u32 s24, s24, 128")
    pend = []
    for j in range(3):
        if j >= npf: g1w(G1W + j*28672)
        g1x(j*16384)
        pend.append(4 + (7 if j >= npf else 0))
    h2b_signal(f"{N}_ahb2", "vmcnt(63)")
    mark(40)
    A.i(f"s_waitcnt vmcnt({pend[1]+pend[2]})")
    mark(41)
    A.i("s_barrier                          ; G1 B0")
    A.i("s_mov_b32 s26, 0")
    A.i("s_mov_b32 s25, 0")
    A.i("s_mov_b32 s23, 13")
    if h2split:
        A.i(f"v_add_u32 v4, {F_H2B - F_H2}, v4")
        poll(A, f"{N}_ph2", 4)
    A.i(f"s_waitcnt vmcnt({pend[2]})")
    A.i(f"s_branch {N}_g1l2")
    A.label(f"{N}_g1l")
    A.i(f"s_waitcnt vmcnt({NL1})")
    A.label(f"{N}_g1l2")
    A.i("s_barrier")
    if lazyx1:
        A.i(f"s_cmp_lg_u32 s23, {X1IT}")
        A.i(f"s_cbranch_scc1 {N}_nx1")
        x1_store()
        A.label(f"{N}_nx1")
    A.i("s_add_u32 s35, s26, s81")
    A.i("s_add_u32 s36, s25, s33")
    g1w("s35"); g1x("s36")
    if pw1:
        A.i(f"s_cmp_le_u32 s23, {13-(16-D1)}")
        A.i(f"s_cbranch_scc1 {N}_t1")
        for c in range(14 if xw1 else 7):
            A.i(f"s_load_dword s{44+(c%4)}, s[38:39], {c*64}")
        A.i(f"s_add_u32 s38, s38, {64*7168}")
        A.i("s_addc_u32 s39, s39, 0")
        A.label(f"{N}_t1")
    if pw2:
        A.i(f"s_cmp_gt_u32 s23, {D2}")
        A.i(f"s_cbranch_scc1 {N}_t2")
        w2_touch()
        A.label(f"{N}_t2")
    A.i("s_add_u32 s26, s26, 28672")
    A.i("s_add_u32 s25, s25, 16384")
    A.i("s_cmp_eq_u32 s25, 49152")
    A.i("s_cselect_b32 s26, 0, s26")
    A.i("s_cselect_b32 s25, 0, s25")
    A.i("s_sub_u32 s23, s23, 1")
    A.i("s_cmp_lg_u32 s23, 0")
    A.i(f"s_cbranch_scc1 {N}_g1l")
    x1_signal(f"{N}_ax2", 8, 9, wait="vmcnt(22)")
    A.i("s_waitcnt lgkmcnt(0)")
    code_touch(f"{N}_ct3")
    g2_ids()
    A.i("v_lshrrev_b32 v4, 4, v2")
    A.i("v_lshlrev_b32 v5, 1, v4")
    A.i("v_and_b32 v6, 15, v2")
    A.i("v_xor_b32 v5, v5, v6")
    A.i("v_lshlrev_b32 v5, 4, v5")
    A.i("v_lshl_add_u32 v5, v4, 11, v5")
    A.i("v_xor_b32 v6, 128, v5")
    A.i("s_lshl_b32 s24, s21, 3")
    A.i("s_lshl_b32 s27, s63, 1")
    A.i("s_add_u32 s24, s24, s27")
    A.i(f"s_mul_i32 s24, s24, {112*1024}")
    A.i(f"s_mul_i32 s27, s52, {56*1024}")
    A.i("s_add_u32 s24, s24, s27            ; X base")
    A.i("s_lshl_b32 s80, s22, 8")
    A.i("s_and_b32 s27, s63, 1")
    A.i("s_lshl_b32 s27, s27, 15")
    A.i("s_add_u32 s80, s80, s27")
    A.i(f"s_mul_i32 s27, s52, {1792*2048}")
    A.i("s_add_u32 s80, s80, s27            ; W base")
    A.i("s_lshr_b32 s28, s63, 1")
    A.i("s_mov_b32 s29, 6")
    A.i("s_lshl_b32 s81, s63, 12")
    A.i(f"s_add_u32 s33, s81, {G2X}")
    A.i("s_lshl_b32 s27, s21, 4")
    A.i("s_lshl_b32 s30, s52, 3")
    A.i("s_add_u32 s27, s27, s30")
    A.i("v_and_b32 v7, 7, v2")
    A.i("v_add_u32 v7, s27, v7")
    A.i("v_lshlrev_b32 v7, 10, v7")
    A.i(f"v_add_u32 v7, {F_ACT}, v7")
    if lazyx1:
        A.i("s_lshl_b32 s27, s21, 4")
        A.i("v_and_b32 v8, 15, v2")
        A.i("v_add_u32 v8, s27, v8")
        A.i("v_lshlrev_b32 v8, 10, v8")
        A.i(f"v_add_u32 v8, {F_X1}, v8")
        A.i("v_cmp_gt_u32 vcc, 32, v2")
        A.i("s_nop 1")
        A.i("v_cndmask_b32 v7, v8, v7, vcc")
    for rem in (NL1, 0, 0):
        A.i(f"s_waitcnt vmcnt({rem})")
        A.i("s_barrier")
    srd(A, 8, P_W2, 3584*2048)
    srd(A, 12, P_WS, 2048*3584*2, WS['act'])
    def g2w(slot):
        blkidx("s30", "s28", "s61", "s31")
        A.i("s_lshl_b32 s30, s30, 16")
        A.i("s_add_u32 s30, s30, s80")
        for q in range(4):
            A.i(f"s_add_u32 m0, s81, {slot + q*1024}" if isinstance(slot, int) else f"s_add_u32 m0, {slot}, {q*1024}")
            A.i(f"s_add_u32 s37, s30, {q*4*2048}")
            A.i(f"buffer_load_dwordx4 {v(5+(q//2))}, s[8:11], s37 offen lds")
        A.i("s_add_u32 s28, s28, 2")
    def g2x(slot):
        A.i(f"s_add_u32 m0, s33, {slot}")
        for kb in range(2):
            A.i("s_sub_u32 s31, s29, 6")
            A.i("s_cmp_ge_u32 s31, s61")
            A.i("s_cselect_b32 s30, s29, s31")
            A.i("s_lshl_b32 s30, s30, 10")
            A.i("s_add_u32 s30, s30, s24")
            A.i(f"s_add_u32 s37, s30, {112*1024}")
            A.i(f"buffer_load_dwordx4 v3, s[12:15], s30 offen {actld} lds")
            A.i("s_add_u32 m0, m0, 2048")
            A.i("s_add_u32 s29, s29, 1")
            A.i(f"buffer_load_dwordx4 v3, s[12:15], s37 offen {actld} lds")
            if kb == 0: A.i("s_sub_u32 m0, m0, 1024")
    for j in range(4): g2w(G2W + j*16384)
    A.i("v_and_b32 v8, 1, v2")
    A.i("v_lshlrev_b32 v8, 10, v8")
    A.i("v_readfirstlane_b32 s27, v7")
    A.i("s_nop 1")
    A.i("v_add_u32 v8, s27, v8")
    for rem in (12, 8, 4):
        A.i(f"s_waitcnt vmcnt({rem})")
        A.i("s_barrier")
    mark(42)
    poll(A, f"{N}_pa0", 8)
    mark(43)
    g2x(3*16384)
    A.i("s_mov_b32 s26, 0")
    def g2step(touch=True, bar=True):
        if bar: A.i("s_barrier")
        A.i("s_add_u32 s35, s26, s81")
        g2w("s35"); g2x("s26")
        if pw2 and touch: w2_touch()
        A.i("s_add_u32 s26, s26, 16384")
        A.i("s_and_b32 s26, s26, 0xffff")
    g2step(bar=False)
    g2step(bar=False)
    A.i("s_waitcnt vmcnt(16)")
    mark(44)
    A.i("s_barrier                          ; B3")
    poll(A, f"{N}_pa", 7)
    if lazyx1:
        srd(A, 16, P_WS, 4*MB, WS['x1'])
        A.i("v_lshrrev_b32 v10, 4, v2")
        A.i("v_and_b32 v11, 1, v10")
        A.i("v_lshrrev_b32 v10, 1, v10")
        A.i("v_lshl_or_b32 v10, v11, 1, v10")
        A.i("v_lshlrev_b32 v10, 4, v10")
        A.i("v_and_b32 v11, 15, v2")
        A.i("v_lshl_add_u32 v10, v11, 11, v10")
        A.i("s_and_b32 s30, s63, 1")
        A.i("s_lshl_b32 s31, s21, 1")
        A.i("s_add_u32 s30, s30, s31")
        A.i("s_lshl_b32 s30, s30, 17")
        A.i("s_lshr_b32 s31, s63, 1")
        A.i("s_lshl_b32 s37, s22, 1")
        A.i("s_add_u32 s31, s31, s37")
        A.i("s_lshl_b32 s31, s31, 1")
        A.i("s_add_u32 s31, s31, s52")
        A.i("s_lshl_b32 s31, s31, 6")
        A.i("s_add_u32 s30, s30, s31")
        A.i(f"s_add_u32 m0, s81, {X1L}")
        for st in range(4):
            A.i("s_nop 0")
            A.i(f"buffer_load_dwordx4 v10, s[16:19], s30 offen {WT} lds")
            A.i("s_add_u32 m0, m0, 1024")
            A.i("s_add_u32 s30, s30, 32768")
    g2step(bar=False)
    A.i(f"s_mov_b32 s23, {28-D2-3}")
    A.label(f"{N}_g2l")
    A.i("s_waitcnt vmcnt(16)")
    if ts:
        for mk, val in ((70, 16), (71, 11), (72, 6), (73, 1)):
            if mk in marks:
                A.i(f"s_cmp_lg_u32 s23, {val}")
                A.i(f"s_cbranch_scc1 {N}_mk{mk}")
                mark(mk)
                A.label(f"{N}_mk{mk}")
    g2step()
    A.i("s_sub_u32 s23, s23, 1")
    A.i("s_cmp_lg_u32 s23, 0")
    A.i(f"s_cbranch_scc1 {N}_g2l")
    A.i(f"s_mov_b32 s23, {D2-4}")
    A.label(f"{N}_g2m")
    A.i("s_waitcnt vmcnt(16)")
    g2step(False)
    A.i("s_sub_u32 s23, s23, 1")
    A.i("s_cmp_lg_u32 s23, 0")
    A.i(f"s_cbranch_scc1 {N}_g2m")
    A.i("s_waitcnt lgkmcnt(0)")
    code_touch(f"{N}_ct4")
    for rem in (16, 8, 0, 0):
        A.i(f"s_waitcnt vmcnt({rem})")
        A.i("s_barrier")
    if ts and tsw >= 4:
        A.i("s_waitcnt lgkmcnt(0)")
        ts_end(A, N, P_WS, tsw)
    A.label(f"{N}_done")
    A.i("s_endpgm")
    kernel_desc(A, N, 240, 102)
    return (256, 512, 163840)
```

```python
from buildf import *
fullf('v11.s')
fullf('f2.s', f=dict(qc=(1,5), q1=(1,6)))
fullf('f3.s', f=dict(D2=10))
fullf('f4.s', f=dict(D1=6))
fullf('f5.s', f=dict(m48=True))
fullf('f6.s', f=dict(ncode=8))
fullf('f7.s', f=dict(outf="nt"))
```

```python
from buildf import *
fullf('fa_ts.s', ts=True, f=dict(marks=(0,1,12,13,2,14)))
fullf('fb_ts.s', ts=True, f=dict(marks=(14,3,16,17,19,4)))
fullf('fL_ts.s', ts=True, f=dict(marks=(33,34,35,36,38,39), tsw=4))
fullf('fc_ts.s', ts=True, f=dict(marks=(5,6,7,9,8,10)))
fullf('fLd_ts.s', ts=True, f=dict(marks=(39,41,42,43,44,70), tsw=4))
fullf('fe_ts.s', ts=True, f=dict(marks=(10,62,11)))
```
